```python
import torch

def _softmax(x, axis=-1):
    return torch.softmax(x, dim=axis)
def _gelu(x):
    return torch.nn.functional.gelu(x, approximate="tanh")
def _silu(x):
    return torch.nn.functional.silu(x)
def _sigmoid(x):
    return torch.sigmoid(x)
def _layernorm(x, axis=-1, eps=1e-5):
    m = x.mean(dim=axis, keepdim=True)
    v = x.var(dim=axis, keepdim=True, unbiased=False)
    return (x - m) / torch.sqrt(v + eps)
def _scatter_add(tgt, idx, src, axis=0):
    return tgt.clone().index_add_(axis, idx, src)
def _segment_sum(src, seg, n):
    out = torch.zeros((n,) + src.shape[1:], dtype=src.dtype)
    return out.index_add_(0, seg, src)
def _pad(x, pw):
    flat = tuple(v for pair in reversed(pw) for v in pair)
    return torch.nn.functional.pad(x, flat)

kernel_name = 'sequential_preLN__grouped_kv_mqa__moe_arch_mod__prompt'

def setup_inputs():

    _w = (lambda a: (lambda t: t.to(torch.bfloat16) if t.is_floating_point() else t)(torch.as_tensor(a)))
    def _A_setup():
        B, S, D, H = 1, 2048, 576, 32
        Dh = D // H
        return {
            "x": _w((lambda *s: torch.randn(*s, dtype=torch.bfloat16) * 0.05)(B, S, D)),
            "wq": _w((lambda *s: torch.randn(*s, dtype=torch.bfloat16) * 0.05)(D, H * Dh)),
            "wk": _w((lambda *s: torch.randn(*s, dtype=torch.bfloat16) * 0.05)(D, Dh)),
            "wv": _w((lambda *s: torch.randn(*s, dtype=torch.bfloat16) * 0.05)(D, Dh)),
            "wo": _w((lambda *s: torch.randn(*s, dtype=torch.bfloat16) * 0.05)(H * Dh, D)),
        }
    _A_in = _A_setup()

    def _B_setup():
        B, S, D, F, C = 1, 2048, 576, 4608, 8
        return {
            "x": _w((lambda *s: torch.randn(*s, dtype=torch.bfloat16) * 0.05)(B, S, D)),
            "w_r": _w((lambda *s: torch.randn(*s, dtype=torch.bfloat16) * 0.05)(D)),
            "w_gate": _w((lambda *s: torch.randn(*s, dtype=torch.bfloat16) * 0.05)(D, F)),
            "w_up": _w((lambda *s: torch.randn(*s, dtype=torch.bfloat16) * 0.05)(D, F)),
            "w_down": _w((lambda *s: torch.randn(*s, dtype=torch.bfloat16) * 0.05)(F, D)),
        }
    _B_in = _B_setup()

    return {
        "A_x": _A_in["x"],
        "A_wq": _A_in["wq"],
        "A_wk": _A_in["wk"],
        "A_wv": _A_in["wv"],
        "A_wo": _A_in["wo"],
        "B_x": _B_in["x"],
        "B_w_r": _B_in["w_r"],
        "B_w_gate": _B_in["w_gate"],
        "B_w_up": _B_in["w_up"],
        "B_w_down": _B_in["w_down"],
    }

def reference(A_x, A_wq, A_wk, A_wv, A_wo, B_x, B_w_r, B_w_gate, B_w_up, B_w_down):
    def _A_ref(x, wq, wk, wv, wo):
        B, S, D = x.shape
        H = 32
        Dh = D // H
        q = (lambda x, *d: x.permute(*d))((x @ wq).reshape(B, S, H, Dh), 0, 2, 1, 3)
        k = x @ wk
        v = x @ wv
        scores = torch.einsum("bhqd,bkd->bhqk", q, k) * (Dh ** -0.5)
        p = _softmax(scores, axis=-1)
        o = torch.einsum("bhqk,bkd->bhqd", p, v)
        return (lambda x, *d: x.permute(*d))(o, 0, 2, 1, 3).reshape(B, S, H * Dh) @ wo

    def _B_ref(x, w_r, w_gate, w_up, w_down):
        B, S, D = x.shape
        C = 8
        r = x @ w_r
        idx = torch.argsort(-r, axis=-1)[:, :C]
        idx_e = (lambda x, n, axis: torch.repeat_interleave(x, n, dim=axis))(idx.reshape(B, C, 1), D, axis=2)
        x_sel = (lambda x, i, axis: torch.take_along_dim(x, i, dim=axis))(x, idx_e, axis=1)
        g = _silu(x_sel @ w_gate)
        u = x_sel @ w_up
        y = (g * u) @ w_down
        r_sel = _sigmoid((lambda x, i, axis: torch.take_along_dim(x, i, dim=axis))(r, idx, axis=1))
        y = y * r_sel.reshape(B, C, 1)
        b_off = (torch.arange(B) * S).reshape(B, 1)
        flat_idx = (idx + b_off).reshape(B * C)
        zero = (x * 0.0).reshape(B * S, D)
        upd = _scatter_add(zero, flat_idx, y.reshape(B * C, D), axis=0)
        return x + upd.reshape(B, S, D)

    x = A_x
    h = x + _A_ref(_layernorm(x, axis=-1), A_wq, A_wk, A_wv, A_wo)
    h2 = h + _B_ref(_layernorm(h, axis=-1), B_w_r, B_w_gate, B_w_up, B_w_down)
    return h2
```

```python
import re

TRANS = ("v_exp_f32", "v_log_f32", "v_rcp_f32", "v_rsq_f32", "v_sqrt_f32", "v_sin_f32", "v_cos_f32")
PASSES = {"v_mfma_f32_32x32x16_bf16": 8, "v_mfma_f32_32x32x8_bf16": 8, "v_mfma_f32_32x32x4_2b_bf16": 16,
          "v_mfma_f32_16x16x32_bf16": 4, "v_smfmac_f32_32x32x32_bf16": 8, "v_smfmac_f32_16x16x64_bf16": 4,
          "v_mfma_f32_16x16x16_bf16": 4}
RMW = ("v_fmac_f32", "v_dot2c_f32_bf16", "v_pk_fmac_f16", "v_writelane_b32")

def regs_of(tok):
    tok = tok.strip()
    tok = re.sub(r"^-", "", tok)
    m = re.match(r"^abs\((.*)\)$", tok)
    if m: tok = m.group(1)
    tok = tok.strip("|")
    m = re.match(r"^([vsa])(\d+)$", tok)
    if m: return [m.group(1) + m.group(2)]
    m = re.match(r"^([vsa])\[(\d+):(\d+)\]$", tok)
    if m: return [m.group(1) + str(i) for i in range(int(m.group(2)), int(m.group(3)) + 1)]
    if tok in ("vcc", "vcc_lo", "vcc_hi"): return ["vcc"]
    if tok in ("exec", "exec_lo", "exec_hi"): return ["exec"]
    if tok == "m0": return ["m0"]
    return []

class Ins:
    def __init__(self, text):
        self.text = text
        t = text.split(";")[0].strip()
        self.label = None
        self.mn = None
        self.w, self.r = set(), set()
        self.kind = "none"
        if not t or t.startswith("."):
            return
        if t.endswith(":"):
            self.label = t[:-1]
            return
        parts = t.split(None, 1)
        mn = parts[0]
        rest = parts[1] if len(parts) > 1 else ""
        ops = [o.strip() for o in re.split(r",(?![^\[]*\])", rest)] if rest else []
        mods = ""
        if ops:
            last = ops[-1].split(None, 1)
            if last and not last[0].startswith("hwreg") and not last[0].startswith("vmcnt") and not last[0].startswith("lgkmcnt"):
                ops[-1] = last[0]
                mods = last[1] if len(last) > 1 else ""
        self.mn, self.ops, self.mods = mn, ops, mods
        base = re.sub(r"_(e32|e64|dpp|sdwa)$", "", mn)
        self.base = base
        self.dpp = mn.endswith("_dpp") or "row_" in mods or "quad_perm" in mods or "wave_" in mods
        R = lambda i: regs_of(ops[i])
        if base in PASSES:
            self.kind = "mfma"
            self.passes = PASSES[base]
            self.D = R(0); self.A = R(1); self.B = R(2)
            if base.startswith("v_smfmac"):
                self.C = self.D; self.idx = R(3)
            else:
                self.C = R(3); self.idx = []
            self.w = set(self.D); self.r = set(self.A + self.B + self.C + self.idx)
        elif mn.startswith("v_"):
            self.kind = "valu"
            self.w = set(R(0))
            src = 1
            if base in ("v_add_co_u32", "v_sub_co_u32", "v_addc_co_u32", "v_subb_co_u32", "v_mad_u64_u32", "v_subrev_co_u32"):
                self.w |= set(R(1)); src = 2
            for i in range(src, len(ops)): self.r |= set(R(i))
            if base in RMW or "UNUSED_PRESERVE" in mods or (self.dpp and "bound_ctrl" not in mods): self.r |= set(R(0))
            if base.startswith("v_permlane") or base == "v_swap_b32":
                self.w |= set(R(1)); self.r |= set(R(0))
            if base.startswith("v_cmpx"): self.w.add("exec")
            if base == "v_nop": self.w = set()
        elif mn.startswith("buffer_") or mn.startswith("global_"):
            self.kind = "vmem"
            lds = (" lds" in " " + mods) or "_lds_" in mn
            self.lds = lds
            self.store = "_store" in mn or ("_atomic" in mn)
            if mn in ("buffer_inv", "buffer_wbl2"):
                self.store = True; self.data = []
            elif lds:
                for i in range(len(ops)): self.r |= set(R(i))
                self.r.add("m0"); self.data = []
            elif self.store:
                for i in range(len(ops)): self.r |= set(R(i))
                self.data = R(0) if mn.startswith("buffer_") else R(1)
                if "_atomic" in mn and "sc0" in mods:
                    self.w = set(R(0))
                    if mn.startswith("global_"): self.r -= set(R(0)); self.data = R(2)
            else:
                self.w = set(R(0)); self.data = []
                for i in range(1, len(ops)): self.r |= set(R(i))
                if "d16" in mn: self.r |= set(R(0))
        elif mn.startswith("ds_"):
            self.kind = "ds"
            if mn.startswith("ds_read") or "permute" in mn or "swizzle" in mn or "_rtn" in mn:
                self.w = set(R(0))
                for i in range(1, len(ops)): self.r |= set(R(i))
            else:
                for i in range(len(ops)): self.r |= set(R(i))
        elif mn.startswith("s_load") or mn in ("s_memtime", "s_memrealtime"):
            self.kind = "smem"
            self.w = set(R(0))
            for i in range(1, len(ops)): self.r |= set(R(i))
        elif mn in ("s_waitcnt", "s_nop", "s_barrier", "s_endpgm", "s_setprio", "s_sleep") or mn.startswith("s_cbranch") or mn == "s_branch":
            self.kind = "ctl"
            self.rest = rest
            if mn in ("s_cbranch_vccz", "s_cbranch_vccnz"): self.r.add("vcc")
            if mn in ("s_cbranch_execz", "s_cbranch_execnz"): self.r.add("exec")
        elif mn.startswith("s_"):
            self.kind = "salu"
            if mn.startswith("s_cmp") or mn.startswith("s_bitcmp"):
                for i in range(len(ops)): self.r |= set(R(i))
            else:
                self.w = set(R(0))
                for i in range(1, len(ops)): self.r |= set(R(i))
                if "saveexec" in mn: self.w.add("exec"); self.r.add("exec")
                if mn in ("s_addk_i32", "s_mulk_i32", "s_bitset1_b32", "s_bitset0_b32", "s_bitset0_b64", "s_bitset1_b64"): self.r |= set(R(0))
        else:
            raise ValueError("unknown instruction " + text)

    def states(self):
        if self.mn is None: return 0
        if self.mn == "s_nop": return int(self.rest, 0) + 1
        return 1

def vonly(s): return {x for x in s if x[0] in "va" and x != "vcc"}
def sonly(s): return {x for x in s if x[0] == "s" or x == "vcc"}

def need(p, c):
    n = 0
    if p.kind == "valu":
        pv = vonly(p.w); ps = sonly(p.w)
        if c.kind == "mfma" and pv & c.r: n = max(n, 2)
        if c.kind == "valu":
            if pv & c.r:
                if c.dpp or c.base.startswith("v_permlane"): n = max(n, 2)
                if c.base in ("v_readlane_b32", "v_readfirstlane_b32"): n = max(n, 1)
                if p.base in TRANS and c.base not in TRANS: n = max(n, 1)
                if p.mn.endswith("_sdwa") or "op_sel" in p.mods and not p.base.startswith("v_pk"): n = max(n, 1)
            if ps & c.r:
                n = max(n, 2)
                if c.base in ("v_readlane_b32", "v_writelane_b32") and ps & set(regs_of(c.ops[2])): n = max(n, 4)
            if "exec" in p.w: n = max(n, 5)
        if c.kind == "mfma" and "exec" in p.w: n = max(n, 4)
        if c.kind == "vmem" and ps & c.r: n = max(n, 5)
        if c.kind in ("vmem", "ds") and p.base in TRANS and pv & c.r: n = max(n, 1)
    elif p.kind == "mfma":
        D = set(p.D)
        long = {2: 5, 4: 8, 8: 12, 16: 20}[p.passes]
        if c.kind == "mfma":
            if D & set(c.A + c.B + c.idx): n = max(n, long)
            if D & set(c.C):
                if not (c.C == p.D and c.passes == p.passes): n = max(n, p.passes + 2)
            elif D & set(c.D): n = max(n, p.passes + 2 if c.passes < p.passes or c.D != p.D else 0)
        elif c.kind in ("valu", "vmem", "ds"):
            if D & (c.r | c.w): n = max(n, long)
            if c.kind == "valu" and set(p.C) & c.w: n = max(n, p.passes - 1)
    elif p.kind == "salu":
        if "m0" in p.w and "m0" in c.r and c.kind in ("vmem", "ds"): n = max(n, 1)
    elif p.kind == "vmem":
        if p.store and len(p.data) >= 3 and set(p.data) & c.w: n = max(n, 2)
    if p.kind in ("ds", "vmem") and c.kind == "valu" and c.dpp and vonly(p.w) & c.r: n = max(n, 2)
    return n

class Asm:
    def __init__(self):
        self.lines = []
    def __call__(self, text):
        for l in text.split("\n"):
            self.lines.append(l)
    def text(self):
        return "\n".join(self.lines) + "\n"

def fix_hazards(lines, report=None):
    out = []
    for l in lines:
        c = Ins(l)
        if c.mn is not None:
            dist = 0; req = 0
            for p in reversed(out):
                if p.mn is None: continue
                if p.mn in ("s_branch", "s_endpgm"): break
                k = need(p, c) - dist
                if k > req: req = k; who = p
                dist += p.states()
                if dist > 24: break
            if req > 0:
                if report is not None: report.append((len(out), req, who.text.strip(), l.strip()))
                while req > 0:
                    k = min(req, 16)
                    out.append(Ins(f"  s_nop {k - 1}"))
                    req -= k
        out.append(c)
    labels = {p.label: i for i, p in enumerate(out) if p.label}
    for i, b in enumerate(out):
        if b.mn and (b.mn.startswith("s_cbranch") or b.mn == "s_branch"):
            t = labels[b.rest.strip()]
            before = []
            for p in reversed(out[:i + 1]):
                if p.mn is None: continue
                if p is not b and p.mn in ("s_branch", "s_endpgm"): break
                before.append(p)
                if len(before) > 24: break
            d0 = 0
            for c in out[t:]:
                if c.mn is None: continue
                dist = d0
                for p in before:
                    if need(p, c) > dist:
                        raise Exception(f"hazard across branch {b.text}: {p.text} -> {c.text}")
                    dist += p.states()
                d0 += c.states()
                if d0 > 24 or c.mn in ("s_branch", "s_endpgm"): break
    return out

def check_waits(trace, name=""):
    vm, lg = [], []
    errs = []
    for c in trace:
        if c.mn is None: continue
        if c.mn == "s_waitcnt":
            m = re.search(r"vmcnt\((\d+)\)", c.rest)
            if m:
                n = int(m.group(1)); assert n <= 63
                vm = vm[len(vm) - n:] if n < len(vm) else vm
                if n == 0: vm = []
            m = re.search(r"lgkmcnt\((\d+)\)", c.rest)
            if m:
                n = int(m.group(1)); assert n <= 15
                if any(o.kind == "smem" for o in lg):
                    if n == 0: lg = []
                else:
                    lg = lg[len(lg) - n:] if n < len(lg) else lg
                    if n == 0: lg = []
            continue
        for o in vm + lg:
            hit = o.w & (c.r | c.w)
            if hit and not (o.kind == c.kind and o.kind in ("vmem", "ds") and not (o.w & c.r - (c.w if "d16" in c.mn else set()))):
                errs.append(f"{name}: {c.text.strip()} uses pending {o.text.strip()}")
        if c.kind == "vmem":
            vm.append(c)
            if len(vm) > 63: errs.append(f"{name}: more than 63 vmem ops outstanding at {c.text.strip()}")
        if c.kind in ("ds", "smem"): lg.append(c)
    return errs

def trace_path(ins, start, decide, limit=200000):
    labels = {p.label: i for i, p in enumerate(ins) if p.label}
    i = labels[start]; cnt = {}; out = []
    while len(out) < limit:
        c = ins[i]
        out.append(c)
        if c.mn == "s_endpgm": return out
        if c.mn == "s_branch":
            i = labels[c.rest.strip()]; continue
        if c.mn and c.mn.startswith("s_cbranch"):
            cnt[i] = cnt.get(i, 0) + 1
            if decide(c.rest.strip(), cnt[i]):
                i = labels[c.rest.strip()]; continue
        i += 1
    raise Exception("trace too long")
```

```python
from asmlib import *
from layout import *

def srd(a, s, lo, hi, size):
    a(f"  s_mov_b32 s{s}, s{lo}")
    a(f"  s_and_b32 s{s+1}, s{hi}, 0xffff")
    a(f"  s_mov_b32 s{s+2}, {size}")
    a(f"  s_mov_b32 s{s+3}, 0x20000")

K1_LDS = 96768
CHUNK = 10240
L_CS = 92160
L_JOB = 92672

def gen_k1():
    a = Asm()
    a("k1_kernel:")
    a("  s_cmp_ge_u32 s2, 256")
    a("  s_cbranch_scc1 K1_END")
    a("  s_load_dwordx8 s[36:43], s[0:1], 0")
    a("  s_load_dwordx2 s[44:45], s[0:1], 32     ; wo")
    a("  s_load_dwordx2 s[46:47], s[0:1], 96     ; ws")
    a("  v_lshrrev_b32 v1, 6, v0")
    a("  v_and_b32 v0, 63, v0                    ; lane")
    a("  v_readfirstlane_b32 s3, v1              ; wave")
    a("  s_and_b32 s4, s2, 7")
    a("  s_lshr_b32 s5, s2, 6")
    a("  s_lshl_b32 s4, s4, 2")
    a("  s_add_u32 s4, s4, s5")
    a("  s_bfe_u32 s5, s2, 0x30003")
    a("  v_lshrrev_b32 v1, 4, v0                 ; g = lane/16")
    a("  v_bfe_u32 v2, v0, 2, 2                  ; r")
    a("  v_and_b32 v3, 3, v0                     ; c")
    a("  v_lshlrev_b32 v4, 2, v1")
    a("  v_add_u32 v4, v4, v2                    ; 4g+r")
    a("  v_mul_u32_u24 v5, 288, v4")
    a("  v_lshl_add_u32 v5, v3, 3, v5            ; vA = 144*(8g+2r)+8c")
    a("  v_lshlrev_b32 v10, 5, v4")
    a("  v_lshl_add_u32 v10, v3, 3, v10          ; 16*(8g+2r)+8c")
    a("  v_cmp_gt_u32 vcc, 2, v3")
    for n, (s, j) in enumerate(((0, 0), (0, 1), (1, 0), (1, 1))):
        a(f"  v_add_u32 v11, {128 + 144 * (32 * s + j)}, v5")
        a(f"  v_add_u32 v12, {9216 - 16 + 16 * (32 * s + j)}, v10")
        a(f"  v_cndmask_b32 v{6 + n}, v12, v11, vcc")
    for i in range(4):
        a(f"  v_mov_b32 v{164 + i}, 0x3f803f80")
    a("  s_cmp_ge_u32 s3, 4")
    a("  s_cbranch_scc1 K1_HELP")

    a("  v_and_b32 v13, 15, v0")
    a("  s_lshl_b32 s6, s4, 6")
    a("  s_lshl_b32 s7, s3, 4")
    a("  s_add_u32 s6, s6, s7")
    a("  s_mul_i32 s7, s6, 1152")
    a("  v_mul_u32_u24 v14, 1152, v13")
    a("  v_lshl_add_u32 v14, v1, 4, v14")
    a("  s_waitcnt lgkmcnt(0)")
    srd(a, 12, 36, 37, 2359296)
    for ks in range(18):
        a(f"  buffer_load_dwordx4 v[{64 + 4 * ks}:{67 + 4 * ks}], v14, s[12:15], s7 offen offset:{64 * ks}")
    srd(a, 8, 46, 47, WS_END)
    for i in range(28):
        a(f"  v_mov_b32 v{136 + i}, 0")
    a("  v_lshrrev_b32 v15, 3, v13")
    a("  v_mul_u32_u24 v15, 9216, v15")
    a("  v_and_b32 v56, 7, v13")
    a("  v_mul_u32_u24 v56, 144, v56")
    a("  v_add_u32 v15, v15, v56")
    a("  v_lshl_add_u32 v15, v1, 3, v15          ; vQ")
    a("  s_mul_i32 s20, s5, 1152")
    a("  s_add_u32 s20, s20, s7")
    a("  v_lshrrev_b32 v56, 2, v13")
    a("  v_lshl_add_u32 v56, v56, 4, v13")
    a("  v_lshlrev_b32 v56, 2, v56")
    a("  v_lshlrev_b32 v57, 4, v1")
    a(f"  v_add_u32 v57, {L_CS}, v57")

    def rd(n, c):
        s, t, j = n // 10, (n % 10) // 2, n % 2
        dst = 16 + 20 * s + 4 * t + 2 * j
        cb = (c % 6) * CHUNK
        if t < 4:
            a(f"  ds_read_b64_tr_b16 v[{dst}:{dst + 1}], v5 offset:{cb + 144 * (32 * s + j) + 32 * t}")
        else:
            a(f"  ds_read_b64_tr_b16 v[{dst}:{dst + 1}], v{6 + 2 * s + j} offset:{cb}")
    for c in range(9):
        if c == 6:
            for r in range(5, 10):
                a(f"  v_add_u32 v{r}, {6 * CHUNK}, v{r}")
        a("  s_barrier")
        for n in range(6): rd(n, c)
        a(f"  s_waitcnt vmcnt({16 - 2 * c})")
        for s in range(2):
            x = 64 + 4 * (2 * c + s)
            a(f"  v_mfma_f32_16x16x32_bf16 v[156:159], v[164:167], v[{x}:{x + 3}], v[156:159]")
            rd(6 + 4 * s, c); rd(7 + 4 * s, c)
            a(f"  v_mfma_f32_16x16x32_bf16 v[160:163], v[{x}:{x + 3}], v[{x}:{x + 3}], v[160:163]")
            rd(8 + 4 * s, c); rd(9 + 4 * s, c)
        issued = 14
        for m in range(10):
            s, t = m // 5, m % 5
            x = 64 + 4 * (2 * c + s)
            w = 16 + 20 * s + 4 * t
            a(f"  s_waitcnt lgkmcnt({issued - 2 * (m + 1)})")
            a(f"  v_mfma_f32_16x16x32_bf16 v[{136 + 4 * t}:{139 + 4 * t}], v[{w}:{w + 3}], v[{x}:{x + 3}], v[{136 + 4 * t}:{139 + 4 * t}]")
            if issued < 20:
                rd(issued, c); rd(issued + 1, c); issued += 2
    a("  s_mov_b32 s22, 0x22222222")
    a("  s_mov_b32 s23, 0x22222222")
    a("  s_mov_b32 s24, 0x44444444")
    a("  s_mov_b32 s25, 0x44444444")
    a("  s_mov_b32 s26, 0x88888888")
    a("  s_mov_b32 s27, 0x88888888")
    a("  v_cndmask_b32 v58, v160, v161, s[22:23]")
    a("  v_cndmask_b32 v58, v58, v162, s[24:25]")
    a("  v_cndmask_b32 v58, v58, v163, s[26:27]")
    a("  ds_bpermute_b32 v58, v56, v58")
    a("  s_barrier")
    for t in range(5):
        a(f"  ds_read_b128 v[{16 + 4 * t}:{19 + 4 * t}], v57 offset:{64 * t}")
    a(f"  v_mul_f32 v60, {f32(-1.0 / 576)}, v156           ; -mean")
    a("  s_waitcnt lgkmcnt(5)")
    a(f"  v_mul_f32 v58, {f32(1.0 / 576)}, v58")
    a("  v_fma_f32 v58, -v60, v60, v58            ; var")
    a("  v_max_f32 v58, 0, v58")
    a(f"  v_add_f32 v58, {f32(1e-5)}, v58")
    a("  v_rsq_f32 v58, v58                       ; rstd")
    a("  v_cmp_gt_u32 vcc, 2, v1")
    a(f"  v_mul_f32 v62, {f32(QSCALE)}, v58")
    a("  v_cndmask_b32 v58, v58, v62, vcc")
    for t in range(5):
        a(f"  s_waitcnt lgkmcnt({4 - t})")
        sc = 62 if t < 4 else 58
        for h in range(2):
            r = 136 + 4 * t + 2 * h
            a(f"  v_pk_fma_f32 v[{r}:{r + 1}], v[{16 + 4 * t + 2 * h}:{17 + 4 * t + 2 * h}], v[60:61], v[{r}:{r + 1}] op_sel_hi:[1,0,1]")
            a(f"  v_pk_mul_f32 v[{r}:{r + 1}], v[{r}:{r + 1}], v[{sc}:{sc + 1}] op_sel_hi:[1,0]")
        a(f"  v_cvt_pk_bf16_f32 v{40 + 2 * t}, v{136 + 4 * t}, v{137 + 4 * t}")
        a(f"  v_cvt_pk_bf16_f32 v{41 + 2 * t}, v{138 + 4 * t}, v{139 + 4 * t}")
        if t < 4:
            a(f"  buffer_store_dwordx2 v[{40 + 2 * t}:{41 + 2 * t}], v15, s[8:11], s20 offen offset:{32 * t}")
    a("  s_mov_b32 exec_hi, 0")
    a("  buffer_store_dwordx2 v[48:49], v15, s[8:11], s20 offen offset:128")
    a("  s_mov_b32 exec_hi, -1")
    a("  s_cmp_ge_u32 s5, 3")
    a("  s_cbranch_scc1 K1_NOTK")
    a("  s_cmp_eq_u32 s5, 2")
    a("  s_cbranch_scc1 K1_KL")
    a("  v_lshlrev_b32 v15, 5, v13")
    a("  v_lshl_add_u32 v15, v1, 3, v15")
    a("  s_lshl_b32 s20, s6, 5")
    a("  s_lshl_b32 s21, s5, 4")
    a("  s_add_u32 s20, s20, s21")
    a(f"  s_add_u32 s20, s20, {WS_KM - 16}")
    a("  s_mov_b32 exec_lo, 0")
    a("  buffer_store_dwordx2 v[48:49], v15, s[8:11], s20 offen")
    a("  s_endpgm")
    a("K1_KL:")
    a("  v_lshlrev_b32 v15, 2, v13")
    a("  s_lshl_b32 s20, s6, 2")
    a(f"  s_add_u32 s20, s20, {WS_KL}")
    a("  s_mov_b32 exec_lo, 0")
    a("  s_mov_b32 exec_hi, 0xffff0000")
    a("  buffer_store_dword v49, v15, s[8:11], s20 offen")
    a("  s_endpgm")
    a("K1_NOTK:")
    a("  s_mul_i32 s20, s6, 40                   ; (tok0/16)*640")
    a("  s_cmp_ge_u32 s5, 6")
    a("  s_cbranch_scc1 K1_NOTV")
    a("  v_lshlrev_b32 v15, 1, v13")
    a("  v_lshl_add_u32 v15, v1, 7, v15")
    a("  s_sub_u32 s21, s5, 3")
    a("  s_lshl_b32 s21, s21, 8")
    a("  s_min_u32 s21, s21, 320")
    a("  s_add_u32 s20, s20, s21")
    a(f"  s_add_u32 s20, s20, {WS_VT - 256}")
    a("  s_mov_b32 exec_lo, 0")
    a("  buffer_store_short v48, v15, s[8:11], s20 offen")
    a("  buffer_store_short_d16_hi v48, v15, s[8:11], s20 offen offset:32")
    a("  buffer_store_short v49, v15, s[8:11], s20 offen offset:64")
    a("  buffer_store_short_d16_hi v49, v15, s[8:11], s20 offen offset:96")
    a("  s_endpgm")
    a("K1_NOTV:")
    a("  v_lshlrev_b32 v15, 2, v13")
    a("  s_mov_b64 exec, 0xffff")
    a("  s_cmp_eq_u32 s5, 7")
    a("  s_cbranch_scc1 K1_CLR")
    a(f"  s_add_u32 s20, s20, {WS_VT + 576}")
    a("  buffer_store_dword v164, v15, s[8:11], s20 offen")
    a("  s_endpgm")
    a("K1_CLR:")
    a("  s_lshl_b32 s20, s6, 2")
    a(f"  s_add_u32 s20, s20, {WS_KEYS}")
    a("  v_mov_b32 v16, 0")
    a("  buffer_store_dword v16, v15, s[8:11], s20 offen")
    a("  s_endpgm")

    a("K1_HELP:")
    a("  s_sub_u32 s3, s3, 4")
    a("  s_mul_i32 s20, s5, 144")
    def pattern(dst, idx_expr_sgpr):
        a(f"  v_add_u32 v13, {idx_expr_sgpr}, v0")
        a("  v_mul_u32_u24 v14, 7282, v13")
        a("  v_lshrrev_b32 v14, 16, v14              ; rho")
        a("  v_mul_u32_u24 v15, 9, v14")
        a("  v_sub_u32 v15, v13, v15                 ; cg")
        perm("v14", "v13", "v16")
        a("  v_mul_u32_u24 v13, 1152, v13")
        a(f"  v_lshl_add_u32 v{dst}, v15, 4, v13")
    def perm(src, dst, tmp):
        a(f"  v_and_b32 {dst}, 0x38, {src}")
        a(f"  v_bfe_u32 {tmp}, {src}, 1, 2")
        a(f"  v_or_b32 {dst}, {dst}, {tmp}")
        a(f"  v_and_b32 {tmp}, 1, {src}")
        a(f"  v_lshl_or_b32 {dst}, {tmp}, 2, {dst}")
    a("  s_lshl_b32 s21, s3, 6")
    pattern(20, "s21")
    a("  s_add_u32 s21, s21, 256")
    pattern(21, "s21")
    a("  s_movk_i32 s21, 512")
    pattern(22, "s21")
    perm("v0", "v13", "v16")
    a("  v_mul_u32_u24 v23, 36, v13")
    a("  s_waitcnt lgkmcnt(0)")
    srd(a, 12, 38, 39, 663552)
    a("  s_cmp_ge_u32 s5, 3")
    a("  s_cselect_b32 s16, s42, s40")
    a("  s_cselect_b32 s17, s43, s41")
    a("  s_cselect_b32 s24, 3, 0")
    a("  s_sub_u32 s24, s5, s24")
    a("  s_lshl_b32 s24, s24, 4")
    a("  s_min_u32 s24, s24, 20")
    a("  s_mov_b32 s18, 20736")
    a("  s_movk_i32 s25, 2304")
    a("  s_cmp_eq_u32 s3, 0")
    a("  s_cselect_b32 s16, s38, s16")
    a("  s_cselect_b32 s17, s39, s17")
    a("  s_cselect_b32 s18, 663552, s18")
    a("  s_cselect_b32 s24, s20, s24")
    a("  s_cselect_b32 s25, 73728, s25")
    a("  s_cselect_b64 vcc, -1, 0")
    a("  s_and_b32 s17, s17, 0xffff")
    a("  s_mov_b32 s19, 0x20000")
    a("  v_cndmask_b32 v22, v23, v22, vcc")
    a("  s_lshl_b32 s26, s3, 10")
    a("  s_cmp_ge_u32 s3, 2")
    a("  s_cbranch_scc1 K1_H2")

    def job():
        srd(a, 28, 44, 45, 663552)
        srd(a, 8, 46, 47, WS_END)
        a("  s_sub_u32 s32, 3, s3")
        a("  s_lshl_b32 s32, s32, 8")
        a("  s_add_u32 s32, s32, s2")
        a("  s_mul_i32 s33, s32, 911")
        a("  s_lshr_b32 s33, s33, 16")
        a("  s_mul_i32 s34, s33, 72")
        a("  s_sub_u32 s34, s32, s34")
        a("  s_and_b32 s35, s34, 1                   ; hB")
        a("  s_lshr_b32 s34, s34, 1                  ; tile")
        a("  v_bfe_u32 v13, v0, 1, 1                 ; b")
        a("  v_bfe_u32 v14, v0, 3, 1                 ; e/4")
        a("  v_lshl_add_u32 v13, v14, 1, v13         ; ea%4")
        a("  v_bfe_u32 v14, v0, 4, 1                 ; gb%2")
        a("  v_bfe_u32 v15, v0, 2, 1                 ; p")
        a("  v_bfe_u32 v16, v0, 5, 1                 ; gb/2")
        a("  v_lshl_add_u32 v15, v16, 1, v15")
        a("  v_mul_u32_u24 v15, 18, v15              ; 18*(2*(gb/2)+p)")
        a("  v_lshl_add_u32 v16, v14, 3, v13         ; main: 8*(gb%2)+ea%4")
        a("  v_lshl_add_u32 v17, v14, 2, v13")
        a("  v_mul_u32_u24 v17, 72, v17")
        a("  s_mul_i32 s21, s33, 72")
        a("  s_lshl_b32 s22, s35, 2")
        a("  s_add_u32 s21, s21, s22")
        a("  s_add_u32 s22, s35, 16")
        a("  s_cmp_eq_u32 s33, 8")
        a("  s_cselect_b32 s21, s22, s21")
        a("  s_cselect_b64 vcc, -1, 0")
        a("  s_mul_i32 s21, s21, 1152")
        a("  s_lshl_b32 s22, s34, 5")
        a("  s_add_u32 s21, s21, s22")
        a("  v_cndmask_b32 v16, v16, v17, vcc")
        a("  v_add_u32 v15, v15, v16")
        a("  v_mul_u32_u24 v15, 1152, v15")
        a("  v_and_b32 v16, 1, v0")
        a("  v_lshl_add_u32 v15, v16, 4, v15")
        a("  s_lshl_b32 s22, s3, 10")
        a(f"  s_add_u32 s22, s22, {L_JOB}")
        a("  s_mov_b32 m0, s22")
        a("  s_cmp_ge_u32 s32, 648")
        a("  s_cselect_b32 s21, 0x1000000, s21")
        a("  buffer_load_dwordx4 v15, s[28:31], s21 offen lds")
        a("  s_lshl_b32 s33, s32, 10")
        a(f"  s_add_u32 s33, s33, {WS_WOL}")
        a("  s_cmp_ge_u32 s32, 648")
        a("  s_cselect_b32 s33, 0x1000000, s33")
        a("  v_lshl_add_u32 v24, v1, 3, v2")
        a("  v_lshlrev_b32 v24, 5, v24")
        a("  v_lshl_add_u32 v24, v3, 3, v24")
        a("  v_add_u32 v24, s22, v24")
        a("  v_lshlrev_b32 v25, 4, v0")

    def helper(n3, two_tiles_label):
        per = 3 if n3 else 2
        for c in range(9):
            a(f"  s_add_u32 m0, s26, {c * CHUNK}")
            a(f"  s_add_u32 s21, s20, {c * 73728}")
            a("  buffer_load_dwordx4 v20, s[12:15], s21 offen lds")
            a(f"  s_add_u32 m0, s26, {c * CHUNK + 4096}")
            a("  s_nop 0")
            a("  buffer_load_dwordx4 v21, s[12:15], s21 offen lds")
            if n3:
                a(f"  s_add_u32 m0, s26, {c * CHUNK + 8192}")
                a("  s_nop 0")
                a("  buffer_load_dwordx4 v22, s[16:19], s24 offen lds")
                a("  s_add_u32 s24, s24, s25")
        job()
        for i in range(8):
            a(f"  v_mov_b32 v{48 + i}, 0")
        a("  s_lshl_b32 s21, s3, 5")
        a("  v_add_u32 v5, s21, v5                   ; tile h")
        for c in range(9):
            if c == 6:
                for r in range(5, 10):
                    a(f"  v_add_u32 v{r}, {6 * CHUNK}, v{r}")
            a(f"  s_waitcnt vmcnt({per * (8 - c) + 1})")
            a("  s_barrier")
            cb = (c % 6) * CHUNK
            for s in range(2):
                for j in range(2):
                    a(f"  ds_read_b64_tr_b16 v[{32 + 4 * s + 2 * j}:{33 + 4 * s + 2 * j}], v5 offset:{cb + 144 * (32 * s + j)}")
            if not n3:
                a("  s_cmp_eq_u32 s3, 3")
                a(f"  s_cbranch_scc1 K1_S{c}")
                for s in range(2):
                    for j in range(2):
                        a(f"  ds_read_b64_tr_b16 v[{40 + 4 * s + 2 * j}:{41 + 4 * s + 2 * j}], v{6 + 2 * s + j} offset:{cb}")
                a("  s_waitcnt lgkmcnt(0)")
                a("  v_mfma_f32_16x16x32_bf16 v[52:55], v[40:43], v[164:167], v[52:55]")
                a("  v_mfma_f32_16x16x32_bf16 v[52:55], v[44:47], v[164:167], v[52:55]")
                a(f"K1_S{c}:")
            a("  s_waitcnt lgkmcnt(0)")
            a("  v_mfma_f32_16x16x32_bf16 v[48:51], v[32:35], v[164:167], v[48:51]")
            a("  v_mfma_f32_16x16x32_bf16 v[48:51], v[36:39], v[164:167], v[48:51]")
        a("  v_lshlrev_b32 v13, 4, v1")
        a("  s_lshl_b32 s21, s3, 6")
        a(f"  s_add_u32 s21, s21, {L_CS}")
        a("  v_add_u32 v13, s21, v13")
        a("  s_mov_b32 exec_lo, 0x00010001")
        a("  s_mov_b32 exec_hi, 0x00010001")
        a("  ds_write_b128 v13, v[48:51]")
        if not n3:
            a("  ds_write_b128 v13, v[52:55] offset:128")
        a("  s_mov_b64 exec, -1")
        a("  s_waitcnt lgkmcnt(0)")
        a("  s_barrier")
        a("  s_waitcnt vmcnt(0)")
        a("  ds_read_b64_tr_b16 v[32:33], v24")
        a("  ds_read_b64_tr_b16 v[34:35], v24 offset:128")
        a("  s_waitcnt lgkmcnt(0)")
        a("  buffer_store_dwordx4 v[32:35], v25, s[8:11], s33 offen")
        a("  s_endpgm")
    helper(True, None)
    a("K1_H2:")
    helper(False, None)
    a("K1_END:")
    a("  s_endpgm")
    return a.lines
```

```python
from asmlib import *
from layout import *
from k1 import srd

NA, NB = 3, 5
L_PA = 0
L_PB = 20480
L_H = 0
HS = 4608 + 64
L_ST = 40960
L_MR = L_ST + 512
L_X = 20480
L_XS = L_X + 9216
L_TOK = L_XS + 256
L_TOP = L_TOK + 256
L_ACT = L_TOP + 256
L_RED = L_ACT + 512
L_G = L_MR + 512
L_U = L_G + 36864 + 128
L_D = L_U + 36864
K2_LDS = L_D + 36864
NF = 144
SPIN = 0x40000

class Wave:
    def __init__(self, a, KM, V, KL, idx):
        self.a, self.KM, self.V, self.KL, self.idx = a, KM, V, KL, idx
    def pv(self, O, buf, u, k):
        v = self.V + 16 * u + 4 * k
        self.a(f"  v_smfmac_f32_32x32x32_bf16 v[{O}:{O + 15}], v[{v}:{v + 3}], v[{buf + 8 * k}:{buf + 8 * k + 7}], v{self.idx} abid:1")
    def qk2(self, buf, u, QL):
        k = self.KL + 2 * u
        self.a(f"  v_mfma_f32_32x32x4_2b_bf16 v[{buf}:{buf + 31}], v[{k}:{k + 1}], v[{QL}:{QL + 1}], 0")
    def qkm(self, buf, u, h, QM):
        k = self.KM + 8 * u + 4 * h
        b = buf + 16 * h
        self.a(f"  v_mfma_f32_32x32x16_bf16 v[{b}:{b + 15}], v[{k}:{k + 3}], v[{QM}:{QM + 3}], v[{b}:{b + 15}]")
    def unit(self, X, Y, O, u, prev=None, nxt=None, hook=None):
        a = self.a
        hook = hook or (lambda p: None)
        E = lambda i0, i1: [a(f"  v_exp_f32 v{X + i}, v{X + i}") for i in range(i0, i1)]
        E(0, 2)
        if prev: self.pv(prev[0], Y, prev[1], 3)
        E(2, 5)
        hook("pre2b")
        if nxt: self.qk2(Y, nxt[0], nxt[2])
        E(5, 13)
        hook("prepv0")
        self.pv(O, X, u, 0)
        E(13, 16)
        hook("mid")
        E(16, 18)
        self.pv(O, X, u, 1)
        E(18, 21)
        hook("preqk")
        if nxt: self.qkm(Y, nxt[0], 0, nxt[1])
        E(21, 24)
        if nxt: self.qkm(Y, nxt[0], 1, nxt[1])
        E(24, 27)
        hook("prepv2")
        self.pv(O, X, u, 2)
        E(27, 30)
        hook("late")
        E(30, 32)

def kv_loads(a, w, nu, skey, vK, vV, vKL):
    a(f"  s_lshl_b32 s20, {skey}, 10")
    a(f"  s_add_u32 s20, s20, {WS_KM}")
    a(f"  s_mul_i32 s21, {skey}, 1280")
    a(f"  s_add_u32 s21, s21, {WS_VT}")
    a(f"  s_lshl_b32 s22, {skey}, 7")
    a(f"  s_add_u32 s22, s22, {WS_KL}")
    for u in range(nu):
        a(f"  buffer_load_dword v{w.KL + 2 * u}, {vKL}, s[8:11], s22 offen offset:{256 * u}")
        for h in range(2):
            r = w.KM + 8 * u + 4 * h
            a(f"  buffer_load_dwordx4 v[{r}:{r + 3}], {vK}, s[8:11], s20 offen offset:{1024 * h}")
        for k in range(4):
            r = w.V + 16 * u + 4 * k
            a(f"  buffer_load_dwordx4 v[{r}:{r + 3}], {vV}, s[8:11], s21 offen offset:{640 * k}")
        if u + 1 < nu:
            a("  s_add_u32 s20, s20, 2048")
            a("  s_add_u32 s21, s21, 2560")

def cleanup(a, regs, K):
    for st, m in enumerate(("row_half_mirror", "quad_perm:[2,3,0,1]", "quad_perm:[1,0,3,2]")):
        for x, t in regs:
            a(f"  v_mov_b32_dpp v{t}, v{x} {m} row_mask:0xf bank_mask:0xf bound_ctrl:1")
        for (x, t), k in zip(regs, K):
            a(f"  v_med3_u32 v{x}, v{x}, v{t}, v{k + st}")

def ffn_tail(a):
    GU, DN = 64, 140
    a("  s_mov_b64 exec, -1")
    a(f"  s_cmp_ge_u32 s2, {NF}")
    a("  s_cbranch_scc1 K2_END")
    a("  v_lshrrev_b32 v1, 4, v0                 ; gb")
    a("  v_and_b32 v2, 15, v0")
    a("  v_bfe_u32 v3, v0, 1, 1                  ; p")
    a("  v_mul_u32_u24 v4, 4608, v1")
    a("  v_lshl_add_u32 v4, v2, 2, v4")
    a("  s_lshl_b32 s24, s3, 6")
    a(f"  s_add_u32 s24, s24, {L_D}")
    a("  v_add_u32 v4, s24, v4")
    for m in range(3):
        for r in range(8):
            a(f"  ds_read_b32 v{DN + 8 * m + r}, v4 offset:{(16 * (r // 4) + r % 4) * 1152 + (512 * m if m < 2 else 1024)}")
        if m < 2: a("  s_waitcnt lgkmcnt(4)")
    a("  v_mul_u32_u24 v5, 0xaaaa, v3")
    a("  v_mul_u32_u24 v6, 0x5555, v3")
    a("  v_lshl_or_b32 v5, v6, 16, v5")
    a("  v_add_u32 v138, 0x88884444, v5")
    a("  v_bfe_i32 v43, v0, 2, 1")
    a("  v_bfe_i32 v44, v0, 1, 1")
    a("  v_bfe_i32 v45, v0, 0, 1")
    a("  v_xor_b32 v44, v44, v43")
    a("  v_xor_b32 v45, v45, v43")
    for i in range(3): a(f"  v_not_b32 v{40 + i}, v{43 + i}")
    for n, bit in enumerate((3, 4, 5)):
        a(f"  v_bfe_i32 v7, v0, {bit}, 1")
        for i in range(3): a(f"  v_xor_b32 v{46 + 3 * n + i}, v7, v{40 + i}")
    a("  s_bfe_i32 s24, s3, 0x10000")
    for i in range(3): a(f"  v_xor_b32 v{55 + i}, s24, v{40 + i}")
    a("  v_and_b32 v7, 3, v43")
    a("  v_xor_b32 v7, v7, v0")
    a("  v_lshlrev_b32 v58, 2, v7                ; octet*32 + e*4")
    a("  v_xor_b32 v59, 28, v58                  ; reversed")
    a("  s_lshl_b32 s68, s3, 10")
    a(f"  s_add_u32 s69, s68, {WS_KEYS}")
    a("  v_and_b32 v7, 7, v0")
    a("  s_lshl_b32 s24, s3, 5")
    a(f"  s_add_u32 s24, s24, {L_TOP}")
    a("  v_lshl_add_u32 v60, v7, 2, s24")
    a("  v_lshlrev_b32 v61, 2, v0")
    a("  v_lshlrev_b32 v62, 4, v0")
    a("  v_lshlrev_b32 v63, 5, v1")
    a("  v_lshl_add_u32 v63, v3, 4, v63          ; 32*ga + 16*p")
    a("  s_cmp_lt_u32 s3, 4")
    a("  s_cbranch_scc1 K2_POLL0")
    a("  v_lshrrev_b32 v5, 1, v1")
    a("  v_lshlrev_b32 v5, 4, v5")
    a("  v_and_b32 v6, 1, v1")
    a("  v_lshl_add_u32 v5, v6, 2, v5")
    a("  v_bfe_u32 v6, v0, 2, 1")
    a("  v_add_u32 v5, v5, v6")
    a("  v_bfe_u32 v6, v0, 3, 1")
    a("  v_lshl_add_u32 v5, v6, 3, v5")
    a("  v_lshlrev_b32 v5, 6, v5")
    a(f"  v_mul_u32_u24 v6, {L_U - L_G}, v3")
    a("  v_add_u32 v5, v5, v6")
    a("  v_and_b32 v6, 1, v0")
    a("  v_lshl_add_u32 v5, v6, 3, v5")
    a("  s_lshl_b32 s24, s6, 4")
    a(f"  s_add_u32 s24, s24, {L_G}")
    a("  v_add_u32 v5, s24, v5")
    for i in range(4):
        a(f"  v_mov_b32 v{8 + i}, 0x3f803f80")
        a(f"  v_mov_b32 v{12 + i}, 0")
        a(f"  v_mov_b32 v{164 + i}, 0")
    a("  s_waitcnt lgkmcnt(0)")
    for st in range(9):
        for hB in range(2):
            for j in range(2):
                r = GU + 8 * st + 4 * hB + 2 * j
                a(f"  ds_read_b64_tr_b16 v[{r}:{r + 1}], v5 offset:{(64 * st + 32 * hB + 2 * j) * 64}")
        if st >= 2:
            a("  s_waitcnt lgkmcnt(8)")
            a(f"  v_smfmac_f32_16x16x64_bf16 v[12:15], v[8:11], v[{GU + 8 * (st - 2)}:{GU + 8 * (st - 2) + 7}], v138")
    for st in (7, 8):
        a(f"  s_waitcnt lgkmcnt({4 * (8 - st)})")
        a(f"  v_smfmac_f32_16x16x64_bf16 v[12:15], v[8:11], v[{GU + 8 * st}:{GU + 8 * st + 7}], v138")
    a("  v_lshrrev_b32 v5, 4, v0")
    a("  v_bfe_u32 v6, v0, 3, 1")
    a("  v_lshl_add_u32 v5, v5, 2, v6")
    a("  v_lshlrev_b32 v168, 4, v5")
    a("  v_lshrrev_b32 v5, 3, v0")
    a("  v_lshlrev_b32 v5, 6, v5")
    a("  v_lshl_add_u32 v5, v7, 1, v5")
    a("  s_lshl_b32 s24, s6, 4")
    a("  v_add_u32 v169, s24, v5")
    a("  v_add_f32 v136, v12, v14")
    a("  v_mov_b32 v137, v136")
    a("  v_mov_b32_dpp v137, v136 row_ror:8 row_mask:0xf bank_mask:0x3")
    a("  v_mov_b32_dpp v136, v136 row_ror:8 row_mask:0xf bank_mask:0xc")
    a("K2_POLL0:")
    for i in range(12): a(f"  v_mov_b32 v{172 + i}, 0")
    a("  s_mov_b32 s70, 0")
    a("  s_waitcnt vmcnt(0) lgkmcnt(0)")
    a("K2_POLL:")
    for m in range(4):
        a(f"  buffer_load_dword v{16 + m}, v{58 + m % 2}, s[8:11], s69 offen offset:{256 * m} sc1")
    a("  s_add_u32 s70, s70, 1")
    a("  s_waitcnt vmcnt(0)")
    a("  v_min3_u32 v20, v16, v17, v18")
    a("  v_max_u32 v16, v16, v17")
    a("  v_min_u32 v20, v20, v19")
    a("  v_max_u32 v18, v18, v19")
    a("  v_cmp_eq_u32 vcc, 0, v20")
    a(f"  s_cmp_lt_u32 s70, {SPIN}")
    a("  s_cselect_b64 vcc, vcc, 0")
    a("  s_cbranch_vccnz K2_POLL")
    cleanup(a, [(16, 17), (18, 19)], [40, 43])
    a("  v_max_u32 v16, v16, v18")
    cleanup(a, [(16, 17)], [46])
    def upper(last):
        a("  v_max_u32_dpp v16, v16, v16 row_ror:8 row_mask:0xf bank_mask:0xf bound_ctrl:1")
        cleanup(a, [(16, 17)], [49])
        a("  v_mov_b32 v17, v16")
        a("  v_permlane16_swap_b32 v16, v17")
        a("  v_max_u32 v16, v16, v17")
        cleanup(a, [(16, 17)], [52])
        a("  v_mov_b32 v17, v16")
        a("  v_permlane32_swap_b32 v16, v17")
        a("  v_max_u32 v16, v16, v17")
        if not last: cleanup(a, [(16, 17)], [55])
    upper(False)
    a("  s_mov_b64 exec, 0xff")
    a("  ds_write_b32 v60, v16")
    a("  s_mov_b64 exec, -1")
    a("  s_waitcnt lgkmcnt(0)")
    a("  s_barrier")
    a(f"  ds_read_b32 v16, v61 offset:{L_TOP}")
    a("  s_waitcnt lgkmcnt(0)")
    upper(True)
    a("  v_mov_b32_dpp v17, v16 quad_perm:[0,1,0,1] row_mask:0xf bank_mask:0x3")
    a("  v_mov_b32_dpp v17, v16 quad_perm:[2,3,2,3] row_mask:0xf bank_mask:0xc")
    a("  v_and_b32 v17, 0x7ff, v17")
    a("  v_sub_u32 v17, 2047, v17")
    a("  s_movk_i32 s24, 1152")
    a("  v_mad_u32_u24 v18, v17, s24, v63")
    a("  s_lshl_b32 s25, s3, 7")
    a("  s_mov_b32 s70, 0")
    a("  s_cmp_ge_u32 s3, 2")
    a("  s_cbranch_scc1 K2_ROW1")
    a("  s_cmp_eq_u32 s3, 1")
    a("  s_cbranch_scc1 K2_ROWS")
    def retry(label, regs):
        a("  s_add_u32 s70, s70, 1")
        a("  s_waitcnt vmcnt(0)")
        a(f"  v_max3_u32 v28, v{regs[0]}, v{regs[1]}, v{regs[2]}")
        for i in range(3, len(regs) - 1, 2): a(f"  v_max3_u32 v28, v28, v{regs[i]}, v{regs[i + 1]}")
        if len(regs) % 2 == 0: a(f"  v_max_u32 v28, v28, v{regs[-1]}")
        a("  v_cmp_eq_u32 vcc, -1, v28")
        a(f"  s_cmp_lt_u32 s70, {SPIN}")
        a("  s_cselect_b64 vcc, vcc, 0")
        a(f"  s_cbranch_vccnz {label}")
    a("K2_ROW2:")
    a("  buffer_load_dwordx4 v[20:23], v18, s[16:19], 0 offen sc1")
    a("  buffer_load_dwordx4 v[24:27], v18, s[16:19], 0 offen offset:1024 sc1")
    retry("K2_ROW2", [20, 23, 24, 27])
    a(f"  ds_write_b128 v62, v[24:27] offset:{L_X + 8192}")
    a("  s_branch K2_ROWD")
    a("K2_ROWS:")
    a("  v_lshlrev_b32 v19, 4, v17")
    a(f"  s_mov_b32 s26, {WS_STAT}")
    a(f"  ds_write_b32 v61, v17 offset:{L_TOK}")
    a("K2_ROWS1:")
    a("  buffer_load_dwordx4 v[20:23], v18, s[16:19], s25 offen sc1")
    a("  buffer_load_dwordx4 v[24:27], v19, s[8:11], s26 offen sc1")
    retry("K2_ROWS1", [20, 23, 24, 27])
    a("  s_mov_b64 exec, 0xffff")
    a(f"  ds_write_b128 v62, v[24:27] offset:{L_XS}")
    a("  s_mov_b64 exec, -1")
    a("  s_branch K2_ROWD")
    a("K2_ROW1:")
    a("  buffer_load_dwordx4 v[20:23], v18, s[16:19], s25 offen sc1")
    retry("K2_ROW1", [20, 21, 23])
    a("K2_ROWD:")
    a("  v_add_u32 v19, s68, v62")
    a(f"  ds_write_b128 v19, v[20:23] offset:{L_X}")
    a("  v_bfe_u32 v5, v0, 2, 2")
    a("  v_and_b32 v6, 1, v0")
    a("  v_lshl_add_u32 v5, v5, 1, v6")
    a("  v_lshlrev_b32 v5, 6, v5")
    a("  v_lshl_add_u32 v5, v1, 4, v5")
    a("  s_waitcnt lgkmcnt(0)")
    a("  s_barrier")
    a("  s_cmp_lt_u32 s3, 4")
    a("  s_cbranch_scc1 K2_DOWN")
    for st in range(9):
        a(f"  ds_read_b128 v[{184 + 4 * st}:{187 + 4 * st}], v62 offset:{L_X + 1024 * st}")
    a(f"  ds_read_b128 v[8:11], v168 offset:{L_XS}")
    for st in range(9):
        a(f"  s_waitcnt lgkmcnt({9 - st})")
        a(f"  v_smfmac_f32_16x16x64_bf16 v[164:167], v[{184 + 4 * st}:{187 + 4 * st}], v[{GU + 8 * st}:{GU + 8 * st + 7}], v138")
    a("  s_waitcnt lgkmcnt(0)")
    a("  v_mul_f32 v11, v11, v9                  ; c * sigmoid(r)")
    a("  v_mul_f32 v136, v136, v8")
    a("  v_mul_f32 v137, v137, v8")
    a("  v_pk_add_f32 v[164:165], v[164:165], v[166:167]")
    a("  v_mov_b32 v12, v164")
    a("  v_mov_b32_dpp v12, v165 row_ror:8 row_mask:0xf bank_mask:0xc")
    a("  v_mov_b32_dpp v165, v164 row_ror:8 row_mask:0xf bank_mask:0x3")
    a("  v_sub_f32 v12, v12, v136")
    a("  v_mul_f32 v12, v12, v9                  ; g")
    a(f"  v_mul_f32 v13, {f32(-math.log2(math.e))}, v12")
    a("  v_exp_f32 v13, v13")
    a("  v_sub_f32 v165, v165, v137")
    a("  v_add_f32 v13, 1.0, v13")
    a("  v_rcp_f32 v13, v13")
    a("  v_mul_f32 v165, v165, v11               ; u * sigmoid(r)")
    a("  v_mul_f32 v12, v12, v13                 ; silu(g)")
    a("  v_mul_f32 v12, v12, v165")
    a("  v_cvt_pk_bf16_f32 v12, v12, v12")
    a(f"  ds_write_b16 v169, v12 offset:{L_ACT}")
    a("K2_DOWN:")
    a("  s_mul_i32 s26, s56, 18432")
    a("  s_add_u32 s26, s26, s68")
    a(f"  s_add_u32 s26, s26, {WS_PART}")
    a("  s_add_u32 s27, s26, 8192")
    a("  s_add_u32 s71, s26, 16384")
    a("  s_waitcnt lgkmcnt(0)")
    a("  s_barrier")
    a(f"  ds_read_b128 v[8:11], v5 offset:{L_ACT}")
    a("  s_cmp_ge_u32 s3, 2")
    a("  s_waitcnt lgkmcnt(0)")
    a(f"  v_smfmac_f32_16x16x64_bf16 v[172:175], v[8:11], v[{DN}:{DN + 7}], v138 abid:1")
    a(f"  v_smfmac_f32_16x16x64_bf16 v[176:179], v[8:11], v[{DN + 8}:{DN + 15}], v138 abid:1")
    a("  s_cbranch_scc1 K2_D2")
    a(f"  v_smfmac_f32_16x16x64_bf16 v[180:183], v[8:11], v[{DN + 16}:{DN + 23}], v138 abid:1")
    a("  buffer_store_dwordx4 v[180:183], v62, s[8:11], s71 offen sc1")
    a("K2_D2:")
    a("  s_nop 5")
    a("  buffer_store_dwordx4 v[172:175], v62, s[8:11], s26 offen sc1")
    a("  buffer_store_dwordx4 v[176:179], v62, s[8:11], s27 offen sc1")
    a("  v_lshrrev_b32 v5, 3, v0")
    a("  v_mul_u32_u24 v5, 18432, v5")
    a("  v_lshl_add_u32 v5, v7, 4, v5")
    a("  s_mul_i32 s26, s3, 147456")
    a("  s_lshl_b32 s27, s56, 7")
    a("  s_add_u32 s26, s26, s27")
    a(f"  s_add_u32 s26, s26, {WS_PART}")
    a(f"  s_add_u32 s27, s26, {8 * 147456}")
    a(f"  s_add_u32 s71, s26, {16 * 147456}")
    a("  s_cmp_ge_u32 s3, 2")
    a("  s_cselect_b32 s71, 0x10000000, s71")
    a("  v_lshrrev_b32 v6, 5, v0")
    a("  v_lshlrev_b32 v6, 9, v6")
    a("  v_lshl_add_u32 v6, v7, 6, v6")
    a("  v_bfe_u32 v12, v0, 4, 1")
    a("  v_lshl_add_u32 v6, v12, 5, v6")
    a("  s_lshl_b32 s24, s3, 2")
    a("  v_add_u32 v6, s24, v6")
    a("  s_bfe_u32 s24, s56, 0x20001             ; rg")
    a("  s_lshl_b32 s24, s24, 2")
    a("  v_bfe_u32 v12, v0, 3, 1")
    a("  v_add_u32 v12, s24, v12")
    a("  v_lshlrev_b32 v13, 2, v12")
    a(f"  ds_read_b32 v14, v13 offset:{L_TOK}")
    a("  v_bfe_u32 v13, v0, 2, 1")
    a("  v_lshl_add_u32 v12, v13, 1, v12")
    a("  v_lshlrev_b32 v12, 4, v12")
    a("  v_and_b32 v13, 3, v0")
    a("  v_lshl_add_u32 v12, v13, 2, v12")
    a("  s_lshr_b32 s24, s56, 3")
    a("  s_lshl_b32 s24, s24, 1")
    a("  s_and_b32 s25, s56, 1")
    a("  s_add_u32 s24, s24, s25                 ; k/16")
    a("  s_lshl_b32 s25, s24, 8")
    a("  v_add_u32 v12, s25, v12")
    a(f"  ds_read_b32 v15, v12 offset:{L_X}")
    a("  s_lshl_b32 s72, s24, 5")
    a("  v_lshlrev_b32 v13, 6, v0")
    a("  s_movk_i32 s24, 1152")
    a("  s_waitcnt lgkmcnt(0)")
    a("  v_mul_u32_u24 v14, s24, v14")
    a("  v_lshl_add_u32 v14, v7, 2, v14")
    a("  v_lshlrev_b32 v30, 16, v15")
    a("  v_and_b32 v31, 0xffff0000, v15")
    a("  s_mov_b32 s70, 0")
    a("  s_waitcnt vmcnt(0)")
    a("K2_RED:")
    a("  buffer_load_dwordx4 v[16:19], v5, s[8:11], s26 offen sc1")
    a("  buffer_load_dwordx4 v[20:23], v5, s[8:11], s27 offen sc1")
    a("  buffer_load_dwordx4 v[24:27], v5, s[8:11], s71 offen sc1")
    retry("K2_RED", [16, 19, 20, 23, 24, 27])
    a("  v_pk_add_f32 v[16:17], v[16:17], v[20:21]")
    a("  v_pk_add_f32 v[18:19], v[18:19], v[22:23]")
    a("  v_pk_add_f32 v[16:17], v[16:17], v[24:25]")
    a("  v_pk_add_f32 v[18:19], v[18:19], v[26:27]")
    a("  v_permlane32_swap_b32 v16, v17")
    a("  v_permlane32_swap_b32 v18, v19")
    a("  v_add_f32 v16, v16, v17")
    a("  v_add_f32 v18, v18, v19")
    a("  v_permlane16_swap_b32 v16, v18")
    a("  v_add_f32 v16, v16, v18")
    a("  v_add_f32_dpp v16, v16, v16 row_ror:8 row_mask:0xf bank_mask:0xf bound_ctrl:1")
    a("  s_mov_b32 exec_lo, 0x00ff00ff")
    a("  s_mov_b32 exec_hi, 0x00ff00ff")
    a(f"  ds_write_b32 v6, v16 offset:{L_RED}")
    a("  s_waitcnt lgkmcnt(0)")
    a("  s_barrier")
    a("  s_cmp_lg_u32 s3, 0")
    a("  s_cbranch_scc1 K2_END")
    a("  s_mov_b64 exec, 0xffff")
    for i in range(4):
        a(f"  ds_read_b128 v[{32 + 4 * i}:{35 + 4 * i}], v13 offset:{L_RED + 16 * i}")
    a("  s_waitcnt lgkmcnt(2)")
    a("  v_pk_add_f32 v[32:33], v[32:33], v[34:35]")
    a("  v_pk_add_f32 v[36:37], v[36:37], v[38:39]")
    a("  v_pk_add_f32 v[32:33], v[32:33], v[36:37]")
    a("  s_waitcnt lgkmcnt(0)")
    a("  v_pk_add_f32 v[40:41], v[40:41], v[42:43]")
    a("  v_pk_add_f32 v[44:45], v[44:45], v[46:47]")
    a("  v_add_f32 v32, v32, v33")
    a("  v_pk_add_f32 v[40:41], v[40:41], v[44:45]")
    a("  v_add_f32 v30, v30, v32")
    a("  v_add_f32 v40, v40, v41")
    a("  v_add_f32 v31, v31, v40")
    a("  v_cvt_pk_bf16_f32 v30, v30, v31")
    a("  buffer_store_dword v30, v14, s[16:19], s72 offen sc1")

def gen_k2():
    a = Asm()
    a("k2_kernel:")
    a("  s_cmp_ge_u32 s2, 256")
    a("  s_cbranch_scc1 K2_END")
    a("  s_load_dwordx2 s[46:47], s[0:1], 96     ; ws")
    a("  s_load_dwordx2 s[36:37], s[0:1], 0      ; x")
    a("  s_load_dwordx8 s[48:55], s[0:1], 48")
    a("  s_load_dwordx2 s[38:39], s[0:1], 80     ; out")
    a("  v_lshrrev_b32 v1, 6, v0")
    a("  v_and_b32 v0, 63, v0                    ; lane")
    a("  v_readfirstlane_b32 s3, v1              ; wave")
    a("  s_and_b32 s4, s2, 7")
    a("  s_lshl_b32 s4, s4, 5")
    a("  s_lshr_b32 s5, s2, 3")
    a("  s_add_u32 s4, s4, s5                    ; W: tokens 8W..8W+7")
    a("  s_mul_i32 s5, s4, 9216")
    a("  s_and_b32 s6, s3, 3")
    a("  s_mul_i32 s7, s6, 2560")
    a("  s_lshr_b32 s56, s2, 4")
    a("  s_lshl_b32 s56, s56, 4")
    a("  s_and_b32 s57, s2, 7")
    a("  s_lshl_b32 s57, s57, 1")
    a("  s_add_u32 s56, s56, s57")
    a("  s_bfe_u32 s57, s2, 0x10003")
    a("  s_add_u32 s56, s56, s57")
    a("  v_lshrrev_b32 v1, 5, v0                 ; hi")
    a("  v_and_b32 v2, 31, v0")
    a("  v_lshlrev_b32 v3, 5, v2")
    a("  v_lshl_add_u32 v3, v1, 4, v3")
    a("  v_min_u32 v4, 18, v2")
    a("  v_cmp_eq_u32 vcc, 17, v2")
    a("  v_cndmask_b32 v4, v4, 18, vcc")
    a("  v_cmp_eq_u32 vcc, 20, v2")
    a("  v_cndmask_b32 v4, v4, 17, vcc")
    a("  v_lshlrev_b32 v4, 5, v4")
    a("  v_lshl_add_u32 v4, v1, 4, v4            ; vV")
    a("  v_lshlrev_b32 v5, 2, v0                 ; vKL")
    a("  v_bfe_u32 v6, v0, 2, 2")
    a("  v_and_b32 v7, 1, v0")
    a("  v_lshl_add_u32 v6, v6, 1, v7            ; t")
    a("  v_mul_u32_u24 v6, 144, v6")
    a("  v_bfe_u32 v7, v0, 4, 1")
    a("  v_bfe_u32 v8, v0, 1, 1                  ; p")
    a("  v_lshl_add_u32 v7, v7, 1, v8")
    a("  v_mad_u32_u24 v6, v7, 36, v6")
    a("  v_lshl_add_u32 v7, v1, 4, v6            ; vQ")
    a("  v_mul_u32_u24 v8, 0xaaaa, v8")
    a("  v_add_u32 v8, 0xdddd4444, v8")
    a("  v_lshlrev_b32 v9, 4, v0                 ; lane*16")
    a("  v_lshlrev_b32 v10, 3, v0                ; lane*8")
    a("  s_cmp_ge_u32 s3, 4")
    a("  s_cbranch_scc1 K2_B")

    KM, V, KL = 112, 136, 184
    IDX, L16, L8, Z = 185, 187, 189, 196
    W16, W8, VQ, VQL = 197, 244, 245, 246
    QM, QL = (190, 248), (194, 252)
    ACC, AF, LF, PEND, CHK = 198, 234, 238, 242, 243
    O = 64
    w = Wave(a, KM, V, KL, IDX)
    a(f"  v_mov_b32 v{IDX}, v8")
    a(f"  v_mov_b32 v{L16}, v9")
    a(f"  v_mov_b32 v{L8}, v10")
    a(f"  v_add_u32 v{W16}, s7, v9")
    a(f"  v_add_u32 v{W8}, s7, v10")
    a(f"  v_mov_b32 v{VQ}, v7")
    a(f"  v_mov_b32 v{VQL}, v6")
    a(f"  v_mov_b32 v{Z}, 0")
    a(f"  v_mov_b32 v{QL[0] + 1}, 0")
    a(f"  v_mov_b32 v{QL[1] + 1}, 0")
    a(f"  v_mov_b32 v{CHK}, 0")
    a("  s_lshl_b32 s23, s6, 4")
    a("  s_waitcnt lgkmcnt(0)")
    srd(a, 8, 46, 47, WS_END)
    vm = []
    def vload(tag, text):
        a(text); vm.append(tag)
    def vwait(tag):
        last = max((i for i, t in enumerate(vm) if t == tag), default=None)
        if last is None: return
        n = len(vm) - 1 - last
        a(f"  s_waitcnt vmcnt({n})")
        del vm[:last + 1]
    def qload(p, VQ, VQL, QM, QL):
        a(f"  s_add_u32 s24, s5, {1152 * p}")
        vload(("q", p), f"  buffer_load_dword v{QL[p % 2]}, v{VQL}, s[8:11], s24 offen offset:32")
        vload(("q", p), f"  buffer_load_dwordx4 v[{QM[p % 2]}:{QM[p % 2] + 3}], v{VQ}, s[8:11], s24 offen")
    def kvtags(nu):
        for u in range(nu):
            vm.extend([("k", u)] * 3 + [("v", u, k) for k in range(4)])
    qload(0, VQ, VQL, QM, QL)
    kv_loads(a, w, NA, "s23", "v3", "v4", "v5"); kvtags(NA)
    qload(1, VQ, VQL, QM, QL)
    a("  s_barrier")
    srd(a, 12, 36, 37, 2359296)
    srd(a, 16, 38, 39, 2359296)
    srd(a, 28, 48, 49, 1152)
    a("  v_lshrrev_b32 v11, 4, v0")
    a("  v_mul_u32_u24 v11, 2304, v11")
    a("  v_and_b32 v12, 15, v0")
    a("  v_lshlrev_b32 v247, 1, v12")
    a("  v_add_u32 v254, v247, v11")
    a("  s_mul_i32 s25, s6, 288")
    a("  s_add_u32 s26, s25, s5")
    a("  s_mul_i32 s27, s6, 18432")
    a(f"  s_add_u32 s27, s27, {WS_WOL}")
    for i in range(36):
        a(f"  v_mov_b32 v{ACC + i}, 0")
    srd(a, 32, 50, 51, 5308416)
    srd(a, 40, 52, 53, 5308416)
    srd(a, 60, 54, 55, 5308416)
    a(f"  s_cmp_lt_u32 s2, {NF}")
    a("  s_cselect_b32 s34, s34, 0")
    a("  s_cselect_b32 s42, s42, 0")
    a("  s_cselect_b32 s62, s62, 0")
    a("  s_mul_i32 s64, s56, 18432")
    a("  s_mul_i32 s24, s6, 4608")
    a("  s_add_u32 s64, s64, s24")
    a(f"  s_add_u32 s64, s64, {WS_PART}")
    a(f"  s_cmp_lt_u32 s2, {NF}")
    a("  s_cselect_b32 s64, s64, 0x10000000")
    a("  s_mul_i32 s65, s6, 147456")
    a("  s_lshl_b32 s24, s56, 6")
    a("  s_add_u32 s65, s65, s24")
    a("  s_mul_i32 s66, s56, 36864")
    a("  s_lshl_b32 s67, s6, 10")
    a("  s_add_u32 s66, s66, s67")
    a("  v_lshrrev_b32 v11, 2, v0")
    a("  v_mul_u32_u24 v11, 9216, v11")
    a("  v_and_b32 v12, 3, v0")
    a("  v_lshl_add_u32 v255, v12, 4, v11")
    dma_next = [0]
    def dma(n):
        for i in range(dma_next[0], min(27, dma_next[0] + n)):
            m, k = i % 3, i // 3
            a(f"  s_add_u32 m0, s67, {(L_G, L_U, L_D)[m] + 4096 * k}")
            if m < 2:
                a(f"  s_add_u32 s24, s65, {589824 * k}")
                vload("dma", f"  buffer_load_dwordx4 v255, s[{(32, 40)[m]}:{(35, 43)[m]}], s24 offen lds")
            else:
                a(f"  s_add_u32 s24, s66, {4096 * k}")
                vload("dma", f"  buffer_load_dwordx4 v{L16}, s[60:63], s24 offen lds")
        dma_next[0] += n
    def clears():
        for i in range(4): a(f"  v_mov_b32 v{i}, -1")
        a("  s_mul_i32 s24, s6, 2304")
        a("  s_add_u32 s24, s24, s5")
        for i in range(2):
            vload("clr", f"  buffer_store_dwordx4 v[0:3], v{L16}, s[16:19], s24 offen offset:{1024 * i} sc1")
        for i in range(4):
            vload("clr", f"  buffer_store_dwordx4 v[0:3], v{L16}, s[8:11], s64 offen offset:{1024 * i} sc1")
        a("  s_add_u32 s64, s64, 4096")
        a("  s_mov_b32 exec_hi, 0")
        vload("clr", f"  buffer_store_dwordx4 v[0:3], v{L16}, s[8:11], s64 offen sc1")
        a("  s_mov_b32 exec_lo, 0xffff")
        vload("clr", f"  buffer_store_dwordx4 v[0:3], v{L16}, s[16:19], s24 offen offset:2048 sc1")
        a("  s_lshl_b32 s24, s4, 2")
        a("  s_add_u32 s24, s24, s6")
        a("  s_lshl_b32 s24, s24, 5")
        a(f"  s_add_u32 s24, s24, {WS_STAT}")
        a("  s_mov_b32 exec_lo, 3")
        vload("clr", f"  buffer_store_dwordx4 v[0:3], v{L16}, s[8:11], s24 offen sc1")
        a("  s_mov_b64 exec, -1")

    def wo_reg(step, j):
        if step == 8: return 112 + 8 * j
        return 80 + 8 * j if j < 4 else 8 * (j - 4)
    def wo_load(step, j):
        r = wo_reg(step, j)
        a(f"  s_add_u32 s24, s27, {step * 73728 + j * 2048}")
        vload(("wo", step, j), f"  buffer_load_dwordx4 v[{r}:{r + 3}], v{L16}, s[8:11], s24 offen")
        vload(("wo", step, j), f"  buffer_load_dwordx4 v[{r + 4}:{r + 7}], v{L16}, s[8:11], s24 offen offset:1024")

    def P(q):
        qm, ql = QM[q % 2], QL[q % 2]
        vwait(("q", q)); vwait(("k", 0))
        w.qk2(0, 0, ql)
        a(f"  v_mfma_f32_32x32x8_bf16 v[{O}:{O + 15}], v[{ql}:{ql + 1}], v[{Z}:{Z + 1}], 0   ; O = 0")
        w.qkm(0, 0, 0, qm)
        w.qkm(0, 0, 1, qm)
        for u in range(NA):
            def hook(pos, u=u):
                if pos == "pre2b" and u + 1 < NA: vwait(("k", u + 1))
                if pos == "prepv0": vwait(("v", u, 1))
                if pos == "prepv2": vwait(("v", u, 3))
                if pos == "late" and u == NA - 2 and q + 2 < 8: qload(q + 2, VQ, VQL, QM, QL)
            w.unit(32 * (u % 2), 32 * ((u + 1) % 2), O, u, prev=(O, u - 1) if u else None,
                   nxt=(u + 1, qm, ql) if u + 1 < NA else None, hook=hook)
        w.pv(O, 32 * ((NA - 1) % 2), NA - 1, 3)
    def flushA(q):
        b = L_PA + (q % 2) * 10240
        a(f"  ds_write_b128 v{W16}, v[{O}:{O + 3}] offset:{b}")
        a(f"  ds_write_b128 v{W16}, v[{O + 4}:{O + 7}] offset:{b + 1024}")
        a(f"  ds_write_b64 v{W8}, v[{O + 8}:{O + 9}] offset:{b + 2048}")
    def R(p):
        b = L_PB + (p % 2) * 10240
        for s in range(4):
            t = 40 + 10 * s
            a(f"  ds_read_b64 v[{t + 8}:{t + 9}], v{L8} offset:{b + 2560 * s + 2048}")
        for s in range(4):
            t = 40 + 10 * s
            a(f"  ds_read_b128 v[{t}:{t + 3}], v{L16} offset:{b + 2560 * s}")
        for s in range(4):
            t = 40 + 10 * s
            a(f"  ds_read_b128 v[{t + 4}:{t + 7}], v{L16} offset:{b + 2560 * s + 1024}")
        def add3(i):
            a(f"  v_pk_add_f32 v[{40 + i}:{41 + i}], v[{40 + i}:{41 + i}], v[{50 + i}:{51 + i}]")
            a(f"  v_pk_add_f32 v[{60 + i}:{61 + i}], v[{60 + i}:{61 + i}], v[{70 + i}:{71 + i}]")
            a(f"  v_pk_add_f32 v[{40 + i}:{41 + i}], v[{40 + i}:{41 + i}], v[{60 + i}:{61 + i}]")
        a("  s_waitcnt lgkmcnt(8)")
        add3(8)
        a("  v_rcp_f32 v58, v49")
        a("  s_waitcnt lgkmcnt(4)")
        add3(0); add3(2)
        a(f"  v_max3_u32 v{CHK}, v{CHK}, v49, v58")
        a("  v_pk_mul_f32 v[40:41], v[40:41], v[58:59] op_sel_hi:[1,0]")
        a("  v_pk_mul_f32 v[42:43], v[42:43], v[58:59] op_sel_hi:[1,0]")
        a(f"  v_cvt_pk_bf16_f32 v{AF}, v40, v41")
        a(f"  v_cvt_pk_bf16_f32 v{AF + 1}, v42, v43")
        a("  s_waitcnt lgkmcnt(0)")
        add3(4); add3(6)
        a("  v_pk_mul_f32 v[44:45], v[44:45], v[58:59] op_sel_hi:[1,0]")
        a("  v_pk_mul_f32 v[46:47], v[46:47], v[58:59] op_sel_hi:[1,0]")
        a(f"  v_cvt_pk_bf16_f32 v{AF + 2}, v44, v45")
        a(f"  v_cvt_pk_bf16_f32 v{AF + 3}, v46, v47")
        if p % 2 == 0:
            a(f"  v_mul_f32 v{PEND}, v48, v58")
        else:
            a("  v_mul_f32 v48, v48, v58")
            a(f"  v_cvt_pk_bf16_f32 v{LF + p // 2}, v{PEND}, v48")
    def OP(step, reload_ring):
        f = AF if step < 8 else LF
        for j in range(9):
            vwait(("wo", step, j))
            r = wo_reg(step, j)
            a(f"  v_smfmac_f32_16x16x64_bf16 v[{ACC + 4 * j}:{ACC + 4 * j + 3}], v[{f}:{f + 3}], v[{r}:{r + 7}], v{IDX}")
            if reload_ring(j): wo_load(step + 1, j)
    def bar():
        a("  s_waitcnt lgkmcnt(0)")
        a("  s_barrier")

    P(0); flushA(0); bar()
    P(1); flushA(1)
    for j in range(9):
        vload("x", f"  buffer_load_short_d16_hi v{ACC + 4 * j}, v254, s[12:15], s26 offen offset:{32 * j}")
        vload("x", f"  buffer_load_short_d16_hi v{ACC + 4 * j + 1}, v254, s[12:15], s26 offen offset:{32 * j + 1152}")
    for j in range(4): wo_load(0, j)
    clears()
    bar()
    P(2)
    for j in range(4, 9): wo_load(0, j)
    flushA(2); dma(4); bar()
    WR = [184, 186, 188, 190, 191, 192, 193, 194, 195]
    for p in range(7):
        R(p)
        if p == 0: vwait("x")
        if p + 3 < 8:
            OP(p, lambda j: j < 4)
            P(p + 3)
            for j in range(4, 9): wo_load(p + 1, j)
            flushA(p + 3)
            dma(5)
        else:
            OP(p, lambda j: True)
            if p == 5:
                for j in range(9): wo_load(8, j)
                for j in range(9): a(f"  v_mov_b32 v{WR[j]}, 0")
                for j in range(9):
                    vload("wr", f"  buffer_load_short_d16_hi v{WR[j]}, v247, s[28:31], s25 offen offset:{32 * j}")
            if p == 6:
                vwait("dma"); vwait("wr")
                a(f"  v_add_f32 v251, v{WR[0]}, v{WR[1]}")
                for j in range(2, 9): a(f"  v_add_f32 v251, v251, v{WR[j]}")
                for m in ("row_ror:8", "row_ror:4", "row_ror:2", "row_ror:1"):
                    a(f"  v_add_f32_dpp v251, v251, v251 {m} row_mask:0xf bank_mask:0xf")
                a(f"  v_lshrrev_b32 v252, 7, v{L16}")
                a("  v_lshlrev_b32 v252, 4, v252")
                a("  s_lshl_b32 s24, s6, 7")
                a(f"  s_add_u32 s24, s24, {L_ST}")
                a("  v_add_u32 v252, s24, v252")
                a(f"  v_lshrrev_b32 v253, 8, v{L16}")
                a(f"  v_mul_u32_u24 v253, {HS}, v253")
                a("  v_lshl_add_u32 v253, v247, 2, v253")
                a("  s_mul_i32 s24, s6, 1152")
                a("  v_add_u32 v253, s24, v253")
        bar()
    R(7)
    OP(7, lambda j: False)
    OP(8, lambda j: False)
    for j in range(9):
        r = ACC + 4 * j
        a(f"  v_pk_add_f32 v[{r}:{r + 1}], v[{r}:{r + 1}], v[{r + 2}:{r + 3}]")
        wr = WR[j]
        sel = f"op_sel:[0,{wr % 2},0] op_sel_hi:[1,{wr % 2},1]"
        wp = f"v[{wr - wr % 2}:{wr - wr % 2 + 1}]"
        if j == 0:
            a(f"  v_pk_mul_f32 v[2:3], v[{r}:{r + 1}], v[{r}:{r + 1}]")
            a(f"  v_pk_mul_f32 v[4:5], v[{r}:{r + 1}], {wp} op_sel_hi:[1,0]")
        else:
            if j == 1: a(f"  v_pk_add_f32 v[0:1], v[{ACC}:{ACC + 1}], v[{r}:{r + 1}]")
            else: a(f"  v_pk_add_f32 v[0:1], v[0:1], v[{r}:{r + 1}]")
            a(f"  v_pk_fma_f32 v[2:3], v[{r}:{r + 1}], v[{r}:{r + 1}], v[2:3]")
            a(f"  v_pk_fma_f32 v[4:5], v[{r}:{r + 1}], {wp}, v[4:5] {sel}")
    for i in range(3):
        a(f"  v_add_f32_dpp v{248 + i}, v{2 * i}, v{2 * i} row_ror:8 row_mask:0xf bank_mask:0x3")
    for i in range(3):
        a(f"  v_add_f32_dpp v{248 + i}, v{2 * i + 1}, v{2 * i + 1} row_ror:8 row_mask:0xf bank_mask:0xc")
    for m in ("row_half_mirror", "quad_perm:[2,3,0,1]", "quad_perm:[1,0,3,2]"):
        for i in range(3):
            a(f"  v_add_f32_dpp v{248 + i}, v{248 + i}, v{248 + i} {m} row_mask:0xf bank_mask:0xf")
    a("  s_mov_b32 exec_lo, 0x01010101")
    a("  s_mov_b32 exec_hi, 0x01010101")
    a("  ds_write_b128 v252, v[248:251]")
    a("  s_mov_b64 exec, -1")
    bar()
    for j in range(9):
        a(f"  ds_write_b64 v253, v[{ACC + 4 * j}:{ACC + 4 * j + 1}] offset:{L_H + 128 * j}")
    a(f"  v_lshrrev_b32 v0, 4, v{L16}")
    a("  s_branch K2_T2")

    a("K2_B:")
    KM, V, KL = 96, 136, 216
    IDX, W16, W8, VQ, VQL = 217, 219, 221, 223, 225
    QM, QL = (226, 230), (234, 236)
    OB = (64, 80)
    w = Wave(a, KM, V, KL, IDX)
    vm.clear()
    a(f"  v_mov_b32 v{IDX}, v8")
    a(f"  v_add_u32 v{W16}, s7, v9")
    a(f"  v_add_u32 v{W8}, s7, v10")
    a(f"  v_mov_b32 v{VQ}, v7")
    a(f"  v_mov_b32 v{VQL}, v6")
    a(f"  v_mov_b32 v{QL[0] + 1}, 0")
    a(f"  v_mov_b32 v{QL[1] + 1}, 0")
    a("  v_mov_b32 v238, v0")
    a("  s_lshl_b32 s23, s6, 4")
    a(f"  s_add_u32 s23, s23, {2 * NA}")
    a("  s_waitcnt lgkmcnt(0)")
    srd(a, 8, 46, 47, WS_END)
    srd(a, 16, 38, 39, 2359296)
    a("  s_barrier")
    qload(0, VQ, VQL, QM, QL)
    kv_loads(a, w, NB, "s23", "v3", "v4", "v5"); kvtags(NB)
    def init(p):
        b = L_PA + (p % 2) * 10240; o = OB[p % 2]
        a(f"  ds_read_b128 v[{o}:{o + 3}], v{W16} offset:{b}")
        a(f"  ds_read_b128 v[{o + 4}:{o + 7}], v{W16} offset:{b + 1024}")
        a(f"  ds_read_b64 v[{o + 8}:{o + 9}], v{W8} offset:{b + 2048}")
    def flushB(p):
        b = L_PB + (p % 2) * 10240; o = OB[p % 2]
        a(f"  ds_write_b128 v{W16}, v[{o}:{o + 3}] offset:{b}")
        a(f"  ds_write_b128 v{W16}, v[{o + 4}:{o + 7}] offset:{b + 1024}")
        a(f"  ds_write_b64 v{W8}, v[{o + 8}:{o + 9}] offset:{b + 2048}")
    vwait(("k", 0))
    w.qk2(0, 0, QL[0])
    w.qkm(0, 0, 0, QM[0])
    w.qkm(0, 0, 1, QM[0])
    a("  s_barrier")
    init(0)
    for p in range(8):
        for u in range(NB):
            n = NB * p + u
            last = (p == 7 and u == NB - 1)
            def hook(pos, p=p, u=u):
                if pos == "pre2b":
                    if u + 1 < NB: vwait(("k", u + 1))
                    elif p < 7: vwait(("q", p + 1))
                if pos == "prepv0":
                    vwait(("v", u, 1))
                    if u == 0 and p == 0: a("  s_waitcnt lgkmcnt(0)")
                if pos == "prepv2": vwait(("v", u, 3))
                if pos == "mid" and u == 0 and p > 0: flushB(p - 1)
                if pos == "late" and u == 0:
                    bar()
                    if p < 7:
                        init(p + 1)
                        qload(p + 1, VQ, VQL, QM, QL)
                if pos == "late" and u == 2 and p < 7: a("  s_waitcnt lgkmcnt(0)")
            prev = None if n == 0 else ((OB[p % 2], u - 1) if u else (OB[(p - 1) % 2], NB - 1))
            nxt = None if last else ((u + 1, QM[p % 2], QL[p % 2]) if u + 1 < NB else (0, QM[(p + 1) % 2], QL[(p + 1) % 2]))
            w.unit(32 * (n % 2), 32 * ((n + 1) % 2), OB[p % 2], u, prev=prev, nxt=nxt, hook=hook)
    w.pv(OB[1], 32 * ((8 * NB - 1) % 2), NB - 1, 3)
    flushB(7)
    bar()
    a("  v_mov_b32 v0, v238")
    a("  v_lshrrev_b32 v1, 3, v0                 ; t")
    a("  v_and_b32 v2, 7, v0                     ; j")
    a(f"  v_lshlrev_b32 v3, 4, v1")
    a(f"  v_lshlrev_b32 v4, 4, v2")
    a("  s_lshl_b32 s24, s4, 3")
    a("  s_sub_u32 s24, 2047, s24")
    a("  v_sub_u32 v5, s24, v1                   ; 2047 - token t")
    a("  v_sub_u32 v6, s24, v2                   ; 2047 - token j")
    a("  v_lshlrev_b32 v7, 3, v1                 ; 8t")
    a("  s_movk_i32 s25, 0x7ff")
    a("  s_brev_b32 s26, 1")
    a("  s_lshl_b32 s27, s4, 5")
    a(f"  s_add_u32 s27, s27, {WS_KEYS}")
    a("  s_barrier                               ; T1")
    a("  s_cmp_lg_u32 s3, 4")
    a("  s_cbranch_scc1 K2_T2")
    for s in range(4):
        a(f"  ds_read_b128 v[{16 + 4 * s}:{19 + 4 * s}], v3 offset:{L_ST + 128 * s}")
        a(f"  ds_read_b128 v[{32 + 4 * s}:{35 + 4 * s}], v4 offset:{L_ST + 128 * s}")
    def both(f):
        f(16); f(32)
    a("  s_waitcnt lgkmcnt(4)")
    both(lambda b: (a(f"  v_pk_add_f32 v[{b}:{b + 1}], v[{b}:{b + 1}], v[{b + 4}:{b + 5}]"),
                    a(f"  v_pk_add_f32 v[{b + 2}:{b + 3}], v[{b + 2}:{b + 3}], v[{b + 6}:{b + 7}]")))
    a("  s_waitcnt lgkmcnt(0)")
    both(lambda b: (a(f"  v_pk_add_f32 v[{b + 8}:{b + 9}], v[{b + 8}:{b + 9}], v[{b + 12}:{b + 13}]"),
                    a(f"  v_pk_add_f32 v[{b + 10}:{b + 11}], v[{b + 10}:{b + 11}], v[{b + 14}:{b + 15}]")))
    both(lambda b: (a(f"  v_pk_add_f32 v[{b}:{b + 1}], v[{b}:{b + 1}], v[{b + 8}:{b + 9}]"),
                    a(f"  v_pk_add_f32 v[{b + 2}:{b + 3}], v[{b + 2}:{b + 3}], v[{b + 10}:{b + 11}]")))
    both(lambda b: a(f"  v_mul_f32 v{b}, {f32(1.0 / 576)}, v{b}            ; mean"))
    both(lambda b: a(f"  v_mul_f32 v{b + 1}, {f32(1.0 / 576)}, v{b + 1}"))
    both(lambda b: a(f"  v_fma_f32 v{b + 1}, -v{b}, v{b}, v{b + 1}          ; var"))
    both(lambda b: a(f"  v_max_f32 v{b + 1}, 0, v{b + 1}"))
    both(lambda b: a(f"  v_add_f32 v{b + 1}, {f32(1e-5)}, v{b + 1}"))
    both(lambda b: a(f"  v_rsq_f32 v{b + 1}, v{b + 1}                 ; rstd"))
    both(lambda b: a(f"  v_fma_f32 v{b + 2}, -v{b}, v{b + 3}, v{b + 2}"))
    both(lambda b: a(f"  v_mul_f32 v{b + 2}, v{b + 2}, v{b + 1}"))
    both(lambda b: a(f"  v_ashrrev_i32 v{b + 4}, 31, v{b + 2}"))
    both(lambda b: a(f"  v_or_b32 v{b + 4}, s26, v{b + 4}"))
    both(lambda b: a(f"  v_xor_b32 v{b + 4}, v{b + 4}, v{b + 2}"))
    a("  v_bfi_b32 v20, s25, v5, v20")
    a("  v_bfi_b32 v36, s25, v6, v36")
    a("  v_cmp_gt_u32 vcc, v36, v20")
    a("  v_max_u32 v20, 1, v20")
    a("  v_lshrrev_b64 v[8:9], v7, vcc")
    a("  v_and_b32 v8, 0xff, v8")
    a("  v_bcnt_u32_b32 v8, v8, 0")
    a("  v_lshlrev_b32 v8, 2, v8")
    a("  s_mov_b32 exec_lo, 0x01010101")
    a("  s_mov_b32 exec_hi, 0x01010101")
    a("  buffer_store_dword v20, v8, s[8:11], s27 offen sc1")
    a("  v_add_f32 v21, 1.0, v17")
    a("  v_mul_f32 v22, -v16, v17")
    a("  v_lshrrev_b32 v9, 1, v1")
    a("  v_and_b32 v10, 1, v1")
    a("  v_lshlrev_b32 v9, 4, v9")
    a("  v_lshl_add_u32 v9, v10, 2, v9")
    a(f"  v_add_u32 v9, {L_MR}, v9")
    a("  ds_write2_b32 v9, v21, v22 offset0:0 offset1:2")
    a("  v_rcp_f32 v21, v21")
    a(f"  v_mul_f32 v19, {f32(-math.log2(math.e))}, v18")
    a("  v_exp_f32 v19, v19")
    a("  v_mul_f32 v17, v17, v21")
    a("  v_add_f32 v19, 1.0, v19")
    a("  v_rcp_f32 v19, v19")
    a("  s_lshl_b32 s27, s4, 7")
    a(f"  s_add_u32 s27, s27, {WS_STAT}")
    a("  buffer_store_dwordx4 v[16:19], v3, s[8:11], s27 offen sc1")
    a("  s_mov_b64 exec, -1")

    a("K2_T2:")
    a("  s_lshr_b32 s24, s3, 1                   ; rg")
    a("  s_and_b32 s25, s3, 1")
    a(f"  s_mul_i32 s26, s24, {HS}")
    a("  s_mul_i32 s27, s25, 2304")
    a("  s_add_u32 s26, s26, s27")
    a("  v_lshl_add_u32 v1, v0, 6, s26")
    a("  s_lshl_b32 s26, s24, 4")
    a(f"  s_add_u32 s26, s26, {L_MR}")
    a("  v_mov_b32 v2, s26")
    a("  s_mul_i32 s26, s24, 2304")
    a("  s_mul_i32 s27, s25, 576")
    a("  s_add_u32 s26, s26, s27")
    a("  s_add_u32 s26, s26, s5")
    a("  v_lshlrev_b32 v3, 4, v0")
    a("  s_waitcnt lgkmcnt(0)")
    a("  s_barrier                               ; T2")
    a("  s_mov_b32 exec_hi, 0xf")
    a("  ds_read_b128 v[4:7], v2")
    for i in range(4):
        a(f"  ds_read_b128 v[{8 + 4 * i}:{11 + 4 * i}], v1 offset:{L_H + 16 * i}")
    for i in range(4):
        a(f"  s_waitcnt lgkmcnt({3 - i})")
        r = 8 + 4 * i
        a(f"  v_pk_fma_f32 v[{r}:{r + 1}], v[{r}:{r + 1}], v[4:5], v[6:7]")
        a(f"  v_pk_fma_f32 v[{r + 2}:{r + 3}], v[{r + 2}:{r + 3}], v[4:5], v[6:7]")
        a(f"  v_cvt_pk_bf16_f32 v{24 + i}, v{r}, v{r + 2}")
        a(f"  v_cvt_pk_bf16_f32 v{28 + i}, v{r + 1}, v{r + 3}")
    a("  buffer_store_dwordx4 v[24:27], v3, s[16:19], s26 offen sc1")
    a("  buffer_store_dwordx4 v[28:31], v3, s[16:19], s26 offen offset:1152 sc1")
    ffn_tail(a)
    a("K2_END:")
    a("  s_endpgm")
    return a.lines
```

```python
import struct, math
WS_Q = 0
WS_KM = 0x240000
WS_KL = 0x250000
WS_VT = 0x252000
WS_KEYS = 0x266000
WS_STAT = 0x268000
WS_WOL = 0x270000
WS_PART = 0x312000
WS_END = 0x59A000
QSCALE = 18 ** -0.5 * math.log2(math.e)
def f32(x):
    return "0x%08x" % struct.unpack("<I", struct.pack("<f", x))[0]
```

```python
import sys
from asmlib import *
from layout import *
import k1, k2

NAME = "sequential_preLN__grouped_kv_mqa__moe_arch_mod__prompt"
def kd(name, vgpr, sgpr=96):
    return f'''.amdhsa_kernel {name}
  .amdhsa_next_free_vgpr {vgpr}
  .amdhsa_next_free_sgpr {sgpr}
  .amdhsa_accum_offset {(vgpr + 3) // 4 * 4}
  .amdhsa_group_segment_fixed_size 0
  .amdhsa_kernarg_size 104
  .amdhsa_user_sgpr_count 2
  .amdhsa_user_sgpr_kernarg_segment_ptr 1
  .amdhsa_system_sgpr_workgroup_id_x 1
.end_amdhsa_kernel
'''
def build(verbose=True):
    kernels = [("k1_kernel", k1.gen_k1(), 168, 256, 512, k1.K1_LDS,
                [lambda l, n: False, lambda l, n: l == "K1_HELP", lambda l, n: l in ("K1_HELP", "K1_H2")]),
               ("k2_kernel", k2.gen_k2(), 256, 256, 512, k2.K2_LDS,
                [lambda l, n: l in ("K2_POLL0", "K2_DOWN"), lambda l, n: l in ("K2_POLL0", "K2_DOWN", "K2_ROWS"),
                 lambda l, n: l in ("K2_B", "K2_ROW1", "K2_D2") and n == 1])]
    head = open("header.txt").read()
    for n, _, _, g, b, lds, _ in kernels:
        head += f"; @launch kernel={n} grid=({g},1,1) block=({b},1,1) lds={lds}\n"
    s = head + '.amdgcn_target "amdgcn-amd-amdhsa--gfx950"\n.text\n'
    for n, lines, vg, g, b, lds, paths in kernels:
        rep = []
        ins = fix_hazards(lines, rep)
        if verbose:
            print(n, "instructions:", sum(1 for i in ins if i.mn), "nops inserted:", len(rep))
            for r in rep: print("   nop", r)
        for d in paths:
            for e in check_waits(trace_path(ins, n, d), n): print("WAIT ERROR", e)
        s += f".globl {n}\n.p2align 8\n.type {n},@function\n" + "\n".join(i.text for i in ins) + "\n"
    s += '.section .rodata,"a"\n'
    for n, _, vg, *_ in kernels:
        s += ".p2align 6\n" + kd(n, vg)
    return s
if __name__ == "__main__":
    out = sys.argv[1] if len(sys.argv) > 1 else f"cdna_kernels/{NAME}.s"
    open(out, "w").write(build())
```

```python
import re

TRANS = ("v_exp_f32", "v_log_f32", "v_rcp_f32", "v_rsq_f32", "v_sqrt_f32", "v_sin_f32", "v_cos_f32")
PASSES = {"v_mfma_f32_32x32x16_bf16": 8, "v_mfma_f32_32x32x8_bf16": 8, "v_mfma_f32_32x32x4_2b_bf16": 16,
          "v_mfma_f32_16x16x32_bf16": 4, "v_smfmac_f32_32x32x32_bf16": 8, "v_smfmac_f32_16x16x64_bf16": 4,
          "v_mfma_f32_16x16x16_bf16": 4}
RMW = ("v_fmac_f32", "v_dot2c_f32_bf16", "v_pk_fmac_f16", "v_writelane_b32")

def regs_of(tok):
    tok = tok.strip()
    tok = re.sub(r"^-", "", tok)
    m = re.match(r"^abs\((.*)\)$", tok)
    if m: tok = m.group(1)
    tok = tok.strip("|")
    m = re.match(r"^([vsa])(\d+)$", tok)
    if m: return [m.group(1) + m.group(2)]
    m = re.match(r"^([vsa])\[(\d+):(\d+)\]$", tok)
    if m: return [m.group(1) + str(i) for i in range(int(m.group(2)), int(m.group(3)) + 1)]
    if tok in ("vcc", "vcc_lo", "vcc_hi"): return ["vcc"]
    if tok in ("exec", "exec_lo", "exec_hi"): return ["exec"]
    if tok == "m0": return ["m0"]
    return []

class Ins:
    def __init__(self, text):
        self.text = text
        t = text.split(";")[0].strip()
        self.label = None
        self.mn = None
        self.w, self.r = set(), set()
        self.kind = "none"
        if not t or t.startswith("."):
            return
        if t.endswith(":"):
            self.label = t[:-1]
            return
        parts = t.split(None, 1)
        mn = parts[0]
        rest = parts[1] if len(parts) > 1 else ""
        ops = [o.strip() for o in re.split(r",(?![^\[]*\])", rest)] if rest else []
        mods = ""
        if ops:
            last = ops[-1].split(None, 1)
            if last and not last[0].startswith("hwreg") and not last[0].startswith("vmcnt") and not last[0].startswith("lgkmcnt"):
                ops[-1] = last[0]
                mods = last[1] if len(last) > 1 else ""
        self.mn, self.ops, self.mods = mn, ops, mods
        base = re.sub(r"_(e32|e64|dpp|sdwa)$", "", mn)
        self.base = base
        self.dpp = mn.endswith("_dpp") or "row_" in mods or "quad_perm" in mods or "wave_" in mods
        R = lambda i: regs_of(ops[i])
        if base in PASSES:
            self.kind = "mfma"
            self.passes = PASSES[base]
            self.D = R(0); self.A = R(1); self.B = R(2)
            if base.startswith("v_smfmac"):
                self.C = self.D; self.idx = R(3)
            else:
                self.C = R(3); self.idx = []
            self.w = set(self.D); self.r = set(self.A + self.B + self.C + self.idx)
        elif mn.startswith("v_"):
            self.kind = "valu"
            self.w = set(R(0))
            src = 1
            if base in ("v_add_co_u32", "v_sub_co_u32", "v_addc_co_u32", "v_subb_co_u32", "v_mad_u64_u32", "v_subrev_co_u32"):
                self.w |= set(R(1)); src = 2
            for i in range(src, len(ops)): self.r |= set(R(i))
            if base in RMW or "UNUSED_PRESERVE" in mods or (self.dpp and "bound_ctrl" not in mods): self.r |= set(R(0))
            if base.startswith("v_permlane") or base == "v_swap_b32":
                self.w |= set(R(1)); self.r |= set(R(0))
            if base.startswith("v_cmpx"): self.w.add("exec")
            if base == "v_nop": self.w = set()
        elif mn.startswith("buffer_") or mn.startswith("global_"):
            self.kind = "vmem"
            lds = (" lds" in " " + mods) or "_lds_" in mn
            self.lds = lds
            self.store = "_store" in mn or ("_atomic" in mn)
            if mn in ("buffer_inv", "buffer_wbl2"):
                self.store = True; self.data = []
            elif lds:
                for i in range(len(ops)): self.r |= set(R(i))
                self.r.add("m0"); self.data = []
            elif self.store:
                for i in range(len(ops)): self.r |= set(R(i))
                self.data = R(0) if mn.startswith("buffer_") else R(1)
                if "_atomic" in mn and "sc0" in mods:
                    self.w = set(R(0))
                    if mn.startswith("global_"): self.r -= set(R(0)); self.data = R(2)
            else:
                self.w = set(R(0)); self.data = []
                for i in range(1, len(ops)): self.r |= set(R(i))
                if "d16" in mn: self.r |= set(R(0))
        elif mn.startswith("ds_"):
            self.kind = "ds"
            if mn.startswith("ds_read") or "permute" in mn or "swizzle" in mn or "_rtn" in mn:
                self.w = set(R(0))
                for i in range(1, len(ops)): self.r |= set(R(i))
                if "d16" in mn: self.r |= set(R(0))
            else:
                for i in range(len(ops)): self.r |= set(R(i))
        elif mn.startswith("s_load") or mn in ("s_memtime", "s_memrealtime"):
            self.kind = "smem"
            self.w = set(R(0))
            for i in range(1, len(ops)): self.r |= set(R(i))
        elif mn in ("s_waitcnt", "s_nop", "s_barrier", "s_endpgm", "s_setprio", "s_sleep") or mn.startswith("s_cbranch") or mn == "s_branch":
            self.kind = "ctl"
            self.rest = rest
            if mn in ("s_cbranch_vccz", "s_cbranch_vccnz"): self.r.add("vcc")
            if mn in ("s_cbranch_execz", "s_cbranch_execnz"): self.r.add("exec")
        elif mn.startswith("s_"):
            self.kind = "salu"
            if mn.startswith("s_cmp") or mn.startswith("s_bitcmp"):
                for i in range(len(ops)): self.r |= set(R(i))
            else:
                self.w = set(R(0))
                for i in range(1, len(ops)): self.r |= set(R(i))
                if "saveexec" in mn: self.w.add("exec"); self.r.add("exec")
                if mn in ("s_addk_i32", "s_mulk_i32", "s_bitset1_b32", "s_bitset0_b32", "s_bitset0_b64", "s_bitset1_b64"): self.r |= set(R(0))
        else:
            raise ValueError("unknown instruction " + text)

    def states(self):
        if self.mn is None: return 0
        if self.mn == "s_nop": return int(self.rest, 0) + 1
        return 1

def vonly(s): return {x for x in s if x[0] in "va" and x != "vcc"}
def sonly(s): return {x for x in s if x[0] == "s" or x == "vcc"}

def need(p, c):
    n = 0
    if p.kind == "valu":
        pv = vonly(p.w); ps = sonly(p.w)
        if c.kind == "mfma" and pv & c.r: n = max(n, 2)
        if c.kind == "valu":
            if pv & c.r:
                if c.dpp or c.base.startswith("v_permlane"): n = max(n, 2)
                if c.base in ("v_readlane_b32", "v_readfirstlane_b32"): n = max(n, 1)
                if p.base in TRANS and c.base not in TRANS: n = max(n, 1)
                if p.mn.endswith("_sdwa") or "op_sel" in p.mods and not p.base.startswith("v_pk"): n = max(n, 1)
            if ps & c.r:
                n = max(n, 2)
                if c.base in ("v_readlane_b32", "v_writelane_b32") and ps & set(regs_of(c.ops[2])): n = max(n, 4)
            if "exec" in p.w: n = max(n, 5)
        if p.base.startswith("v_dot2") and c.kind in ("valu", "vmem", "ds", "mfma") and pv & (c.r | c.w):
            if not (c.kind == "valu" and c.base == p.base and not (pv & set(regs_of(c.ops[1]) + regs_of(c.ops[2])))): n = max(n, 3)
        if c.kind == "mfma" and "exec" in p.w: n = max(n, 4)
        if c.kind == "vmem" and ps & c.r: n = max(n, 5)
        if c.kind in ("vmem", "ds") and p.base in TRANS and pv & c.r: n = max(n, 1)
    elif p.kind == "mfma":
        D = set(p.D)
        long = {2: 5, 4: 8, 8: 12, 16: 20}[p.passes]
        if c.kind == "mfma":
            if D & set(c.A + c.B + c.idx): n = max(n, long)
            if D & set(c.C):
                if not (c.C == p.D and c.passes == p.passes): n = max(n, p.passes + 2)
            elif D & set(c.D): n = max(n, p.passes + 2 if c.passes < p.passes or c.D != p.D else 0)
        elif c.kind in ("valu", "vmem", "ds"):
            if D & (c.r | c.w): n = max(n, long)
            if c.kind == "valu" and set(p.C) & c.w: n = max(n, p.passes - 1)
    elif p.kind == "salu":
        if "m0" in p.w and "m0" in c.r and c.kind in ("vmem", "ds"): n = max(n, 1)
    elif p.kind == "vmem":
        if p.store and len(p.data) >= 3 and set(p.data) & c.w: n = max(n, 2)
    if p.kind in ("ds", "vmem") and c.kind == "valu" and c.dpp and vonly(p.w) & c.r: n = max(n, 2)
    return n

class Asm:
    def __init__(self):
        self.lines = []
    def __call__(self, text):
        for l in text.split("\n"):
            self.lines.append(l)
    def text(self):
        return "\n".join(self.lines) + "\n"

def fix_hazards(lines, report=None):
    out = []
    for l in lines:
        c = Ins(l)
        if c.mn is not None:
            dist = 0; req = 0
            for p in reversed(out):
                if p.mn is None: continue
                if p.mn in ("s_branch", "s_endpgm"): break
                k = need(p, c) - dist
                if k > req: req = k; who = p
                dist += p.states()
                if dist > 24: break
            if req > 0:
                if report is not None: report.append((len(out), req, who.text.strip(), l.strip()))
                while req > 0:
                    k = min(req, 16)
                    out.append(Ins(f"  s_nop {k - 1}"))
                    req -= k
        out.append(c)
    labels = {p.label: i for i, p in enumerate(out) if p.label}
    for i, b in enumerate(out):
        if b.mn and (b.mn.startswith("s_cbranch") or b.mn == "s_branch"):
            t = labels[b.rest.strip()]
            before = []
            for p in reversed(out[:i + 1]):
                if p.mn is None: continue
                if p is not b and p.mn in ("s_branch", "s_endpgm"): break
                before.append(p)
                if len(before) > 24: break
            d0 = 0
            for c in out[t:]:
                if c.mn is None: continue
                dist = d0
                for p in before:
                    if need(p, c) > dist:
                        raise Exception(f"hazard across branch {b.text}: {p.text} -> {c.text}")
                    dist += p.states()
                d0 += c.states()
                if d0 > 24 or c.mn in ("s_branch", "s_endpgm"): break
    return out

def check_waits(trace, name=""):
    vm, lg = [], []
    errs = []
    for c in trace:
        if c.mn is None: continue
        if c.mn == "s_waitcnt":
            m = re.search(r"vmcnt\((\d+)\)", c.rest)
            if m:
                n = int(m.group(1)); assert n <= 63
                vm = vm[len(vm) - n:] if n < len(vm) else vm
                if n == 0: vm = []
            m = re.search(r"lgkmcnt\((\d+)\)", c.rest)
            if m:
                n = int(m.group(1)); assert n <= 15
                if any(o.kind == "smem" for o in lg):
                    if n == 0: lg = []
                else:
                    lg = lg[len(lg) - n:] if n < len(lg) else lg
                    if n == 0: lg = []
            continue
        for o in vm + lg:
            hit = o.w & (c.r | c.w)
            if hit and not (o.kind == c.kind and o.kind in ("vmem", "ds") and not (o.w & c.r - (c.w if "d16" in c.mn else set()))):
                errs.append(f"{name}: {c.text.strip()} uses pending {o.text.strip()}")
        if c.kind == "vmem":
            vm.append(c)
            if len(vm) > 63: errs.append(f"{name}: more than 63 vmem ops outstanding at {c.text.strip()}")
        if c.kind in ("ds", "smem"):
            lg.append(c)
            if len(lg) > 15: errs.append(f"{name}: more than 15 lgkm ops outstanding at {c.text.strip()}")
    return errs

def trace_path(ins, start, decide, limit=200000):
    labels = {p.label: i for i, p in enumerate(ins) if p.label}
    i = labels[start]; cnt = {}; out = []
    while len(out) < limit:
        c = ins[i]
        out.append(c)
        if c.mn == "s_endpgm": return out
        if c.mn == "s_branch":
            i = labels[c.rest.strip()]; continue
        if c.mn and c.mn.startswith("s_cbranch"):
            cnt[i] = cnt.get(i, 0) + 1
            if decide(c.rest.strip(), cnt[i]):
                i = labels[c.rest.strip()]; continue
        i += 1
    raise Exception("trace too long")
```

```python
from asmlib import *
from layout import *

def srd(a, s, lo, hi, size):
    a(f"  s_mov_b32 s{s}, s{lo}")
    a(f"  s_and_b32 s{s+1}, s{hi}, 0xffff")
    a(f"  s_mov_b32 s{s+2}, {size}")
    a(f"  s_mov_b32 s{s+3}, 0x20000")

SLOT = 20480
NSLOT = 7
DEPTH = int(os.environ.get("DEPTH", "3"))
L_STAT = NSLOT * SLOT
L_CS = L_STAT + 1536
L_TR = L_CS + 512
K1_LDS = L_TR + 4 * 3840
SC = "" if "k1plain" in OPT else " sc1"

def gen_k1():
    a = Asm()
    def end():
        stamp_dump(a, 0, "s73")
        a("  s_endpgm")
    a("k1_kernel:")
    a("  s_cmp_ge_u32 s2, 256")
    a("  s_cbranch_scc1 K1_END")
    stamp_init(a)
    a("  s_load_dwordx8 s[36:43], s[0:1], 0")
    a("  s_load_dwordx2 s[44:45], s[0:1], 32     ; wo")
    a("  s_load_dwordx2 s[46:47], s[0:1], 96     ; ws")
    a("  v_lshrrev_b32 v1, 6, v0")
    a("  v_and_b32 v0, 63, v0                    ; lane")
    a("  v_readfirstlane_b32 s3, v1              ; wave")
    if DIAG: a("  s_mov_b32 s73, s3")
    a("  s_and_b32 s4, s2, 7")
    a("  s_lshr_b32 s5, s2, 3")
    a("  s_mul_i32 s6, s4, 28")
    a("  s_add_u32 s6, s6, s5")
    a("  s_cmp_ge_u32 s5, 28")
    a("  s_cbranch_scc1 K1_SPARE")
    a("  s_cmp_ge_u32 s6, 220")
    a("  s_cbranch_scc1 K1_SPARE")
    a("  s_mul_i32 s4, s6, 6554")
    a("  s_lshr_b32 s4, s4, 16                   ; T: tokens 96T..96T+95")
    a("  s_mul_i32 s5, s4, 10")
    a("  s_sub_u32 s5, s6, s5")
    a("  s_cmp_lt_u32 s3, 4")
    a("  s_cbranch_scc1 K1_COMP")

    if "noprio" not in OPT: a("  s_setprio 1")
    a("  s_sub_u32 s3, s3, 4                     ; h")
    a("  v_lshrrev_b32 v1, 3, v0")
    a("  v_mul_u32_u24 v2, 1152, v1")
    a("  v_lshrrev_b32 v3, 4, v0")
    a("  v_and_b32 v4, 7, v0")
    a("  v_xor_b32 v3, v3, v4")
    a("  s_lshl_b32 s6, s3, 2")
    a("  s_and_b32 s6, s6, 4")
    a("  v_xor_b32 v3, s6, v3")
    a("  v_lshl_add_u32 v10, v3, 4, v2           ; blocks 0, 2")
    a("  v_xor_b32 v11, 64, v10")
    a("  v_add_u32 v11, 9216, v11                ; block 1")
    a("  v_add_u32 v12, 18432, v10")
    a("  v_lshrrev_b32 v2, 2, v0")
    a("  v_lshrrev_b32 v3, 5, v0")
    a("  v_lshlrev_b32 v3, 1, v3")
    a("  v_and_b32 v4, 3, v0")
    a("  v_xor_b32 v3, v3, v4")
    a("  v_lshlrev_b32 v3, 4, v3")
    a("  s_cmp_eq_u32 s5, 9")
    a("  s_cselect_b32 s7, 36, 1152")
    a("  s_cselect_b32 s20, 20, 48")
    a("  v_min_u32 v3, s20, v3")
    a("  v_mad_u32_u24 v13, v2, s7, v3")
    a("  s_mul_i32 s21, s3, 3072")
    a("  s_lshl_b32 s22, s3, 10")
    a("  s_add_u32 s22, s22, 12288")
    if "rotG" in OPT: a("  s_mov_b32 s23, s5")
    elif "rot0" in OPT: a("  s_mov_b32 s23, 0")
    elif "rotX" in OPT:
        a("  s_and_b32 s23, s2, 7")
        a("  s_add_u32 s23, s23, s5")
    else:
        a("  s_mul_i32 s23, s4, 3")
        a("  s_add_u32 s23, s23, s5")
    a("  s_mul_i32 s24, s23, 7282")
    a("  s_lshr_b32 s24, s24, 16")
    a("  s_mul_i32 s24, s24, 9")
    a("  s_sub_u32 s23, s23, s24                 ; kappa")
    a("  s_lshl_b32 s24, s4, 2")
    a("  s_add_u32 s24, s24, s3")
    a("  s_mul_i32 s24, s24, 27648")
    a("  s_lshl_b32 s25, s7, 4")
    a("  s_mul_i32 s25, s25, s3")
    a("  s_lshl_b32 s26, s5, 7")
    a("  s_cmp_eq_u32 s5, 9")
    a("  s_cselect_b32 s26, 0, s26")
    a("  s_cselect_b32 s27, 0, 64")
    a("  s_add_u32 s25, s25, s26")
    a("  s_lshl_b32 s7, s7, 6")
    a("  s_waitcnt lgkmcnt(0)")
    srd(a, 12, 36, 37, 2359296)
    a("  s_cmp_eq_u32 s5, 9")
    a("  s_cselect_b32 s16, s40, s38")
    a("  s_cselect_b32 s17, s41, s39")
    a("  s_cselect_b32 s28, s42, s38")
    a("  s_cselect_b32 s29, s43, s39")
    a("  s_mov_b32 s18, 663552")
    a("  s_cselect_b32 s18, 20736, s18")
    a("  s_mov_b32 s30, s18")
    a("  s_and_b32 s17, s17, 0xffff")
    a("  s_and_b32 s29, s29, 0xffff")
    a("  s_mov_b32 s19, 0x20000")
    a("  s_mov_b32 s31, 0x20000")
    def dmas(c):
        b = (c % NSLOT) * SLOT
        return ["\n".join(["  s_mul_i32 s33, s23, s7", "  s_add_u32 s33, s33, s25", f"  s_add_u32 m0, s22, {b}", "  s_lshl_b32 s32, s23, 7",
                           "  buffer_load_dwordx4 v13, s[16:19], s33 offen lds"]),
                "\n".join([f"  s_add_u32 m0, s22, {b + 4096}", "  s_add_u32 s33, s33, s27",
                           "  buffer_load_dwordx4 v13, s[28:31], s33 offen lds"]),
                "\n".join([f"  s_add_u32 m0, s21, {b}", "  s_add_u32 s32, s32, s24",
                           "  buffer_load_dwordx4 v10, s[12:15], s32 offen lds"]),
                "\n".join([f"  s_add_u32 m0, s21, {b + 1024}", "  s_add_u32 s23, s23, 1",
                           "  buffer_load_dwordx4 v11, s[12:15], s32 offen lds"]),
                "\n".join([f"  s_add_u32 m0, s21, {b + 2048}", "  s_cmp_eq_u32 s23, 9", "  s_cselect_b32 s23, 0, s23",
                           "  buffer_load_dwordx4 v12, s[12:15], s32 offen lds"])]
    for c in range(DEPTH):
        for d in dmas(c): a(d)
    if DIAG: srd(a, 8, 46, 47, WS_SIZE)
    stamp(a, 2)
    for c in range(9):
        a(f"  s_waitcnt vmcnt({5 * (min(9, c + DEPTH) - c - 1)})")
        stamp(a, 3 + c)
        a("  s_barrier")
        if c + DEPTH < 9:
            for d in dmas(c + DEPTH): a(d)
    if DIAG: a("  s_barrier")
    end()

    a("K1_COMP:")
    a("  s_lshr_b32 s6, s3, 1                    ; tw")
    a("  s_and_b32 s7, s3, 1                     ; cw")
    a("  v_lshrrev_b32 v1, 4, v0                 ; g")
    a("  v_and_b32 v2, 15, v0                    ; j")
    a("  v_lshrrev_b32 v3, 1, v2")
    a("  v_xor_b32 v3, v3, v1")
    a("  v_lshlrev_b32 v3, 4, v3")
    a("  v_lshl_add_u32 v3, v2, 7, v3")
    a("  s_mul_i32 s20, s6, 6144")
    a("  s_xor_b32 s23, s6, s7")
    a("  s_lshl_b32 s24, s23, 6")
    a("  v_xor_b32 v3, s24, v3")
    a("  v_add_u32 v4, s20, v3")
    a("  v_xor_b32 v5, 64, v4")
    a("  v_bfe_u32 v3, v0, 2, 2")
    a("  v_lshl_add_u32 v3, v1, 3, v3")
    a("  v_lshlrev_b32 v3, 6, v3")
    a("  v_and_b32 v6, 1, v1")
    a("  v_lshl_add_u32 v3, v6, 5, v3")
    a("  v_and_b32 v6, 3, v0")
    a("  v_lshl_add_u32 v3, v6, 3, v3")
    a("  s_lshl_b32 s20, s7, 12")
    a("  s_add_u32 s20, s20, 12288")
    a("  s_lshl_b32 s24, s23, 11")
    a("  s_add_u32 s20, s20, s24")
    a("  v_add_u32 v6, s20, v3")
    a("  v_xor_b32 v7, 32, v6                    ; tile 1")
    a("  v_xor_b32 v8, 0x800, v6")
    a("  v_xor_b32 v9, 0x800, v7")
    ACC, CS, SX, SQ, ONE, FR = 20, 44, 52, 64, 76, 80
    for i in range(56): a(f"  v_mov_b32 v{ACC + i}, 0")
    for i in range(4): a(f"  v_mov_b32 v{ONE + i}, 0x3f803f80")
    a("  s_mul_i32 s20, s6, 768")
    a(f"  s_add_u32 s20, s20, {L_STAT}")
    a("  v_lshl_add_u32 v10, v2, 4, s20")
    a("  s_lshl_b32 s24, s7, 3")
    a("  v_add_u32 v11, s24, v10")
    a("  s_lshl_b32 s20, s3, 7")
    a(f"  s_add_u32 s20, s20, {L_CS}")
    a("  v_lshl_add_u32 v12, v1, 4, s20")
    a("  v_xor_b32 v13, 0x100, v12               ; partner's")
    a("  s_mul_i32 s20, s3, 3840")
    a(f"  s_add_u32 s20, s20, {L_TR}")
    a("  v_mul_u32_u24 v14, 80, v2")
    a("  v_lshl_add_u32 v14, v1, 3, v14")
    a("  v_add_u32 v14, s20, v14")
    a("  v_lshrrev_b32 v3, 2, v0")
    a("  v_and_b32 v17, 3, v0")
    a("  v_mul_u32_u24 v15, 80, v3")
    a("  v_lshl_add_u32 v15, v17, 4, v15")
    a("  v_add_u32 v15, s20, v15")
    a("  v_mul_u32_u24 v16, 1152, v3")
    a("  v_lshl_add_u32 v16, v17, 4, v16         ; Q store")
    for i, m in enumerate((0x22222222, 0x44444444, 0x88888888)):
        a(f"  s_mov_b32 s{26 + 2 * i}, {hex(m)}")
        a(f"  s_mov_b32 s{27 + 2 * i}, {hex(m)}")
    a("  s_lshl_b32 s21, s4, 1")
    a("  s_add_u32 s21, s21, s6")
    a("  s_mul_i32 s21, s21, 48")
    a(f"  s_mov_b32 s22, {f32(QSCALE)}")
    a("  s_cmp_eq_u32 s5, 9")
    a("  s_cselect_b32 s22, 1.0, s22")
    a("  s_mul_i32 s20, s21, 1152")
    a("  s_lshl_b32 s23, s5, 7")
    a("  s_add_u32 s20, s20, s23")
    a("  s_lshl_b32 s23, s7, 6")
    a("  s_add_u32 s23, s20, s23")
    a("  s_add_u32 s24, s23, 18432")
    a("  s_add_u32 s25, s23, 36864")
    a("  s_waitcnt lgkmcnt(0)")
    if DIAG: srd(a, 8, 46, 47, WS_SIZE)
    srd(a, 12, 46, 47, 2359296)
    stamp(a, 2)
    def reads(c, s):
        b = (c % NSLOT % 3) * SLOT
        f = FR + 20 * s
        l = []
        for t in range(2):
            for j in range(2):
                l.append(f"  ds_read_b64_tr_b16 v[{f + 4 * t + 2 * j}:{f + 4 * t + 2 * j + 1}], v{6 + 2 * s + t} offset:{b + 256 * j}")
        x = [f"  ds_read_b128 v[{f + 8 + 4 * i}:{f + 11 + 4 * i}], v{4 + s} offset:{b + 2048 * i}" for i in range(3)]
        return [l[0], l[1], x[0], l[2], l[3], x[1], x[2]]
    def mfma(d, x, y):
        a(f"  v_mfma_f32_16x16x32_bf16 v[{d}:{d + 3}], v[{x}:{x + 3}], v[{y}:{y + 3}], v[{d}:{d + 3}]")
    def mf(s, k, t=0, i=0):
        W, X = FR + 20 * s + 4 * t, FR + 20 * s + 8 + 4 * i
        if k == "m": mfma(ACC + 8 * i + 4 * t, W, X)
        if k == "c": mfma(CS + 4 * t, W, ONE)
        if k == "x": mfma(SX + 4 * i, ONE, X)
        if k == "q": mfma(SQ + 4 * i, X, X)
    first = [(2, "c", 0, 0), (3, "q", 0, 0), (3, "x", 0, 0), (5, "c", 1, 0), (6, "q", 0, 1), (6, "x", 0, 1), (7, "q", 0, 2), (7, "x", 0, 2)]
    mains = [("m", t, i) for i in range(3) for t in range(2)]
    for c in range(9):
        a("  s_barrier")
        stamp(a, 3 + c)
        if c % NSLOT in (3, 6):
            for r in range(4, 10): a(f"  v_add_u32 v{r}, {3 * SLOT}, v{r}")
        if c == NSLOT:
            for r in range(4, 10): a(f"  v_subrev_u32 v{r}, {6 * SLOT}, v{r}")
        r0 = reads(c, 0)
        for i in range(7):
            a(r0[i])
            if c and 1 <= i: mf(1, *mains[i - 1])
        r1 = reads(c, 1)
        last = None
        for m, (n, k, t, i) in enumerate(first):
            if n != last: a(f"  s_waitcnt lgkmcnt({7 + min(m, 7) - n})")
            last = n
            mf(0, k, t, i)
            if r1: a(r1.pop(0))
        for m in mains: mf(0, *m)
        a("  s_waitcnt lgkmcnt(0)")
    for i in range(3):
        q = SQ + 4 * i
        mf(1, *mains[i])
        a(f"  v_cndmask_b32 v{SX + 4 * i + 1}, v{q}, v{q + 1}, s[26:27]")
        a(f"  v_cndmask_b32 v{SX + 4 * i + 1}, v{SX + 4 * i + 1}, v{q + 2}, s[28:29]")
        a(f"  v_cndmask_b32 v{SX + 4 * i + 1}, v{SX + 4 * i + 1}, v{q + 3}, s[30:31]")
    a("  s_mov_b32 exec_lo, 0x00f0000f")
    a("  s_mov_b32 exec_hi, 0xf0000f00")
    for i in range(3):
        a(f"  ds_write_b64 v11, v[{SX + 4 * i}:{SX + 4 * i + 1}] offset:{256 * i}")
    a("  s_mov_b32 exec_lo, 0x00010001")
    a("  s_mov_b32 exec_hi, 0x00010001")
    for t in range(2):
        a(f"  ds_write_b128 v12, v[{CS + 4 * t}:{CS + 4 * t + 3}] offset:{64 * t}")
    a("  s_mov_b64 exec, -1")
    for m in mains[3:]: mf(1, *m)
    a("  s_waitcnt lgkmcnt(0)")
    stamp(a, 12)
    a("  s_barrier")
    stamp(a, 13)
    for i in range(3):
        a(f"  ds_read_b128 v[{SX + 4 * i}:{SX + 4 * i + 3}], v10 offset:{256 * i}")
    for t in range(2):
        a(f"  ds_read_b128 v[{SQ + 4 * t}:{SQ + 4 * t + 3}], v13 offset:{64 * t}")
    a(f"  v_mov_b32 v18, {f32(-1.0 / 576)}")
    a(f"  v_mov_b32 v19, {f32(1.0 / 576)}")
    a("  s_waitcnt lgkmcnt(2)")
    def tri(f):
        for i in range(3): a(f(SX + 4 * i))
    tri(lambda r: f"  v_pk_add_f32 v[{r}:{r + 1}], v[{r}:{r + 1}], v[{r + 2}:{r + 3}]")
    tri(lambda r: f"  v_pk_mul_f32 v[{r}:{r + 1}], v[{r}:{r + 1}], v[18:19]")
    tri(lambda r: f"  v_fma_f32 v{r + 1}, -v{r}, v{r}, v{r + 1}          ; var")
    tri(lambda r: f"  v_max_f32 v{r + 1}, 0, v{r + 1}")
    tri(lambda r: f"  v_add_f32 v{r + 1}, {f32(1e-5)}, v{r + 1}")
    tri(lambda r: f"  v_rsq_f32 v{r + 1}, v{r + 1}                 ; rstd")
    a("  s_waitcnt lgkmcnt(0)")
    for i in range(4):
        a(f"  v_pk_add_f32 v[{CS + 2 * i}:{CS + 2 * i + 1}], v[{CS + 2 * i}:{CS + 2 * i + 1}], v[{SQ + 2 * i}:{SQ + 2 * i + 1}]")
    tri(lambda r: f"  v_mul_f32 v{r + 1}, s22, v{r + 1}")
    PK, TR = 80, 92
    def scale(i):
        st = SX + 4 * i
        for t in range(2):
            d = ACC + 8 * i + 4 * t
            for h in range(2):
                r = d + 2 * h
                a(f"  v_pk_fma_f32 v[{r}:{r + 1}], v[{CS + 4 * t + 2 * h}:{CS + 4 * t + 2 * h + 1}], v[{st}:{st + 1}], v[{r}:{r + 1}] op_sel_hi:[1,0,1]")
                a(f"  v_pk_mul_f32 v[{r}:{r + 1}], v[{r}:{r + 1}], v[{st}:{st + 1}] op_sel:[0,1] op_sel_hi:[1,1]")
            a(f"  v_cvt_pk_bf16_f32 v{PK + 4 * i + 2 * t}, v{d}, v{d + 1}")
            a(f"  v_cvt_pk_bf16_f32 v{PK + 1 + 4 * i + 2 * t}, v{d + 2}, v{d + 3}")
    a("  s_cmp_eq_u32 s5, 9")
    a("  s_cbranch_scc1 K1_KV")
    for i in range(3):
        scale(i)
        a(f"  ds_write2_b64 v14, v[{PK + 4 * i}:{PK + 4 * i + 1}], v[{PK + 4 * i + 2}:{PK + 4 * i + 3}] offset0:{(1280 * i // 8) if i < 2 else 0} offset1:{(1280 * i // 8 if i < 2 else 0) + 4}")
        a(f"  ds_read_b128 v[{TR + 4 * i}:{TR + 4 * i + 3}], v15 offset:{1280 * i if i < 2 else 0}")
    for i in range(3):
        a(f"  s_waitcnt lgkmcnt({4 - 2 * i})")
        a(f"  buffer_store_dwordx4 v[{TR + 4 * i}:{TR + 4 * i + 3}], v16, s[12:15], s{23 + i} offen{SC}")
    end()
    a("K1_KV:")
    for i in range(3): scale(i)
    a("  s_cmp_eq_u32 s7, 1")
    a("  s_cbranch_scc1 K1_V")
    a("  v_lshlrev_b32 v3, 5, v2")
    a("  v_lshl_add_u32 v3, v1, 3, v3")
    a("  v_lshlrev_b32 v4, 2, v2")
    a("  s_lshl_b32 s20, s21, 5")
    a(f"  s_add_u32 s20, s20, {WS_KM}")
    a(f"  s_mov_b32 s14, {WS_KM + 65536}")
    for i in range(3):
        a(f"  buffer_store_dwordx2 v[{PK + 4 * i}:{PK + 1 + 4 * i}], v3, s[12:15], s20 offen offset:{512 * i}")
    a("  s_lshl_b32 s20, s21, 2")
    a(f"  s_add_u32 s20, s20, {WS_KL}")
    a(f"  s_mov_b32 s14, {WS_KL + 8192}")
    a("  s_mov_b32 exec_lo, 0xffff0000")
    a("  s_mov_b32 exec_hi, 0")
    for i in range(3):
        a(f"  buffer_store_dword v{PK + 3 + 4 * i}, v4, s[12:15], s20 offen offset:{64 * i}")
    end()
    a("K1_V:")
    a("  v_lshlrev_b32 v4, 1, v2")
    a("  v_lshl_add_u32 v3, v1, 7, v4")
    a("  s_mul_i32 s20, s21, 40")
    a(f"  s_add_u32 s20, s20, {WS_VT}")
    a(f"  s_mov_b32 s14, {WS_VT + 81920}")
    for i in range(3):
        a(f"  buffer_store_short v{PK + 4 * i}, v3, s[12:15], s20 offen offset:{640 * i}")
        a(f"  buffer_store_short_d16_hi v{PK + 4 * i}, v3, s[12:15], s20 offen offset:{640 * i + 32}")
        a(f"  buffer_store_short v{PK + 1 + 4 * i}, v3, s[12:15], s20 offen offset:{640 * i + 64}")
        a(f"  buffer_store_short_d16_hi v{PK + 1 + 4 * i}, v3, s[12:15], s20 offen offset:{640 * i + 96}")
    a("  s_mov_b32 exec_lo, 0xffff0000")
    a("  s_mov_b32 exec_hi, 0")
    for i in range(3):
        a(f"  buffer_store_short v{PK + 3 + 4 * i}, v4, s[12:15], s20 offen offset:{640 * i + 512}")
        a(f"  buffer_store_short_d16_hi v{PK + 3 + 4 * i}, v4, s[12:15], s20 offen offset:{640 * i + 544}")
    end()

    a("K1_SPARE:")
    a("  s_lshl_b32 s4, s4, 2")
    a("  s_add_u32 s4, s4, s5")
    a("  s_sub_u32 s4, s4, 28")
    a("  s_sub_u32 s6, s6, 188")
    a("  s_cmp_ge_u32 s5, 28")
    a("  s_cselect_b32 s4, s4, s6                ; sigma 0..35 : step = sigma/4, tiles 9(sigma%4)..+8")
    a("  s_lshr_b32 s5, s4, 2                    ; step")
    a("  s_and_b32 s6, s4, 3")
    a("  s_and_b32 s7, s3, 1                     ; hB")
    a("  v_bfe_u32 v13, v0, 1, 1                 ; b")
    a("  v_bfe_u32 v14, v0, 3, 1                 ; e/4")
    a("  v_lshl_add_u32 v13, v14, 1, v13         ; ea%4")
    a("  v_bfe_u32 v14, v0, 4, 1                 ; gb%2")
    a("  v_bfe_u32 v15, v0, 2, 1                 ; p")
    a("  v_bfe_u32 v16, v0, 5, 1                 ; gb/2")
    a("  v_lshl_add_u32 v15, v16, 1, v15")
    a("  v_mul_u32_u24 v15, 18, v15              ; 18*(2*(gb/2)+p)")
    a("  v_lshl_add_u32 v16, v14, 3, v13         ; main: 8*(gb%2)+ea%4")
    a("  v_lshl_add_u32 v17, v14, 2, v13")
    a("  v_mul_u32_u24 v17, 72, v17")
    a("  s_mul_i32 s21, s5, 72")
    a("  s_lshl_b32 s22, s7, 2")
    a("  s_add_u32 s21, s21, s22")
    a("  s_add_u32 s22, s7, 16")
    a("  s_cmp_eq_u32 s5, 8")
    a("  s_cselect_b32 s21, s22, s21")
    a("  s_cselect_b64 vcc, -1, 0")
    a("  s_mul_i32 s21, s21, 1152")
    a("  s_mul_i32 s22, s6, 9")
    a("  s_lshr_b32 s23, s3, 1")
    a("  s_add_u32 s22, s22, s23")
    a("  s_lshl_b32 s22, s22, 5")
    a("  s_add_u32 s21, s21, s22")
    a("  v_cndmask_b32 v16, v16, v17, vcc")
    a("  v_add_u32 v15, v15, v16")
    a("  v_mul_u32_u24 v15, 1152, v15")
    a("  v_and_b32 v16, 1, v0")
    a("  v_lshl_add_u32 v15, v16, 4, v15")
    a("  s_mul_i32 s22, s3, 3072")
    a("  s_mul_i32 s24, s4, 18")
    a("  s_add_u32 s24, s24, s3")
    a("  s_lshl_b32 s24, s24, 10")
    a(f"  s_add_u32 s24, s24, {WS_WOL}")
    a("  s_add_u32 s25, s24, 8192")
    a("  s_add_u32 s26, s24, 16384")
    a("  s_add_u32 s23, s21, 256")
    a("  s_cmp_ge_u32 s3, 2")
    a("  s_cselect_b32 s26, 0x10000000, s26")
    a("  s_cselect_b32 s23, 0x10000000, s23")
    a("  s_waitcnt lgkmcnt(0)")
    srd(a, 28, 44, 45, 663552)
    srd(a, 8, 46, 47, WS_SIZE)
    a("  s_mov_b32 m0, s22")
    a("  s_add_u32 s27, s21, 128")
    a("  buffer_load_dwordx4 v15, s[28:31], s21 offen lds")
    a("  s_add_u32 m0, s22, 1024")
    a("  buffer_load_dwordx4 v15, s[28:31], s27 offen lds")
    a("  s_add_u32 m0, s22, 2048")
    a("  buffer_load_dwordx4 v15, s[28:31], s23 offen lds")
    a("  v_lshrrev_b32 v1, 4, v0")
    a("  v_bfe_u32 v2, v0, 2, 2")
    a("  v_and_b32 v3, 3, v0")
    a("  v_lshl_add_u32 v24, v1, 3, v2")
    a("  v_lshlrev_b32 v24, 5, v24")
    a("  v_lshl_add_u32 v24, v3, 3, v24")
    a("  v_add_u32 v24, s22, v24")
    a("  v_lshlrev_b32 v25, 4, v0")
    a("  v_and_b32 v2, 15, v0")
    a("  v_cmp_gt_u32 vcc, 8, v2")
    a("  v_mov_b32 v3, 0x3f803f80")
    a("  v_mul_u32_u24 v4, 640, v1")
    a("  v_lshl_add_u32 v4, v2, 2, v4")
    a("  v_cndmask_b32 v3, 0, v3, vcc")
    a("  s_mul_i32 s20, s4, 2560")
    a(f"  s_add_u32 s20, s20, {WS_VT + 576}")
    a("  s_lshl_b32 s21, s4, 8")
    a(f"  s_add_u32 s21, s21, {WS_KEYS}")
    a("  s_cmp_eq_u32 s3, 7")
    a("  s_cselect_b32 s20, s20, 0x10000000")
    a("  s_cmp_eq_u32 s3, 6")
    a("  s_cselect_b32 s21, s21, 0x10000000")
    a("  s_cmp_lt_u32 s4, 32")
    a("  s_cselect_b32 s20, s20, 0x10000000")
    a("  s_cselect_b32 s21, s21, 0x10000000")
    a("  v_lshlrev_b32 v5, 2, v0")
    a("  v_mov_b32 v6, 0")
    a(f"  buffer_store_dword v3, v4, s[8:11], s20 offen")
    a(f"  buffer_store_dword v6, v5, s[8:11], s21 offen")
    a("  s_waitcnt vmcnt(2)")
    for i in range(3):
        a(f"  ds_read_b64_tr_b16 v[{32 + 4 * i}:{33 + 4 * i}], v24 offset:{1024 * i}")
        a(f"  ds_read_b64_tr_b16 v[{34 + 4 * i}:{35 + 4 * i}], v24 offset:{1024 * i + 128}")
    for i in range(3):
        a(f"  s_waitcnt lgkmcnt({4 - 2 * i})")
        a(f"  buffer_store_dwordx4 v[{32 + 4 * i}:{35 + 4 * i}], v25, s[8:11], s{24 + i} offen{SC}")
    end()
    a("K1_END:")
    a("  s_endpgm")
    return a.lines
```

```python
from asmlib import *
from layout import *
from k1 import srd

NA, NB = 3, 5
L_PA = 0
L_PB = 20480
L_H = 0
HS = 4608 + 64
L_ST = 18688
L_MR = L_ST + 512
L_X = 20480
L_XS = L_X + 9216
L_TOK = L_XS + 256
L_TOP = L_TOK + 256
L_ACT = L_TOP + 256
L_RED = L_ACT + 512
L_G = 40960
L_U = L_G + 36864 + 128
L_W8 = L_U + 36864
NW8 = 5
L_XI = L_W8
L_D = L_W8
L_WR = L_W8 + 4 * NW8 * 2048
K2_LDS = L_WR + 3072
NF = 144
SPIN = 0x40000

class Wave:
    def __init__(self, a, KM, V, KL, idx):
        self.a, self.KM, self.V, self.KL, self.idx = a, KM, V, KL, idx
    def pv(self, O, buf, u, k):
        v = self.V + 16 * u + 4 * k
        self.a(f"  v_smfmac_f32_32x32x32_bf16 v[{O}:{O + 15}], v[{v}:{v + 3}], v[{buf + 8 * k}:{buf + 8 * k + 7}], v{self.idx} abid:1")
    def qk2(self, buf, u, QL):
        k = self.KL + 2 * u
        self.a(f"  v_mfma_f32_32x32x4_2b_bf16 v[{buf}:{buf + 31}], v[{k}:{k + 1}], v[{QL}:{QL + 1}], 0")
    def qkm(self, buf, u, h, QM):
        k = self.KM + 8 * u + 4 * h
        b = buf + 16 * h
        self.a(f"  v_mfma_f32_32x32x16_bf16 v[{b}:{b + 15}], v[{k}:{k + 3}], v[{QM}:{QM + 3}], v[{b}:{b + 15}]")
    def unit(self, X, Y, O, u, prev=None, nxt=None, hook=None):
        a = self.a
        hook = hook or (lambda p: None)
        E = lambda i0, i1: [a(f"  v_exp_f32 v{X + i}, v{X + i}") for i in range(i0, i1)]
        E(0, 2)
        if callable(prev): prev()
        elif prev: self.pv(prev[0], Y, prev[1], 3)
        E(2, 5)
        hook("pre2b")
        if nxt: self.qk2(Y, nxt[0], nxt[2])
        E(5, 9)
        hook("early")
        E(9, 13)
        hook("prepv0")
        self.pv(O, X, u, 0)
        E(13, 16)
        hook("mid")
        E(16, 18)
        self.pv(O, X, u, 1)
        E(18, 21)
        hook("preqk")
        if nxt: self.qkm(Y, nxt[0], 0, nxt[1])
        E(21, 24)
        if nxt: self.qkm(Y, nxt[0], 1, nxt[1])
        E(24, 27)
        hook("prepv2")
        self.pv(O, X, u, 2)
        E(27, 30)
        hook("late")
        E(30, 32)

def pa_slot(q):
    return L_PB + 10240 if q == 0 else L_PA + (q % 2) * 10240
def kv_setup(a, skey):
    a(f"  s_lshl_b32 s20, {skey}, 10")
    a(f"  s_add_u32 s20, s20, {WS_KM}")
    a(f"  s_mul_i32 s21, {skey}, 1280")
    a(f"  s_add_u32 s21, s21, {WS_VT}")
    a(f"  s_lshl_b32 s22, {skey}, 7")
    a(f"  s_add_u32 s22, s22, {WS_KL}")
def kv_list(a, w, u, vK, vV, vKL):
    l = [(("k", u), None, f"  buffer_load_dword v{w.KL + 2 * u}, {vKL}, s[8:11], s22 offen offset:{256 * u}")]
    for h in range(2):
        r = w.KM + 8 * u + 4 * h
        l.append((("k", u), "  s_add_u32 s20, s20, 2048" if h == 0 and u else None,
                  f"  buffer_load_dwordx4 v[{r}:{r + 3}], {vK}, s[8:11], s20 offen offset:{1024 * h}"))
    for k in range(4):
        r = w.V + 16 * u + 4 * k
        l.append((("v", u, k), "  s_add_u32 s21, s21, 2560" if k == 0 and u else None,
                  f"  buffer_load_dwordx4 v[{r}:{r + 3}], {vV}, s[8:11], s21 offen offset:{640 * k}"))
    return l

BEFORE = [True]
def cleanup(a, regs, K):
    for st, m in enumerate(("row_half_mirror", "quad_perm:[2,3,0,1]", "quad_perm:[1,0,3,2]")):
        for x, t in regs:
            a(f"  v_mov_b32_dpp v{t}, v{x} {m} row_mask:0xf bank_mask:0xf bound_ctrl:1")
        for (x, t), k in zip(regs, K):
            a(f"  v_med3_u32 v{x}, v{x}, v{t}, v{k + st}")

GU, DN, DD = 88, 160, 200
def ffn_prep(a, isB):
    a("  v_lshrrev_b32 v1, 4, v0                 ; gb")
    a("  v_and_b32 v2, 15, v0")
    a("  v_bfe_u32 v3, v0, 1, 1                  ; p")
    a("  v_and_b32 v7, 7, v0")
    if isB:
        a("  v_lshrrev_b32 v4, 3, v0")
        a("  v_mul_u32_u24 v4, 1152, v4")
        a("  v_lshrrev_b32 v5, 5, v0")
        a("  v_lshlrev_b32 v5, 2, v5")
        a("  v_xor_b32 v5, v5, v7")
        a("  v_lshl_add_u32 v4, v5, 4, v4")
        a("  s_mul_i32 s24, s56, 36864")
        a("  s_mul_i32 s25, s6, 9216")
        a("  s_add_u32 s24, s24, s25")
        for cb in range(9):
            a(f"  s_add_u32 m0, s25, {L_D + 1024 * cb}")
            if cb: a("  s_add_u32 s24, s24, 128")
            a("  buffer_load_dwordx4 v4, s[60:63], s24 offen lds")
        a("  v_lshrrev_b32 v5, 1, v1")
        a("  v_mul_u32_u24 v5, 9216, v5")
        a("  v_and_b32 v6, 1, v1")
        a("  v_mul_u32_u24 v6, 576, v6")
        a("  v_add_u32 v5, v5, v6")
        a("  v_lshl_add_u32 v5, v2, 2, v5")
        a(f"  v_add_u32 v5, {L_D}, v5")
        a("  s_lshl_b32 s24, s6, 11")
        a("  v_add_u32 v85, s24, v5")
        a("  s_lshl_b32 s24, s6, 6")
        a("  s_and_b32 s24, s24, 64")
        a("  v_add_u32 v5, 8192, v5")
        a("  v_xor_b32 v86, s24, v5                  ; tile 16+s")
        a("  v_lshrrev_b32 v5, 1, v1")
        a("  v_lshlrev_b32 v5, 4, v5")
        a("  v_and_b32 v6, 1, v1")
        a("  v_bfe_u32 v8, v0, 3, 1")
        a("  v_lshl_add_u32 v6, v8, 1, v6            ; (k>>2)&3")
        a("  v_lshl_add_u32 v5, v6, 2, v5")
        a("  v_bfe_u32 v8, v0, 2, 1")
        a("  v_add_u32 v5, v5, v8")
        a("  v_lshlrev_b32 v5, 6, v5")
        a("  v_xor_b32 v6, s6, v6")
        a("  v_lshl_add_u32 v5, v6, 4, v5")
        a(f"  v_mul_u32_u24 v6, {L_U - L_G}, v3")
        a("  v_add_u32 v5, v5, v6")
        a("  v_and_b32 v6, 1, v0")
        a("  v_lshl_add_u32 v5, v6, 3, v5")
        a(f"  v_add_u32 v5, {L_G}, v5")
        for st in range(9):
            for hB in range(2):
                for j in range(2):
                    r = GU + 8 * st + 4 * hB + 2 * j
                    a(f"  ds_read_b64_tr_b16 v[{r}:{r + 1}], v5 offset:{(64 * st + 32 * hB + 2 * j) * 64}")
            if st >= 2: a("  s_waitcnt lgkmcnt(8)")
        for i in range(28): a(f"  v_mov_b32 v{DD + i}, 0")
        for i in range(4): a(f"  v_mov_b32 v{228 + i}, 0x3f803f80")
        a("  v_mul_u32_u24 v5, 0xaaaa, v3")
        a("  v_mul_u32_u24 v6, 0x5555, v3")
        a("  v_lshl_or_b32 v5, v6, 16, v5")
        a("  v_add_u32 v73, 0x88884444, v5")
        a("  v_bfe_u32 v6, v0, 3, 1")
        a("  v_lshl_add_u32 v5, v1, 2, v6")
        a("  v_lshlrev_b32 v82, 4, v5")
        a("  v_lshrrev_b32 v5, 3, v0")
        a("  v_lshlrev_b32 v5, 6, v5")
        a("  v_lshl_add_u32 v5, v7, 1, v5")
        a("  s_lshl_b32 s24, s6, 4")
        a("  v_add_u32 v83, s24, v5")
        a("  v_bfe_u32 v5, v0, 2, 2")
        a("  v_and_b32 v6, 1, v0")
        a("  v_lshl_add_u32 v5, v5, 1, v6")
        a("  v_lshlrev_b32 v5, 6, v5")
        a("  v_lshl_add_u32 v84, v1, 4, v5")
        a("  s_mul_i32 s57, s56, 18432")
        a(f"  s_add_u32 s57, s57, {WS_PART}")
        a("  s_lshl_b32 s24, s6, 10")
        a("  s_add_u32 s58, s57, s24")
        a("  s_add_u32 s58, s58, 16384")
        a("  s_lshl_b32 s24, s6, 12")
        a("  s_add_u32 s57, s57, s24")
    a("  v_bfe_i32 v51, v0, 2, 1")
    a("  v_bfe_i32 v52, v0, 1, 1")
    a("  v_bfe_i32 v53, v0, 0, 1")
    a("  v_xor_b32 v52, v52, v51")
    a("  v_xor_b32 v53, v53, v51")
    for i in range(3): a(f"  v_not_b32 v{48 + i}, v{51 + i}")
    for n, bit in enumerate((3, 4, 5)):
        a(f"  v_bfe_i32 v5, v0, {bit}, 1")
        for i in range(3): a(f"  v_xor_b32 v{54 + 3 * n + i}, v5, v{48 + i}")
    a("  s_bfe_i32 s24, s3, 0x10000")
    for i in range(3): a(f"  v_xor_b32 v{63 + i}, s24, v{48 + i}")
    a("  v_and_b32 v5, 3, v51")
    a("  v_xor_b32 v5, v5, v0")
    a("  v_lshlrev_b32 v66, 2, v5")
    a("  v_xor_b32 v67, 28, v66                  ; reversed")
    a("  s_lshl_b32 s68, s3, 10")
    a(f"  s_add_u32 s69, s68, {WS_KEYS}")
    a("  s_lshl_b32 s24, s3, 5")
    a(f"  s_add_u32 s24, s24, {L_TOP}")
    a("  v_lshlrev_b32 v78, 2, v7")
    a("  v_add_u32 v68, s24, v78")
    a("  v_lshlrev_b32 v69, 2, v0")
    a("  v_lshlrev_b32 v70, 4, v0")
    a("  v_lshlrev_b32 v71, 5, v1")
    a("  v_lshl_add_u32 v71, v3, 4, v71          ; 32*ga + 16*p")
    a("  v_add_u32 v72, s68, v70")
    a("  s_lshl_b32 s59, s3, 7")
    a("  v_lshrrev_b32 v5, 3, v0")
    a("  v_mul_u32_u24 v5, 18432, v5")
    a("  v_lshl_add_u32 v74, v7, 4, v5")
    a("  s_mul_i32 s20, s3, 147456")
    a("  s_lshl_b32 s21, s56, 7")
    a("  s_add_u32 s20, s20, s21")
    a(f"  s_add_u32 s20, s20, {WS_PART}")
    a(f"  s_add_u32 s21, s20, {8 * 147456}")
    a(f"  s_add_u32 s22, s20, {16 * 147456}")
    a("  s_cmp_ge_u32 s3, 2")
    a("  s_cselect_b32 s22, 0x10000000, s22")
    a("  v_lshrrev_b32 v6, 5, v0")
    a("  v_lshlrev_b32 v6, 9, v6")
    a("  v_lshl_add_u32 v6, v7, 6, v6")
    a("  v_bfe_u32 v5, v0, 4, 1")
    a("  v_lshl_add_u32 v6, v5, 5, v6")
    a("  s_lshl_b32 s24, s3, 2")
    a("  v_add_u32 v75, s24, v6")
    if not isB:
        a("  s_bfe_u32 s24, s56, 0x20001             ; rg")
        a("  s_lshl_b32 s24, s24, 2")
        a("  v_bfe_u32 v5, v0, 3, 1")
        a("  v_add_u32 v5, s24, v5")
        a("  v_lshlrev_b32 v76, 2, v5")
        a("  v_bfe_u32 v6, v0, 2, 1")
        a("  v_lshl_add_u32 v5, v6, 1, v5")
        a("  v_lshlrev_b32 v5, 4, v5")
        a("  v_and_b32 v6, 3, v0")
        a("  v_lshl_add_u32 v5, v6, 2, v5")
        a("  s_lshr_b32 s24, s56, 3")
        a("  s_lshl_b32 s24, s24, 1")
        a("  s_and_b32 s25, s56, 1")
        a("  s_add_u32 s24, s24, s25                 ; k/16")
        a("  s_lshl_b32 s25, s24, 8")
        a("  v_add_u32 v77, s25, v5")
        a("  s_lshl_b32 s23, s24, 5")
        a("  v_lshlrev_b32 v79, 6, v0")

def ffn_tail(a):
    a("  s_mov_b64 exec, -1")
    a(f"  s_cmp_ge_u32 s2, {NF}")
    a("  s_cbranch_scc1 K2_END")
    a("  s_setprio 0")
    a("  s_cmp_ge_u32 s3, 4")
    a("  s_cbranch_scc1 K2_CS")
    ffn_prep(a, False)
    a("  s_branch K2_POLL0")
    a("K2_CS:")
    for m in range(5):
        if m < 4:
            if m == 2: a("  v_add_u32 v85, 1024, v85")
            a(f"  v_xor_b32 v1, {64 * (m % 2)}, v85")
        else: a("  v_mov_b32 v1, v86")
        a("  v_add_u32 v2, 18432, v1")
        for h in range(4):
            r = DN + 8 * m + 2 * h
            a(f"  ds_read2_b32 v[{r}:{r + 1}], v{1 + h // 2} offset0:{64 * (h % 2)} offset1:{64 * (h % 2) + 32}")
        if m == 2: a("  s_waitcnt lgkmcnt(4)")
    for st in range(9):
        a(f"  v_smfmac_f32_16x16x64_bf16 v[224:227], v[228:231], v[{GU + 8 * st}:{GU + 8 * st + 7}], v73")
    a("  v_add_f32 v80, v224, v226")
    a("  v_mov_b32 v81, v80")
    a("  v_mov_b32_dpp v81, v80 row_ror:8 row_mask:0xf bank_mask:0x3")
    a("  v_mov_b32_dpp v80, v80 row_ror:8 row_mask:0xf bank_mask:0xc")
    a("K2_POLL0:")
    a("  s_mov_b32 s70, 0")
    a("  s_movk_i32 s24, 1152")
    stamp(a, 14)
    a("  s_waitcnt vmcnt(0) lgkmcnt(0)")
    stamp(a, 15)
    a("K2_POLL:")
    for m in range(4):
        a(f"  buffer_load_dword v{16 + m}, v{66 + m % 2}, s[8:11], s69 offen offset:{256 * m} sc1")
    a("  s_add_u32 s70, s70, 1")
    a("  s_waitcnt vmcnt(0)")
    a("  v_min3_u32 v20, v16, v17, v18")
    a("  v_max_u32 v16, v16, v17")
    a("  v_min_u32 v20, v20, v19")
    a("  v_max_u32 v18, v18, v19")
    a("  v_cmp_eq_u32 vcc, 0, v20")
    a(f"  s_cmp_lt_u32 s70, {SPIN}")
    a("  s_cselect_b64 vcc, vcc, 0")
    a("  s_cbranch_vccnz K2_POLL")
    stamp(a, 16)
    if DIAG: a(f"  s_mov_b32 s{ST0 + 23}, s70")
    cleanup(a, [(16, 17), (18, 19)], [48, 51])
    a("  v_max_u32 v16, v16, v18")
    cleanup(a, [(16, 17)], [54])
    def upper(last):
        a("  v_max_u32_dpp v16, v16, v16 row_ror:8 row_mask:0xf bank_mask:0xf bound_ctrl:1")
        cleanup(a, [(16, 17)], [57])
        a("  v_mov_b32 v17, v16")
        a("  v_permlane16_swap_b32 v16, v17")
        a("  v_max_u32 v16, v16, v17")
        cleanup(a, [(16, 17)], [60])
        a("  v_mov_b32 v17, v16")
        a("  v_permlane32_swap_b32 v16, v17")
        a("  v_max_u32 v16, v16, v17")
        if not last: cleanup(a, [(16, 17)], [63])
    upper(False)
    a("  s_mov_b64 exec, 0xff")
    a("  ds_write_b32 v68, v16")
    a("  s_mov_b64 exec, -1")
    a("  s_waitcnt lgkmcnt(0)")
    a("  s_barrier")
    a(f"  ds_read_b32 v16, v69 offset:{L_TOP}")
    a("  s_mov_b32 s70, 0")
    a("  s_waitcnt lgkmcnt(0)")
    upper(True)
    a("  v_not_b32_dpp v17, v16 quad_perm:[0,1,0,1] row_mask:0xf bank_mask:0x3")
    a("  v_not_b32_dpp v17, v16 quad_perm:[2,3,2,3] row_mask:0xf bank_mask:0xc")
    a("  v_and_b32 v17, 0x7ff, v17")
    stamp(a, 17)
    a("  v_mad_u32_u24 v18, v17, s24, v71")
    a("  s_cmp_ge_u32 s3, 2")
    a("  s_cbranch_scc1 K2_ROW1")
    a("  s_cmp_eq_u32 s3, 1")
    a("  s_cbranch_scc1 K2_ROWS")
    def retry(label, regs):
        a("  s_add_u32 s70, s70, 1")
        a("  s_waitcnt vmcnt(0)")
        a(f"  v_max3_u32 v28, v{regs[0]}, v{regs[1]}, v{regs[2]}")
        for i in range(3, len(regs) - 1, 2): a(f"  v_max3_u32 v28, v28, v{regs[i]}, v{regs[i + 1]}")
        if len(regs) % 2 == 0: a(f"  v_max_u32 v28, v28, v{regs[-1]}")
        a("  v_cmp_eq_u32 vcc, -1, v28")
        a(f"  s_cmp_lt_u32 s70, {SPIN}")
        a("  s_cselect_b64 vcc, vcc, 0")
        a(f"  s_cbranch_vccnz {label}")
    a("K2_ROW2:")
    a("  buffer_load_dwordx4 v[20:23], v18, s[16:19], 0 offen sc1")
    a("  buffer_load_dwordx4 v[24:27], v18, s[16:19], 0 offen offset:1024 sc1")
    retry("K2_ROW2", [20, 23, 24, 27])
    a(f"  ds_write_b128 v70, v[24:27] offset:{L_X + 8192}")
    a("  s_branch K2_ROWD")
    a("K2_ROWS:")
    a("  v_lshlrev_b32 v19, 4, v17")
    a(f"  s_mov_b32 s26, {WS_STAT}")
    a("K2_ROWS1:")
    a("  buffer_load_dwordx4 v[20:23], v18, s[16:19], s59 offen sc1")
    a("  buffer_load_dwordx4 v[24:27], v19, s[8:11], s26 offen sc1")
    a(f"  ds_write_b32 v69, v17 offset:{L_TOK}")
    retry("K2_ROWS1", [20, 23, 24, 27])
    a("  s_mov_b64 exec, 0xffff")
    a(f"  ds_write_b128 v70, v[24:27] offset:{L_XS}")
    a("  s_mov_b64 exec, -1")
    a("  s_branch K2_ROWD")
    a("K2_ROW1:")
    a("  buffer_load_dwordx4 v[20:23], v18, s[16:19], s59 offen sc1")
    retry("K2_ROW1", [20, 21, 23])
    a("K2_ROWD:")
    stamp(a, 18)
    a(f"  ds_write_b128 v72, v[20:23] offset:{L_X}")
    a("  s_mov_b32 s70, 0")
    a("  s_cmp_ge_u32 s3, 4")
    a("  s_waitcnt lgkmcnt(0)")
    a("  s_barrier")
    a("  s_cbranch_scc1 K2_GU")
    a(f"  ds_read_b32 v14, v76 offset:{L_TOK}")
    a(f"  ds_read_b32 v15, v77 offset:{L_X}")
    a("  s_waitcnt lgkmcnt(0)")
    a("  v_mad_u32_u24 v14, v14, s24, v78")
    a("  v_lshlrev_b32 v30, 16, v15")
    a("  v_and_b32 v31, 0xffff0000, v15")
    a("  s_barrier")
    a("  s_branch K2_D3")
    a("K2_GU:")
    for st in range(9):
        a(f"  ds_read_b128 v[{8 + 4 * st}:{11 + 4 * st}], v70 offset:{L_X + 1024 * st}")
    a(f"  ds_read_b128 v[4:7], v82 offset:{L_XS}")
    for st in range(9):
        a(f"  s_waitcnt lgkmcnt({9 - st})")
        a(f"  v_smfmac_f32_16x16x64_bf16 v[220:223], v[{8 + 4 * st}:{11 + 4 * st}], v[{GU + 8 * st}:{GU + 8 * st + 7}], v73")
    a("  s_waitcnt lgkmcnt(0)")
    a("  v_mul_f32 v7, v7, v5                    ; c * sigmoid(r)")
    a("  v_mul_f32 v80, v80, v4")
    a("  v_mul_f32 v81, v81, v4")
    a(f"  v_mul_f32 v6, {f32(-math.log2(math.e))}, v5")
    a("  v_pk_add_f32 v[220:221], v[220:221], v[222:223]")
    a("  v_sub_f32 v2, v220, v80")
    a("  v_sub_f32 v3, v221, v81")
    a("  v_sub_f32_dpp v2, v221, v80 row_ror:8 row_mask:0xf bank_mask:0xc")
    a("  v_sub_f32_dpp v3, v220, v81 row_ror:8 row_mask:0xf bank_mask:0x3")
    a("  v_mul_f32 v1, v2, v6")
    a("  v_exp_f32 v1, v1")
    a("  v_mul_f32 v2, v2, v5                    ; g")
    a("  v_add_f32 v1, 1.0, v1")
    a("  v_rcp_f32 v1, v1")
    a("  v_mul_f32 v3, v3, v7                    ; u * sigmoid(r)")
    a("  v_mul_f32 v2, v2, v1                    ; silu(g)")
    a("  v_mul_f32 v2, v2, v3")
    a("  v_cvt_pk_bf16_f32 v2, v2, v2")
    a(f"  ds_write_b16 v83, v2 offset:{L_ACT}")
    stamp(a, 19)
    a("  s_cmp_ge_u32 s6, 2")
    a("  s_waitcnt lgkmcnt(0)")
    a("  s_barrier")
    a(f"  ds_read_b128 v[8:11], v84 offset:{L_ACT}")
    a("  s_waitcnt lgkmcnt(0)")
    for m in range(4):
        a(f"  v_smfmac_f32_16x16x64_bf16 v[{DD + 4 * m}:{DD + 4 * m + 3}], v[8:11], v[{DN + 8 * m}:{DN + 8 * m + 7}], v73 abid:1")
    a("  s_cbranch_scc1 K2_D2")
    a(f"  v_smfmac_f32_16x16x64_bf16 v[{DD + 16}:{DD + 19}], v[8:11], v[{DN + 32}:{DN + 39}], v73 abid:1")
    a("K2_D2:")
    a("  s_nop 3")
    for m in range(4):
        a(f"  buffer_store_dwordx4 v[{DD + 4 * m}:{DD + 4 * m + 3}], v70, s[8:11], s57 offen offset:{1024 * m} sc1")
    a("  s_cbranch_scc1 K2_D3")
    a(f"  buffer_store_dwordx4 v[{DD + 16}:{DD + 19}], v70, s[8:11], s58 offen sc1")
    a("K2_D3:")
    stamp(a, 20)
    a("  s_waitcnt vmcnt(0)")
    a("  s_barrier")
    stamp(a, 21)
    a("K2_RED:")
    a("  buffer_load_dwordx4 v[16:19], v74, s[8:11], s20 offen sc1")
    a("  buffer_load_dwordx4 v[20:23], v74, s[8:11], s21 offen sc1")
    a("  buffer_load_dwordx4 v[24:27], v74, s[8:11], s22 offen sc1")
    retry("K2_RED", [16, 19, 20, 23, 24, 27])
    stamp(a, 22)
    a("  v_pk_add_f32 v[16:17], v[16:17], v[20:21]")
    a("  v_pk_add_f32 v[18:19], v[18:19], v[22:23]")
    a("  v_pk_add_f32 v[16:17], v[16:17], v[24:25]")
    a("  v_pk_add_f32 v[18:19], v[18:19], v[26:27]")
    a("  v_permlane32_swap_b32 v16, v17")
    a("  v_permlane32_swap_b32 v18, v19")
    a("  v_add_f32 v16, v16, v17")
    a("  v_add_f32 v18, v18, v19")
    a("  v_permlane16_swap_b32 v16, v18")
    a("  v_add_f32 v16, v16, v18")
    a("  v_add_f32_dpp v16, v16, v16 row_ror:8 row_mask:0xf bank_mask:0xf bound_ctrl:1")
    a("  s_mov_b32 exec_lo, 0x00ff00ff")
    a("  s_mov_b32 exec_hi, 0x00ff00ff")
    a(f"  ds_write_b32 v75, v16 offset:{L_RED}")
    a("  s_cmp_lg_u32 s3, 0")
    a("  s_waitcnt lgkmcnt(0)")
    a("  s_barrier")
    a("  s_cbranch_scc1 K2_END")
    a("  s_mov_b64 exec, 0xffff")
    for i in range(4):
        a(f"  ds_read_b128 v[{32 + 4 * i}:{35 + 4 * i}], v79 offset:{L_RED + 16 * i}")
    a("  s_waitcnt lgkmcnt(2)")
    a("  v_pk_add_f32 v[32:33], v[32:33], v[34:35]")
    a("  v_pk_add_f32 v[36:37], v[36:37], v[38:39]")
    a("  v_pk_add_f32 v[32:33], v[32:33], v[36:37]")
    a("  s_waitcnt lgkmcnt(0)")
    a("  v_pk_add_f32 v[40:41], v[40:41], v[42:43]")
    a("  v_pk_add_f32 v[44:45], v[44:45], v[46:47]")
    a("  v_add_f32 v32, v32, v33")
    a("  v_pk_add_f32 v[40:41], v[40:41], v[44:45]")
    a("  v_add_f32 v30, v30, v32")
    a("  v_add_f32 v40, v40, v41")
    a("  v_add_f32 v31, v31, v40")
    a("  v_cvt_pk_bf16_f32 v30, v30, v31")
    a("  buffer_store_dword v30, v14, s[16:19], s23 offen sc1")

def gen_k2():
    a = Asm()
    a("k2_kernel:")
    a("  s_cmp_ge_u32 s2, 256")
    a("  s_cbranch_scc1 K2_EXIT")
    stamp_init(a)
    a("  s_load_dwordx2 s[46:47], s[0:1], 96     ; ws")
    a("  s_load_dwordx2 s[36:37], s[0:1], 0      ; x")
    a("  s_load_dwordx8 s[48:55], s[0:1], 48")
    a("  s_load_dwordx2 s[38:39], s[0:1], 80     ; out")
    a("  v_lshrrev_b32 v1, 6, v0")
    a("  v_and_b32 v0, 63, v0                    ; lane")
    a("  v_readfirstlane_b32 s3, v1              ; wave")
    a("  s_and_b32 s4, s2, 7")
    a("  s_lshl_b32 s4, s4, 5")
    a("  s_lshr_b32 s5, s2, 3")
    a("  s_add_u32 s4, s4, s5                    ; W: tokens 8W..8W+7")
    a("  s_mul_i32 s5, s4, 9216")
    a("  s_and_b32 s6, s3, 3")
    a("  s_mul_i32 s7, s6, 2560")
    a("  s_lshr_b32 s56, s2, 4")
    a("  s_lshl_b32 s56, s56, 4")
    a("  s_and_b32 s57, s2, 7")
    a("  s_lshl_b32 s57, s57, 1")
    a("  s_add_u32 s56, s56, s57")
    a("  s_bfe_u32 s57, s2, 0x10003")
    a("  s_add_u32 s56, s56, s57")
    a("  v_lshrrev_b32 v1, 5, v0                 ; hi")
    a("  v_and_b32 v2, 31, v0")
    a("  v_lshlrev_b32 v3, 5, v2")
    a("  v_lshl_add_u32 v3, v1, 4, v3")
    a("  v_lshlrev_b32 v4, 1, v2")
    a("  s_mov_b32 s24, 0xfffff9f8")
    a("  v_bfe_u32 v4, s24, v4, 2")
    a("  v_cmp_gt_u32 vcc, 16, v2")
    a("  v_add_u32 v4, 16, v4")
    a("  v_lshlrev_b32 v5, 2, v0                 ; vKL")
    a("  v_cndmask_b32 v4, v4, v2, vcc")
    a("  v_lshlrev_b32 v4, 5, v4")
    a("  v_lshl_add_u32 v4, v1, 4, v4            ; vV")
    a("  v_bfe_u32 v6, v0, 2, 2")
    a("  v_and_b32 v7, 1, v0")
    a("  v_lshl_add_u32 v6, v6, 1, v7            ; t")
    a("  v_mul_u32_u24 v6, 1152, v6")
    a("  v_bfe_u32 v7, v0, 4, 1")
    a("  v_bfe_u32 v8, v0, 1, 1                  ; p")
    a("  v_lshl_add_u32 v7, v7, 1, v8")
    a("  v_mad_u32_u24 v6, v7, 36, v6")
    a("  v_lshl_add_u32 v7, v1, 4, v6            ; vQ")
    a("  v_mul_u32_u24 v8, 0xaaaa, v8")
    a("  v_add_u32 v8, 0xdddd4444, v8")
    a("  v_lshlrev_b32 v9, 4, v0                 ; lane*16")
    a("  v_lshlrev_b32 v10, 3, v0                ; lane*8")
    a("  s_cmp_ge_u32 s3, 4")
    a("  s_cbranch_scc1 K2_B")

    KM, V, KL = 112, 136, 184
    IDX, L16, L8, Z = 185, 187, 189, 196
    W16, W8, VQ, VQL = 197, 244, 245, 246
    QM, QL = (190, 248), (194, 252)
    ACC, AF, LF, PEND, CHK = 198, 234, 238, 242, 243
    O, RING = 64, 80
    VN2, VDMA = 247, 255
    w = Wave(a, KM, V, KL, IDX)
    a("  s_setprio 2")
    a("  v_mov_b32 v96, v3")
    a("  v_mov_b32 v97, v4")
    a("  v_mov_b32 v98, v5")
    a(f"  v_mov_b32 v{VQ}, v7")
    a(f"  v_mov_b32 v{VQL}, v6")
    a("  s_lshl_b32 s23, s6, 4")
    kv_setup(a, "s23")
    a("  s_waitcnt lgkmcnt(0)")
    srd(a, 8, 46, 47, WS_SIZE)
    vm = []
    def vload(tag, text):
        a(text); vm.append(tag)
    def vwait(tag):
        last = max((i for i, t in enumerate(vm) if t == tag), default=None)
        if last is None: return
        n = len(vm) - 1 - last
        a(f"  s_waitcnt vmcnt({n})")
        del vm[:last + 1]
    def qload(p, VQ, VQL, QM, QL):
        a(f"  s_add_u32 s24, s5, {144 * p}")
        vload(("q", p), f"  buffer_load_dword v{QL[p % 2]}, v{VQL}, s[8:11], s24 offen offset:32")
        vload(("q", p), f"  buffer_load_dwordx4 v[{QM[p % 2]}:{QM[p % 2] + 3}], v{VQ}, s[8:11], s24 offen")
    def issue(l, n=99):
        for i in range(min(n, len(l))):
            tag, pre, text = l.pop(0)
            if pre: a(pre)
            vload(tag, text)
    nb = [2]
    def bar():
        a("  s_waitcnt lgkmcnt(0)")
        if BEFORE[0]: stamp(a, nb[0])
        a("  s_barrier")
        if not BEFORE[0]: stamp(a, nb[0])
        nb[0] += 1
    kv = [kv_list(a, w, u, "v96", "v97", "v98") for u in range(NA)]
    f = Asm()
    f(f"  v_mov_b32 v{IDX}, v8")
    f(f"  v_mov_b32 v{L16}, v9")
    f(f"  v_mov_b32 v{L8}, v10")
    f(f"  v_add_u32 v{W16}, s7, v9")
    f(f"  v_add_u32 v{W8}, s7, v10")
    f(f"  v_mov_b32 v{Z}, 0")
    f(f"  v_mov_b32 v{QL[0] + 1}, 0")
    f(f"  v_mov_b32 v{QL[1] + 1}, 0")
    f(f"  v_mov_b32 v{CHK}, 0")
    f("  s_mul_i32 s25, s6, 288")
    f("  v_lshrrev_b32 v11, 4, v0")
    f("  v_mul_u32_u24 v13, 2304, v11")
    f("  v_and_b32 v12, 15, v0")
    f(f"  v_lshl_add_u32 v{VN2}, v12, 1, s25")
    f(f"  v_add_u32 v254, v{VN2}, v13")
    f(f"  v_add_u32 v254, {L_XI}, v254")
    f("  v_lshrrev_b32 v13, 2, v0")
    f("  v_mul_u32_u24 v13, 9216, v13")
    f("  v_and_b32 v12, 3, v0")
    f("  v_xor_b32 v12, v12, v11")
    f(f"  v_lshl_add_u32 v{VDMA}, v12, 4, v13")
    for i in range(36):
        f(f"  v_mov_b32 v{ACC + i}, 0")
    srd(f, 16, 38, 39, 2359296)
    srd(f, 32, 50, 51, 5308416)
    srd(f, 40, 52, 53, 5308416)
    srd(f, 60, 54, 55, 5308416)
    f("  s_mul_i32 s27, s6, 18432")
    f(f"  s_add_u32 s27, s27, {WS_WOL}")
    f("  s_mul_i32 s64, s56, 18432")
    f("  s_mul_i32 s26, s6, 4608")
    f("  s_add_u32 s64, s64, s26")
    f(f"  s_add_u32 s64, s64, {WS_PART}")
    f.lines.append("\n".join([f"  s_cmp_lt_u32 s2, {NF}",
        "  s_cselect_b32 s34, s34, 0",
        "  s_cselect_b32 s42, s42, 0",
        "  s_cselect_b32 s62, s62, 0",
        "  s_cselect_b32 s64, s64, 0x10000000"]))
    f("  s_mul_i32 s65, s6, 147456")
    f("  s_lshl_b32 s26, s56, 6")
    f("  s_add_u32 s65, s65, s26")
    f("  s_mul_i32 s66, s56, 36864")
    f("  s_mul_i32 s26, s6, 9216")
    f("  s_add_u32 s66, s66, s26")
    f("  s_lshl_b32 s67, s6, 10")
    f(f"  s_add_u32 s58, s67, {L_G}")
    f(f"  s_add_u32 s59, s67, {L_U}")
    f.lines.append("\n".join(["  s_bitcmp1_b32 s56, 0",
        "  s_cselect_b32 s67, s59, s58",
        "  s_cselect_b32 s59, s58, s59",
        "  s_mov_b32 s58, s67",
        "  s_cselect_b32 s26, s40, s32",
        "  s_cselect_b32 s40, s32, s40",
        "  s_mov_b32 s32, s26",
        "  s_cselect_b32 s26, s41, s33",
        "  s_cselect_b32 s41, s33, s41",
        "  s_mov_b32 s33, s26"]))
    f(f"  s_mul_i32 s67, s6, {NW8 * 2048}")
    f(f"  s_add_u32 s67, s67, {L_W8}")
    def fill(n):
        for i in range(min(n, len(f.lines))): a(f.lines.pop(0))
    qload(0, VQ, VQL, QM, QL)
    issue(kv[0], 3)
    fill(12)
    qload(1, VQ, VQL, QM, QL)
    for i in range(11):
        fill(8); issue(kv[0] or kv[1], 1)
    fill(99)
    stamp(a, 2)

    dmas = []
    for i in range(18):
        m, k = i // 9, i % 9
        dmas.append(("dma", f"  s_add_u32 m0, s{58 + m}, {4096 * k}\n  s_add_u32 s24, s65, {589824 * k}",
                     f"  buffer_load_dwordx4 v{VDMA}, s[{(32, 40)[m]}:{(35, 43)[m]}], s24 offen lds"))
    for i in range(2 * NW8):
        dmas.append(("dma", f"  s_add_u32 m0, s67, {1024 * i}\n  s_add_u32 s24, s27, {8 * 73728 + 1024 * i}",
                     f"  buffer_load_dwordx4 v{L16}, s[8:11], s24 offen lds"))
    if "nodma" in OPT: dmas = []
    def clears(F):
        d = f"v[{F}:{F + 3}]"
        for i in range(4): a(f"  v_mov_b32 v{F + i}, -1")
        a("  s_mul_i32 s24, s6, 2304")
        a("  s_add_u32 s24, s24, s5")
        for i in range(2):
            vload("clr", f"  buffer_store_dwordx4 {d}, v{L16}, s[16:19], s24 offen offset:{1024 * i} sc1")
        for i in range(4):
            vload("clr", f"  buffer_store_dwordx4 {d}, v{L16}, s[8:11], s64 offen offset:{1024 * i} sc1")
        a("  s_add_u32 s64, s64, 4096")
        a("  s_mov_b32 exec_hi, 0")
        vload("clr", f"  buffer_store_dwordx4 {d}, v{L16}, s[8:11], s64 offen sc1")
        a("  s_mov_b32 exec_lo, 0xffff")
        vload("clr", f"  buffer_store_dwordx4 {d}, v{L16}, s[16:19], s24 offen offset:2048 sc1")
        a("  s_lshl_b32 s24, s4, 2")
        a("  s_add_u32 s24, s24, s6")
        a("  s_lshl_b32 s24, s24, 5")
        a(f"  s_add_u32 s24, s24, {WS_STAT}")
        a("  s_mov_b32 exec_lo, 3")
        vload("clr", f"  buffer_store_dwordx4 {d}, v{L16}, s[8:11], s24 offen sc1")
        a("  s_mov_b64 exec, -1")
    def touch_down():
        a(f"  v_lshlrev_b32 v254, 3, v{L16}")
        vload("touch", f"  buffer_load_dword v{PEND}, v254, s[60:63], s66 offen")
        vload("touch", f"  buffer_load_dword v254, v254, s[60:63], s66 offen offset:1024")

    where = {}
    def wo_load(step, j, r):
        if "nowo" in OPT: where[step, j] = r; return
        where[step, j] = r
        a(f"  s_add_u32 s24, s27, {step * 73728 + j * 2048}")
        vload(("wo", step, j), f"  buffer_load_dwordx4 v[{r}:{r + 3}], v{L16}, s[8:11], s24 offen")
        vload(("wo", step, j), f"  buffer_load_dwordx4 v[{r + 4}:{r + 7}], v{L16}, s[8:11], s24 offen offset:1024")
    def op(step, j):
        f = AF if step < 8 else LF
        vwait(("wo", step, j))
        r = where[step, j]
        if "noOP" not in OPT:
            a(f"  v_smfmac_f32_16x16x64_bf16 v[{ACC + 4 * j}:{ACC + 4 * j + 3}], v[{f}:{f + 3}], v[{r}:{r + 7}], v{IDX}")
        return r
    def zero(o, ql):
        a(f"  v_mfma_f32_32x32x8_bf16 v[{o}:{o + 15}], v[{ql}:{ql + 1}], v[{Z}:{Z + 1}], 0   ; accumulator = 0")
    def flushA(q, o):
        b = pa_slot(q)
        a(f"  ds_write_b128 v{W16}, v[{o}:{o + 3}] offset:{b}")
        a(f"  ds_write_b128 v{W16}, v[{o + 4}:{o + 7}] offset:{b + 1024}")
        a(f"  ds_write_b64 v{W8}, v[{o + 8}:{o + 9}] offset:{b + 2048}")
    def R(p, TP, TA, TB):
        if "noR" in OPT: return
        b = L_PB + (p % 2) * 10240
        for s in range(4):
            a(f"  ds_read_b64 v[{TP + 2 * s}:{TP + 2 * s + 1}], v{L8} offset:{b + 2560 * s + 2048}")
        for s in range(4):
            a(f"  ds_read_b128 v[{TA + 4 * s}:{TA + 4 * s + 3}], v{L16} offset:{b + 2560 * s}")
        for s in range(4):
            a(f"  ds_read_b128 v[{TB + 4 * s}:{TB + 4 * s + 3}], v{L16} offset:{b + 2560 * s + 1024}")
        def add3(t, st):
            a(f"  v_pk_add_f32 v[{t}:{t + 1}], v[{t}:{t + 1}], v[{t + st}:{t + st + 1}]")
            a(f"  v_pk_add_f32 v[{t + 2 * st}:{t + 2 * st + 1}], v[{t + 2 * st}:{t + 2 * st + 1}], v[{t + 3 * st}:{t + 3 * st + 1}]")
            a(f"  v_pk_add_f32 v[{t}:{t + 1}], v[{t}:{t + 1}], v[{t + 2 * st}:{t + 2 * st + 1}]")
        rc = TP + 2
        a("  s_waitcnt lgkmcnt(8)")
        add3(TP, 2)
        a(f"  v_rcp_f32 v{rc}, v{TP + 1}")
        for h, T in enumerate((TA, TB)):
            a(f"  s_waitcnt lgkmcnt({4 - 4 * h})")
            add3(T, 4); add3(T + 2, 4)
            a(f"  v_pk_mul_f32 v[{T}:{T + 1}], v[{T}:{T + 1}], v[{rc}:{rc + 1}] op_sel_hi:[1,0]")
            a(f"  v_pk_mul_f32 v[{T + 2}:{T + 3}], v[{T + 2}:{T + 3}], v[{rc}:{rc + 1}] op_sel_hi:[1,0]")
            a(f"  v_cvt_pk_bf16_f32 v{AF + 2 * h}, v{T}, v{T + 1}")
            a(f"  v_cvt_pk_bf16_f32 v{AF + 2 * h + 1}, v{T + 2}, v{T + 3}")
        a(f"  v_max3_u32 v{CHK}, v{CHK}, v{TP + 1}, v{rc}")
        if p % 2 == 0:
            a(f"  v_mul_f32 v{PEND}, v{TP}, v{rc}")
        else:
            a(f"  v_mul_f32 v{TP}, v{TP}, v{rc}")
            a(f"  v_cvt_pk_bf16_f32 v{LF + p // 2}, v{PEND}, v{TP}")

    seq = [(0, 0), (1, 0), (0, 1), (1, 1), (0, 2), (1, 2)] + [(q, u) for q in range(2, 8) for u in range(3)]
    Oof = lambda q: RING if q == 1 else O
    vwait(("k", 0))
    stamp(a, 12, alt=True)
    w.qk2(0, 0, QL[0])
    zero(O, QL[0])
    zero(RING, QL[0])
    w.qkm(0, 0, 0, QM[0])
    w.qkm(0, 0, 1, QM[0])
    issue(kv[2], 3)
    nb[0] = 3
    for n, (q, u) in enumerate(seq):
        X, Y = 32 * (n % 2), 32 * ((n + 1) % 2)
        nx = seq[n + 1] if n + 1 < len(seq) else None
        p = q - 3
        if n == 0: prev = None
        elif u == 0 and q >= 3: prev = lambda: zero(O, QL[q % 2])
        else: prev = (Oof(seq[n - 1][0]), seq[n - 1][1])
        def hook(pos):
            if pos == "pre2b" and nx:
                vwait(("q", nx[0])); vwait(("k", nx[1]))
            if pos == "prepv0": vwait(("v", u, 1))
            if pos == "prepv2": vwait(("v", u, 3))
            if n == 0 and pos in ("early", "mid"):
                issue(kv[2], 2)
                if pos == "mid": a("  s_barrier")
            if n == 5 and pos == "mid": flushA(0, O)
            if n == 5 and pos == "late":
                a("  s_waitcnt lgkmcnt(0)"); zero(O, QL[0])
            if n == 6 and pos == "mid": flushA(1, RING)
            if pos == "late" and nx and nx[1] == 2 and nx[0] + 2 < 8: qload(nx[0] + 2, VQ, VQL, QM, QL)
        w.unit(X, Y, Oof(q), u, prev=prev, nxt=(nx[1], QM[nx[0] % 2], QL[nx[0] % 2]) if nx else None, hook=hook)
        if n < 10: stamp(a, 13 + n, alt=True)
        if q >= 3 and u == 0:
            bar()
            a("  s_setprio 2")
        if p == 0 and u == 1:
            for j in range(9):
                a(f"  ds_read_u16_d16_hi v{ACC + 4 * j}, v254 offset:{32 * j}")
                a(f"  ds_read_u16_d16_hi v{ACC + 4 * j + 1}, v254 offset:{32 * j + 1152}")
                if j == 5: a("  s_waitcnt lgkmcnt(6)")
        if p >= 1 and u == 1:
            for j in range(4, 8): wo_load(p, j - 4, op(p - 1, j))
        if q >= 2 and u == 2:
            F = X
            w.pv(O, X, u, 3)
            if p == -1:
                bar()
                for j in range(4): wo_load(0, j, RING + 8 * j)
                flushA(q, O)
                clears(F)
            else:
                wo_load(p, 8, F)
                if q == 7:
                    for j in range(3): wo_load(5, j, 112 + 8 * j)
                flushA(q, O)
                vwait("touch")
                if p == 0: a("  s_waitcnt lgkmcnt(3)")
                R(p, F + 8, F + 16, O)
                for j in range(4): wo_load(p, j + 4, op(p, j))
                op(p, 8)
                issue(dmas, (6, 6, 8, 8, 0)[p])
                if p == 1: touch_down()
            if q < 7:
                a("  s_waitcnt lgkmcnt(0)")
                a("  s_setprio 0")
    assert not dmas
    SY = lambda j: RING + 8 * j if j < 4 else 8 * (j - 4)
    WR = [184, 186, 188, 190, 191, 192, 193, 194, 195]
    for j in range(3, 6): wo_load(5, j, 112 + 8 * j)
    for j in range(4, 8): op(4, j)
    bar()
    for j in range(6, 9): wo_load(5, j, 112 + 8 * j)
    R(5, 40, 48, O)
    for j in range(9):
        wo_load(6, j, SY(j)); op(5, j)
    bar()
    for j in range(3): wo_load(7, j, 112 + 8 * j)
    R(6, 40, 48, O)
    vwait("dma")
    a(f"  v_add_u32 v254, s67, v{L16}")
    for j in range(9):
        if j + 3 < 9: wo_load(7, j + 3, 112 + 8 * (j + 3))
        r = op(6, j)
        if j < NW8:
            where[8, j] = r
            a(f"  ds_read_b128 v[{r}:{r + 3}], v254 offset:{2048 * j}")
            a(f"  ds_read_b128 v[{r + 4}:{r + 7}], v254 offset:{2048 * j + 1024}")
    for j in range(NW8, 9): wo_load(8, j, SY(j))
    for j in range(9): a(f"  v_mov_b32 v{WR[j]}, 0")
    a(f"  v_add_u32 v254, {L_WR}, v{VN2}")
    a("  s_waitcnt lgkmcnt(4)")
    for j in range(9):
        a(f"  ds_read_u16_d16_hi v{WR[j]}, v254 offset:{32 * j}")
    a("  s_waitcnt lgkmcnt(0)")
    a(f"  v_add_f32 v251, v{WR[0]}, v{WR[1]}")
    for j in range(2, 9): a(f"  v_add_f32 v251, v251, v{WR[j]}")
    for m in ("row_ror:8", "row_ror:4", "row_ror:2", "row_ror:1"):
        a(f"  v_add_f32_dpp v251, v251, v251 {m} row_mask:0xf bank_mask:0xf")
    a(f"  v_lshrrev_b32 v252, 7, v{L16}")
    a("  v_lshlrev_b32 v252, 4, v252")
    a("  s_lshl_b32 s24, s6, 7")
    a(f"  s_add_u32 s24, s24, {L_ST}")
    a("  v_add_u32 v252, s24, v252")
    a(f"  v_lshrrev_b32 v253, 8, v{L16}")
    a(f"  v_mul_u32_u24 v253, {HS}, v253")
    a(f"  v_lshl_add_u32 v253, v{VN2}, 2, v253")
    bar()
    R(7, 40, 48, O)
    def stats(j):
        r = ACC + 4 * j
        a(f"  v_pk_add_f32 v[{r}:{r + 1}], v[{r}:{r + 1}], v[{r + 2}:{r + 3}]")
        wr = WR[j]
        sel = f"op_sel:[0,{wr % 2},0] op_sel_hi:[1,{wr % 2},1]"
        wp = f"v[{wr - wr % 2}:{wr - wr % 2 + 1}]"
        if j == 0:
            a(f"  v_pk_mul_f32 v[42:43], v[{r}:{r + 1}], v[{r}:{r + 1}]")
            a(f"  v_pk_mul_f32 v[44:45], v[{r}:{r + 1}], {wp} op_sel_hi:[1,0]")
        else:
            if j == 1: a(f"  v_pk_add_f32 v[40:41], v[{ACC}:{ACC + 1}], v[{r}:{r + 1}]")
            else: a(f"  v_pk_add_f32 v[40:41], v[40:41], v[{r}:{r + 1}]")
            a(f"  v_pk_fma_f32 v[42:43], v[{r}:{r + 1}], v[{r}:{r + 1}], v[42:43]")
            a(f"  v_pk_fma_f32 v[44:45], v[{r}:{r + 1}], {wp}, v[44:45] {sel}")
    for j in range(4): op(7, j)
    for j in range(9):
        op(8, j)
        if j + 4 < 9: op(7, j + 4)
        if j >= 4: stats(j - 4)
    for j in range(5, 9): stats(j)
    for i in range(3):
        a(f"  v_add_f32_dpp v{248 + i}, v{40 + 2 * i}, v{40 + 2 * i} row_ror:8 row_mask:0xf bank_mask:0x3")
    for i in range(3):
        a(f"  v_add_f32_dpp v{248 + i}, v{41 + 2 * i}, v{41 + 2 * i} row_ror:8 row_mask:0xf bank_mask:0xc")
    for m in ("row_half_mirror", "quad_perm:[2,3,0,1]", "quad_perm:[1,0,3,2]"):
        for i in range(3):
            a(f"  v_add_f32_dpp v{248 + i}, v{248 + i}, v{248 + i} {m} row_mask:0xf bank_mask:0xf")
    a("  s_mov_b32 exec_lo, 0x01010101")
    a("  s_mov_b32 exec_hi, 0x01010101")
    a("  ds_write_b128 v252, v[248:251]")
    a("  s_mov_b64 exec, -1")
    bar()
    a("  s_setprio 0")
    for j in range(9):
        a(f"  ds_write_b64 v253, v[{ACC + 4 * j}:{ACC + 4 * j + 1}] offset:{L_H + 128 * j}")
    a(f"  v_lshrrev_b32 v0, 4, v{L16}")
    a("  s_branch K2_T2")

    a("K2_B:")
    KM, V, KL = 96, 136, 216
    IDX, W16, W8, VQ, VQL = 217, 219, 221, 223, 225
    QM, QL = (226, 230), (234, 236)
    OB = (64, 80)
    w = Wave(a, KM, V, KL, IDX)
    vm.clear()
    BEFORE[0] = False; nb[0] = 2
    a("  s_setprio 1")
    a(f"  v_mov_b32 v{IDX}, v8")
    a(f"  v_add_u32 v{W16}, s7, v9")
    a(f"  v_add_u32 v{W8}, s7, v10")
    a(f"  v_mov_b32 v{VQ}, v7")
    a(f"  v_mov_b32 v{VQL}, v6")
    a(f"  v_mov_b32 v{QL[0] + 1}, 0")
    a(f"  v_mov_b32 v{QL[1] + 1}, 0")
    a("  v_mov_b32 v238, v0")
    a("  s_lshl_b32 s23, s6, 4")
    a(f"  s_add_u32 s23, s23, {2 * NA}")
    kv_setup(a, "s23")
    a("  v_mov_b32 v240, v3")
    a("  v_mov_b32 v241, v4")
    a("  v_mov_b32 v242, v5")
    a("  s_waitcnt lgkmcnt(0)")
    srd(a, 8, 46, 47, WS_SIZE)
    srd(a, 16, 38, 39, 2359296)
    srd(a, 60, 54, 55, 5308416)
    srd(a, 12, 36, 37, 2359296)
    a("  s_cmp_eq_u32 s6, 0")
    a("  s_cselect_b32 s28, s36, s48")
    a("  s_cselect_b32 s29, s37, s49")
    a("  s_cselect_b32 s30, s14, 1152")
    a("  s_and_b32 s29, s29, 0xffff")
    a("  s_mov_b32 s31, 0x20000")
    a("  s_lshl_b32 s25, s6, 10")
    a("  s_add_u32 s26, s5, 8192")
    a("  s_sub_u32 s27, s25, 1024")
    a(f"  s_add_u32 s57, s27, {L_WR}")
    a("  s_cmp_eq_u32 s6, 0")
    a("  s_cselect_b32 s26, s26, s27")
    a(f"  s_cselect_b32 s27, {L_XI + 8192}, s57")
    a("  s_lshr_b32 s57, s2, 3")
    a("  s_lshl_b32 s57, s57, 2")
    a("  s_add_u32 s57, s57, s6")
    a("  s_mul_i32 s57, s57, 5184")
    a(f"  s_add_u32 s57, s57, {WS_WOL}")
    a("  v_mul_u32_u24 v243, 84, v0")
    a("  s_barrier")
    stamp(a, 2); nb[0] = 3
    kv = [kv_list(a, w, u, "v240", "v241", "v242") for u in range(NB)]
    qload(0, VQ, VQL, QM, QL)
    for u in range(NB): issue(kv[u])
    vload("touch", "  buffer_load_dword v243, v243, s[8:11], s57 offen")
    a(f"  s_add_u32 m0, s25, {L_XI}")
    a("  s_add_u32 s24, s25, s5")
    vload("xi", "  buffer_load_dwordx4 v9, s[12:15], s24 offen lds")
    a(f"  s_add_u32 m0, s25, {L_XI + 4096}")
    a("  s_add_u32 s24, s24, 4096")
    vload("xi", "  buffer_load_dwordx4 v9, s[12:15], s24 offen lds")
    a("  s_mov_b32 m0, s27")
    vload("xi", "  buffer_load_dwordx4 v9, s[28:31], s26 offen lds")
    qload(1, VQ, VQL, QM, QL)
    stamp(a, 12, alt=True)
    def init(p):
        if "noinit" in OPT: return
        b = pa_slot(p); o = OB[p % 2]
        a(f"  ds_read_b128 v[{o}:{o + 3}], v{W16} offset:{b}")
        a(f"  ds_read_b128 v[{o + 4}:{o + 7}], v{W16} offset:{b + 1024}")
        a(f"  ds_read_b64 v[{o + 8}:{o + 9}], v{W8} offset:{b + 2048}")
    def flushB(p):
        if "noflushB" in OPT: return
        b = L_PB + (p % 2) * 10240; o = OB[p % 2]
        a(f"  ds_write_b128 v{W16}, v[{o}:{o + 3}] offset:{b}")
        a(f"  ds_write_b128 v{W16}, v[{o + 4}:{o + 7}] offset:{b + 1024}")
        a(f"  ds_write_b64 v{W8}, v[{o + 8}:{o + 9}] offset:{b + 2048}")
    vwait(("k", 0))
    w.qk2(0, 0, QL[0])
    w.qkm(0, 0, 0, QM[0])
    w.qkm(0, 0, 1, QM[0])
    for p in range(8):
        for u in range(NB):
            n = NB * p + u
            last = (p == 7 and u == NB - 1)
            def hook(pos, p=p, u=u):
                if pos == "pre2b":
                    if u + 1 < NB: vwait(("k", u + 1))
                    elif p < 7: vwait(("q", p + 1))
                if pos == "prepv0":
                    vwait(("v", u, 1))
                    if u == 0 and p == 0:
                        bar()
                        init(0); init(1)
                        a("  s_waitcnt lgkmcnt(3)")
                        stamp(a, 13, alt=True)
                if pos == "prepv2": vwait(("v", u, 3))
                if pos == "mid" and u == 0 and p > 0: flushB(p - 1)
                if pos == "late" and u == 0 and p > 0: bar()
                if pos == "late" and u == (0 if p < 6 else 1) and p > 0:
                    if p < 7:
                        init(p + 1)
                        if "noqB" not in OPT: qload(p + 1, VQ, VQL, QM, QL)
                if pos == "late" and u == 3 and p < 7: a("  s_waitcnt lgkmcnt(0)")
            prev = None if n == 0 else ((OB[p % 2], u - 1) if u else (OB[(p - 1) % 2], NB - 1))
            nxt = None if last else ((u + 1, QM[p % 2], QL[p % 2]) if u + 1 < NB else (0, QM[(p + 1) % 2], QL[(p + 1) % 2]))
            w.unit(32 * (n % 2), 32 * ((n + 1) % 2), OB[p % 2], u, prev=prev, nxt=nxt, hook=hook)
            if n < 5: stamp(a, 14 + n, alt=True)
    w.pv(OB[1], 32 * ((8 * NB - 1) % 2), NB - 1, 3)
    flushB(7)
    bar()
    a("  v_mov_b32 v0, v238")
    a(f"  s_cmp_ge_u32 s2, {NF}")
    a("  s_cbranch_scc1 K2_NOPREP")
    ffn_prep(a, True)
    a("K2_NOPREP:")
    a("  v_lshrrev_b32 v1, 3, v0                 ; t")
    a("  v_and_b32 v2, 7, v0                     ; j")
    a(f"  v_lshlrev_b32 v3, 4, v1")
    a(f"  v_lshlrev_b32 v4, 4, v2")
    a("  s_lshl_b32 s24, s4, 3")
    a("  s_sub_u32 s24, 2047, s24")
    a("  v_sub_u32 v5, s24, v1                   ; 2047 - token t")
    a("  v_sub_u32 v6, s24, v2                   ; 2047 - token j")
    a("  v_lshlrev_b32 v7, 3, v1                 ; 8t")
    a("  s_movk_i32 s25, 0x7ff")
    a("  s_brev_b32 s26, 1")
    a("  s_lshl_b32 s27, s4, 5")
    a(f"  s_add_u32 s27, s27, {WS_KEYS}")
    a("  s_waitcnt lgkmcnt(0)")
    a("  s_barrier                               ; T1")
    stamp(a, 12)
    a("  s_cmp_lg_u32 s3, 4")
    a("  s_cbranch_scc1 K2_T2B")
    a("  s_setprio 3")
    for s in range(4):
        a(f"  ds_read_b128 v[{16 + 4 * s}:{19 + 4 * s}], v3 offset:{L_ST + 128 * s}")
        a(f"  ds_read_b128 v[{32 + 4 * s}:{35 + 4 * s}], v4 offset:{L_ST + 128 * s}")
    def both(f):
        f(16); f(32)
    a("  s_waitcnt lgkmcnt(4)")
    both(lambda b: (a(f"  v_pk_add_f32 v[{b}:{b + 1}], v[{b}:{b + 1}], v[{b + 4}:{b + 5}]"),
                    a(f"  v_pk_add_f32 v[{b + 2}:{b + 3}], v[{b + 2}:{b + 3}], v[{b + 6}:{b + 7}]")))
    a("  s_waitcnt lgkmcnt(0)")
    both(lambda b: (a(f"  v_pk_add_f32 v[{b + 8}:{b + 9}], v[{b + 8}:{b + 9}], v[{b + 12}:{b + 13}]"),
                    a(f"  v_pk_add_f32 v[{b + 10}:{b + 11}], v[{b + 10}:{b + 11}], v[{b + 14}:{b + 15}]")))
    both(lambda b: (a(f"  v_pk_add_f32 v[{b}:{b + 1}], v[{b}:{b + 1}], v[{b + 8}:{b + 9}]"),
                    a(f"  v_pk_add_f32 v[{b + 2}:{b + 3}], v[{b + 2}:{b + 3}], v[{b + 10}:{b + 11}]")))
    both(lambda b: a(f"  v_mul_f32 v{b}, {f32(1.0 / 576)}, v{b}            ; mean"))
    both(lambda b: a(f"  v_mul_f32 v{b + 1}, {f32(1.0 / 576)}, v{b + 1}"))
    both(lambda b: a(f"  v_fma_f32 v{b + 1}, -v{b}, v{b}, v{b + 1}          ; var"))
    both(lambda b: a(f"  v_max_f32 v{b + 1}, 0, v{b + 1}"))
    both(lambda b: a(f"  v_add_f32 v{b + 1}, {f32(1e-5)}, v{b + 1}"))
    both(lambda b: a(f"  v_rsq_f32 v{b + 1}, v{b + 1}                 ; rstd"))
    both(lambda b: a(f"  v_fma_f32 v{b + 2}, -v{b}, v{b + 3}, v{b + 2}"))
    both(lambda b: a(f"  v_mul_f32 v{b + 2}, v{b + 2}, v{b + 1}"))
    both(lambda b: a(f"  v_ashrrev_i32 v{b + 4}, 31, v{b + 2}"))
    both(lambda b: a(f"  v_or_b32 v{b + 4}, s26, v{b + 4}"))
    both(lambda b: a(f"  v_xor_b32 v{b + 4}, v{b + 4}, v{b + 2}"))
    a("  v_bfi_b32 v20, s25, v5, v20")
    a("  v_bfi_b32 v36, s25, v6, v36")
    a("  v_cmp_gt_u32 vcc, v36, v20")
    a("  v_max_u32 v20, 1, v20")
    a("  v_lshrrev_b64 v[8:9], v7, vcc")
    a("  v_and_b32 v8, 0xff, v8")
    a("  v_bcnt_u32_b32 v8, v8, 0")
    a("  v_lshlrev_b32 v8, 2, v8")
    a("  s_mov_b32 exec_lo, 0x01010101")
    a("  s_mov_b32 exec_hi, 0x01010101")
    a("  buffer_store_dword v20, v8, s[8:11], s27 offen sc1")
    a("  v_add_f32 v21, 1.0, v17")
    a("  v_mul_f32 v22, -v16, v17")
    a("  v_lshrrev_b32 v9, 1, v1")
    a("  v_and_b32 v10, 1, v1")
    a("  v_lshlrev_b32 v9, 4, v9")
    a("  v_lshl_add_u32 v9, v10, 2, v9")
    a(f"  v_add_u32 v9, {L_MR}, v9")
    a("  ds_write2_b32 v9, v21, v22 offset0:0 offset1:2")
    a("  v_rcp_f32 v21, v21")
    a(f"  v_mul_f32 v19, {f32(-math.log2(math.e))}, v18")
    a("  v_exp_f32 v19, v19")
    a("  v_mul_f32 v17, v17, v21")
    a("  v_add_f32 v19, 1.0, v19")
    a("  v_rcp_f32 v19, v19")
    a("  s_lshl_b32 s27, s4, 7")
    a(f"  s_add_u32 s27, s27, {WS_STAT}")
    a("  buffer_store_dwordx4 v[16:19], v3, s[8:11], s27 offen sc1")
    a("  s_mov_b64 exec, -1")
    a("  s_waitcnt vmcnt(2)")
    a("  s_branch K2_T2")
    a("K2_T2B:")
    a("  s_waitcnt vmcnt(0)")

    a("K2_T2:")
    a("  s_lshr_b32 s24, s3, 1                   ; rg")
    a("  s_and_b32 s25, s3, 1")
    a(f"  s_mul_i32 s26, s24, {HS}")
    a("  s_mul_i32 s27, s25, 2304")
    a("  s_add_u32 s26, s26, s27")
    a("  v_lshl_add_u32 v1, v0, 6, s26")
    a("  s_lshl_b32 s26, s24, 4")
    a(f"  s_add_u32 s26, s26, {L_MR}")
    a("  v_mov_b32 v2, s26")
    a("  s_mul_i32 s26, s24, 2304")
    a("  s_mul_i32 s27, s25, 576")
    a("  s_add_u32 s26, s26, s27")
    a("  s_add_u32 s26, s26, s5")
    a("  v_lshlrev_b32 v3, 4, v0")
    a("  s_waitcnt lgkmcnt(0)")
    stamp(a, 13)
    a("  s_barrier                               ; T2")
    a("  s_mov_b32 exec_hi, 0xf")
    a("  ds_read_b128 v[4:7], v2")
    for i in range(4):
        a(f"  ds_read_b128 v[{8 + 4 * i}:{11 + 4 * i}], v1 offset:{L_H + 16 * i}")
    for i in range(4):
        a(f"  s_waitcnt lgkmcnt({3 - i})")
        r = 8 + 4 * i
        a(f"  v_pk_fma_f32 v[{r}:{r + 1}], v[{r}:{r + 1}], v[4:5], v[6:7]")
        a(f"  v_pk_fma_f32 v[{r + 2}:{r + 3}], v[{r + 2}:{r + 3}], v[4:5], v[6:7]")
        a(f"  v_cvt_pk_bf16_f32 v{24 + i}, v{r}, v{r + 2}")
        a(f"  v_cvt_pk_bf16_f32 v{28 + i}, v{r + 1}, v{r + 3}")
    a("  buffer_store_dwordx4 v[24:27], v3, s[16:19], s26 offen sc1")
    a("  buffer_store_dwordx4 v[28:31], v3, s[16:19], s26 offen offset:1152 sc1")
    ffn_tail(a)
    a("K2_END:")
    stamp_dump(a, 1, "s3")
    a("K2_EXIT:")
    a("  s_endpgm")
    return a.lines
```

```python
import struct, math
WS_Q = 0
WS_KM = 0x240000
WS_KL = 0x250000
WS_VT = 0x252000
WS_KEYS = 0x266000
WS_STAT = 0x268000
WS_WOL = 0x270000
WS_PART = 0x312000
WS_END = 0x59A000
QSCALE = 18 ** -0.5 * math.log2(math.e)
def f32(x):
    return "0x%08x" % struct.unpack("<I", struct.pack("<f", x))[0]

import os
DIAG = int(os.environ.get("DIAG", "0"))
WS_DBG = WS_END
WS_SIZE = WS_END + (2 * 256 * 8 * 128 if DIAG else 0)
ST0 = 74
STAMPS = [int(x) for x in os.environ.get("STAMPS", "").split(",") if x]
if STAMPS: STAMPS += [0, 1, 24, 25]
OPT = set(os.environ.get("OPT", "").split(","))
def stamp(a, i, real=False, alt=False):
    if "alt" in OPT and 12 <= i <= 23 and not alt: return
    if alt and "alt" not in OPT: return
    if not DIAG or (STAMPS and i not in STAMPS): return
    a(f"  {'s_memrealtime' if (real or DIAG == 2) else 's_memtime'} s[100:101]")
    a("  s_waitcnt lgkmcnt(0)")
    a(f"  s_mov_b32 s{ST0 + i}, s100")
def stamp_init(a):
    if not DIAG: return
    for i in range(26): a(f"  s_mov_b32 s{ST0 + i}, 0")
    stamp(a, 0, True); stamp(a, 1)
def stamp_dump(a, kern, swave):
    if not DIAG: return
    stamp(a, 24); stamp(a, 25, True)
    if kern == 0: a("  s_sleep 20")
    a("  s_mov_b64 exec, 1")
    a(f"  s_lshl_b32 s100, s2, 3")
    a(f"  s_add_u32 s100, s100, {swave}")
    a(f"  s_lshl_b32 s100, s100, 7")
    a(f"  s_add_u32 s100, s100, {WS_DBG + kern * 256 * 8 * 128}")
    a("  s_nop 4")
    a("  v_mov_b32 v0, 0")
    for i in range(26):
        a(f"  v_mov_b32 v1, s{ST0 + i}")
        a(f"  buffer_store_dword v1, v0, s[8:11], s100 offen offset:{4 * i}")
```

```python
import sys
from asmlib import *
from layout import *
import k1, k2

NAME = "sequential_preLN__grouped_kv_mqa__moe_arch_mod__prompt"
def kd(name, vgpr, sgpr=102 if DIAG else 96):
    return f'''.amdhsa_kernel {name}
  .amdhsa_next_free_vgpr {vgpr}
  .amdhsa_next_free_sgpr {sgpr}
  .amdhsa_accum_offset {(vgpr + 3) // 4 * 4}
  .amdhsa_group_segment_fixed_size 0
  .amdhsa_kernarg_size 104
  .amdhsa_user_sgpr_count 2
  .amdhsa_user_sgpr_kernarg_segment_ptr 1
  .amdhsa_system_sgpr_workgroup_id_x 1
.end_amdhsa_kernel
'''
def build(verbose=True):
    kernels = [("k1_kernel", k1.gen_k1(), 120, 256, 512, k1.K1_LDS,
                [lambda l, n: False, lambda l, n: l == "K1_COMP", lambda l, n: l in ("K1_COMP", "K1_KV"), lambda l, n: l in ("K1_COMP", "K1_KV", "K1_V"), lambda l, n: l == "K1_SPARE"]),
               ("k2_kernel", k2.gen_k2(), 256, 256, 512, k2.K2_LDS,
                [lambda l, n: False, lambda l, n: l == "K2_ROWS",
                 lambda l, n: l in ("K2_B", "K2_CS", "K2_ROW1", "K2_GU") and n == 1,
                 lambda l, n: l in ("K2_B", "K2_T2B", "K2_CS", "K2_ROW1", "K2_GU", "K2_D2", "K2_D3") and n == 1])]
    head = open("header.txt").read()
    for n, _, _, g, b, lds, _ in kernels:
        head += f"; @launch kernel={n} grid=({g},1,1) block=({b},1,1) lds={lds}\n"
    s = head + '.amdgcn_target "amdgcn-amd-amdhsa--gfx950"\n.text\n'
    for n, lines, vg, g, b, lds, paths in kernels:
        rep = []
        ins = fix_hazards(lines, rep)
        if verbose:
            print(n, "instructions:", sum(1 for i in ins if i.mn), "nops inserted:", len(rep))
            for r in rep: print("   nop", r)
        for d in paths:
            for e in check_waits(trace_path(ins, n, d), n): print("WAIT ERROR", e)
        s += f".globl {n}\n.p2align 8\n.type {n},@function\n" + "\n".join(i.text for i in ins) + "\n"
    s += '.section .rodata,"a"\n'
    for n, _, vg, *_ in kernels:
        s += ".p2align 6\n" + kd(n, vg)
    return s
if __name__ == "__main__":
    out = sys.argv[1] if len(sys.argv) > 1 else f"cdna_kernels/{NAME}.s"
    open(out, "w").write(build())
```

```python
from asmlib import *
from layout import *

def srd(a, s, lo, hi, size):
    a(f"  s_mov_b32 s{s}, s{lo}")
    a(f"  s_and_b32 s{s+1}, s{hi}, 0xffff")
    a(f"  s_mov_b32 s{s+2}, {size}")
    a(f"  s_mov_b32 s{s+3}, 0x20000")

SLOT = 20480
NSLOT = 7
DEPTH = int(os.environ.get("DEPTH", "3"))
L_STAT = NSLOT * SLOT
L_CS = L_STAT + 1536
L_TR = L_CS + 512
K1_LDS = L_TR + 4 * 3840
SC = " sc1"

NTW = " nt" if "ntw" in OPT else ""
NTX = "" if "plx" in OPT else " nt"

def zero_counter(a):
    a("  v_mov_b32 v122, 0")
    a(f"  v_mov_b32 v123, {L_CNT}")
    a("  ds_write_b32 v123, v122")
    a("  s_waitcnt lgkmcnt(0)")
def flag_slot(a):
    a("  s_and_b32 s60, s2, 7")
    a("  s_mul_i32 s60, s60, 3")
    a("  s_add_u32 s60, s60, s34")
    a("  s_mul_i32 s61, s60, 9")
    a("  s_add_u32 s61, s61, s5")
    a("  s_add_u32 s61, s61, 40")
    a("  s_cmp_eq_u32 s5, 9")
    a("  s_cselect_b32 s60, s60, s61")
    a("  s_lshl_b32 s60, s60, 7")
    a(f"  s_add_u32 s60, s60, {WS_FLAG}")

def gen_k1(a):
    a(KNAME + ":")
    a("  s_cmp_ge_u32 s2, 256")
    a("  s_cbranch_scc1 K2_EXIT")
    stamp_init(a)
    a("  s_load_dwordx8 s[36:43], s[0:1], 0")
    a("  s_load_dwordx2 s[44:45], s[0:1], 32     ; wo")
    a("  s_load_dwordx2 s[46:47], s[0:1], 96     ; ws")
    a("  s_load_dwordx8 s[48:55], s[0:1], 48")
    a("  s_load_dwordx4 s[64:67], s[0:1], 80")
    a("  v_lshrrev_b32 v1, 6, v0")
    a("  v_and_b32 v0, 63, v0                    ; lane")
    a("  v_readfirstlane_b32 s3, v1              ; wave")
    a("  s_and_b32 s4, s2, 7")
    a("  s_lshr_b32 s5, s2, 3")
    a("  s_cmp_ge_u32 s5, 30")
    a("  s_cbranch_scc1 K1_SPARE")
    a("  s_mul_i32 s34, s5, 26")
    a("  s_lshr_b32 s34, s34, 8                  ; T 0..2")
    a("  s_mul_i32 s6, s34, 10")
    a("  s_sub_u32 s5, s5, s6")
    a("  s_lshl_b32 s4, s4, 8")
    a("  s_mul_i32 s6, s34, 80")
    a("  s_add_u32 s4, s4, s6")
    a("  s_add_u32 s35, s4, 96")
    a("  s_min_u32 s6, s6, 16")
    a("  s_add_u32 s4, s4, s6")
    a("  s_cmp_lt_u32 s3, 4")
    a("  s_cbranch_scc1 K1_COMP")

    if "noprio" not in OPT: a("  s_setprio 1")
    a("  s_sub_u32 s63, s3, 4                    ; h")
    a("  v_lshrrev_b32 v1, 3, v0")
    a("  v_mul_u32_u24 v2, 1152, v1")
    a("  v_lshrrev_b32 v3, 4, v0")
    a("  v_and_b32 v4, 7, v0")
    a("  v_xor_b32 v3, v3, v4")
    a("  s_lshl_b32 s6, s63, 2")
    a("  s_and_b32 s6, s6, 4")
    a("  v_xor_b32 v3, s6, v3")
    a("  v_lshl_add_u32 v10, v3, 4, v2           ; blocks 0, 2")
    a("  v_xor_b32 v11, 64, v10")
    a("  v_add_u32 v11, 9216, v11                ; block 1")
    a("  v_add_u32 v12, 18432, v10")
    a("  v_lshrrev_b32 v2, 2, v0")
    a("  v_lshrrev_b32 v3, 5, v0")
    a("  v_lshlrev_b32 v3, 1, v3")
    a("  v_and_b32 v4, 3, v0")
    a("  v_xor_b32 v3, v3, v4")
    a("  v_lshlrev_b32 v3, 4, v3")
    a("  s_cmp_eq_u32 s5, 9")
    a("  s_cselect_b32 s7, 36, 1152")
    a("  s_cselect_b32 s20, 20, 48")
    a("  v_min_u32 v3, s20, v3")
    a("  v_mad_u32_u24 v13, v2, s7, v3")
    a("  s_mul_i32 s21, s63, 3072")
    a("  s_lshl_b32 s22, s63, 10")
    a("  s_add_u32 s22, s22, 12288")
    a("  s_mul_i32 s23, s34, 3")
    a("  s_add_u32 s23, s23, s5")
    a("  s_mul_i32 s24, s23, 7282")
    a("  s_lshr_b32 s24, s24, 16")
    a("  s_mul_i32 s24, s24, 9")
    a("  s_sub_u32 s23, s23, s24")
    a("  s_mov_b32 s6, s23")
    a("  s_mul_i32 s24, s63, 24")
    a("  s_add_u32 s24, s24, s4")
    a("  s_mul_i32 s24, s24, 1152")
    a("  s_lshl_b32 s25, s7, 4")
    a("  s_mul_i32 s25, s25, s63")
    a("  s_lshl_b32 s26, s5, 7")
    a("  s_cmp_eq_u32 s5, 9")
    a("  s_cselect_b32 s26, 0, s26")
    a("  s_cselect_b32 s27, 0, 64")
    a("  s_add_u32 s25, s25, s26")
    a("  s_lshl_b32 s7, s7, 6")
    a("  s_waitcnt lgkmcnt(0)")
    srd(a, 12, 36, 37, 0)
    a("  s_mul_i32 s14, s35, 1152")
    a("  s_cmp_eq_u32 s5, 9")
    a("  s_cselect_b32 s16, s40, s38")
    a("  s_cselect_b32 s17, s41, s39")
    a("  s_cselect_b32 s28, s42, s38")
    a("  s_cselect_b32 s29, s43, s39")
    a("  s_mov_b32 s18, 663552")
    a("  s_cselect_b32 s18, 20736, s18")
    a("  s_mov_b32 s30, s18")
    a("  s_and_b32 s17, s17, 0xffff")
    a("  s_and_b32 s29, s29, 0xffff")
    a("  s_mov_b32 s19, 0x20000")
    a("  s_mov_b32 s31, 0x20000")
    order = []
    def dma(k, c):
        b = (c % NSLOT) * SLOT
        if k == "w":
            a("  s_mul_i32 s33, s6, s7")
            a(f"  s_add_u32 m0, s22, {b}")
            a("  s_add_u32 s33, s33, s25")
            a("  buffer_load_dwordx4 v13, s[16:19], s33 offen" + NTW + " lds")
            a(f"  s_add_u32 m0, s22, {b + 4096}")
            a("  s_add_u32 s33, s33, s27")
            a("  buffer_load_dwordx4 v13, s[28:31], s33 offen" + NTW + " lds")
            a("  s_add_u32 s6, s6, 1")
            a("  s_cmp_eq_u32 s6, 9")
            a("  s_cselect_b32 s6, 0, s6")
            order.extend([c] * 2)
        else:
            a("  s_lshl_b32 s32, s23, 7")
            a(f"  s_add_u32 m0, s21, {b}")
            a("  s_add_u32 s32, s32, s24")
            a("  buffer_load_dwordx4 v10, s[12:15], s32 offen" + NTX + " lds")
            a(f"  s_add_u32 m0, s21, {b + 1024}")
            a("  s_add_u32 s23, s23, 1")
            a("  buffer_load_dwordx4 v11, s[12:15], s32 offen" + NTX + " lds")
            a(f"  s_add_u32 m0, s21, {b + 2048}")
            a("  s_cmp_eq_u32 s23, 9")
            a("  s_cselect_b32 s23, 0, s23")
            a("  buffer_load_dwordx4 v12, s[12:15], s32 offen" + NTX + " lds")
            order.extend([c] * 3)
    sched = os.environ.get("K1S", "w0 x0 w1 x1 w2 x2 | w3 x3 | w4 x4 | w5 x5 | w6 x6 | w7 x7 | w8 x8 | | |").split("|")
    ng = 0
    def stage(n):
        nonlocal ng
        for i in range(n): gu(a, ng); ng += 1; order.append(-1)
    for c in range(9):
        for t in sched[c].split(): dma(t[0], int(t[1]))
        assert order.count(c) == 5 and max(order) < c + NSLOT - 1
        if c == 6:
            assert len(order) == 45
            flag_slot(a)
            gu_setup(a)
        if c >= 7: stage(GUB[c - 7])
        a(f"  s_waitcnt vmcnt({len(order) - 1 - max(i for i, x in enumerate(order) if x == c)})")
        a("  s_barrier")
    stage(GUB[2])
    a("  s_barrier                               ; S")
    stage(GUB[3])
    a("  s_branch K2_B")

    a("K1_COMP:")
    if "nocp" not in OPT:
        a("  s_cmp_lg_u32 s3, 0")
        a("  s_cbranch_scc1 K1_NOPF")
        a("  s_getpc_b64 s[68:69]")
        a("K1_PC0:")
        a(f"  s_sub_u32 s68, s68, K1_PC0-{KNAME}")
        a("  s_subb_u32 s69, s69, 0")
        a("  v_lshlrev_b32 v120, 7, v0")
        a("  global_load_dword v120, v120, s[68:69]")
        a("K1_NOPF:")
    flag_slot(a)
    a("  s_waitcnt lgkmcnt(0)")
    srd(a, 8, 46, 47, WS_SIZE)
    a("  s_cmp_lg_u32 s3, 1")
    a("  s_cbranch_scc1 K1_NORS")
    zero_counter(a)
    a("K1_NORS:")
    a("  s_lshr_b32 s6, s3, 1                    ; tw")
    a("  s_and_b32 s7, s3, 1                     ; cw")
    a("  v_lshrrev_b32 v1, 4, v0                 ; g")
    a("  v_and_b32 v2, 15, v0                    ; j")
    a("  v_lshrrev_b32 v3, 1, v2")
    a("  v_xor_b32 v3, v3, v1")
    a("  v_lshlrev_b32 v3, 4, v3")
    a("  v_lshl_add_u32 v3, v2, 7, v3")
    a("  s_mul_i32 s20, s6, 6144")
    a("  s_xor_b32 s23, s6, s7")
    a("  s_lshl_b32 s24, s23, 6")
    a("  v_xor_b32 v3, s24, v3")
    a("  v_add_u32 v4, s20, v3")
    a("  v_xor_b32 v5, 64, v4")
    a("  v_bfe_u32 v3, v0, 2, 2")
    a("  v_lshl_add_u32 v3, v1, 3, v3")
    a("  v_lshlrev_b32 v3, 6, v3")
    a("  v_and_b32 v6, 1, v1")
    a("  v_lshl_add_u32 v3, v6, 5, v3")
    a("  v_and_b32 v6, 3, v0")
    a("  v_lshl_add_u32 v3, v6, 3, v3")
    a("  s_lshl_b32 s20, s7, 12")
    a("  s_add_u32 s20, s20, 12288")
    a("  s_lshl_b32 s24, s23, 11")
    a("  s_add_u32 s20, s20, s24")
    a("  v_add_u32 v6, s20, v3")
    a("  v_xor_b32 v7, 32, v6                    ; tile 1")
    a("  v_xor_b32 v8, 0x800, v6")
    a("  v_xor_b32 v9, 0x800, v7")
    ACC, CS, SX, SQ, ONE, FR = 20, 44, 52, 64, 76, 80
    for i in range(56): a(f"  v_mov_b32 v{ACC + i}, 0")
    for i in range(4): a(f"  v_mov_b32 v{ONE + i}, 0x3f803f80")
    a("  s_mul_i32 s20, s6, 768")
    a(f"  s_add_u32 s20, s20, {L_STAT}")
    a("  v_lshl_add_u32 v10, v2, 4, s20")
    a("  s_lshl_b32 s24, s7, 3")
    a("  v_add_u32 v11, s24, v10")
    a("  s_lshl_b32 s20, s3, 7")
    a(f"  s_add_u32 s20, s20, {L_CS}")
    a("  v_lshl_add_u32 v12, v1, 4, s20")
    a("  v_xor_b32 v13, 0x100, v12               ; partner's")
    a("  s_mul_i32 s20, s3, 3840")
    a(f"  s_add_u32 s20, s20, {L_TR}")
    a("  v_mul_u32_u24 v14, 80, v2")
    a("  v_lshl_add_u32 v14, v1, 3, v14")
    a("  v_add_u32 v14, s20, v14")
    a("  v_lshrrev_b32 v3, 2, v0")
    a("  v_and_b32 v17, 3, v0")
    a("  v_mul_u32_u24 v15, 80, v3")
    a("  v_lshl_add_u32 v15, v17, 4, v15")
    a("  v_add_u32 v15, s20, v15")
    a("  v_mul_u32_u24 v16, 1152, v3")
    a("  v_lshl_add_u32 v16, v17, 4, v16         ; Q store")
    for i, m in enumerate((0x22222222, 0x44444444, 0x88888888)):
        a(f"  s_mov_b32 s{26 + 2 * i}, {hex(m)}")
        a(f"  s_mov_b32 s{27 + 2 * i}, {hex(m)}")
    a("  s_mul_i32 s21, s6, 48")
    a("  s_add_u32 s21, s21, s4")
    a(f"  s_mov_b32 s22, {f32(QSCALE)}")
    a("  s_cmp_eq_u32 s5, 9")
    a("  s_cselect_b32 s22, 1.0, s22")
    a("  s_mul_i32 s20, s21, 1152")
    a("  s_lshl_b32 s23, s5, 7")
    a("  s_add_u32 s20, s20, s23")
    a("  s_lshl_b32 s23, s7, 6")
    a("  s_add_u32 s23, s20, s23")
    a("  s_add_u32 s24, s23, 18432")
    a("  s_add_u32 s25, s23, 36864")
    srd(a, 12, 46, 47, 0)
    a("  s_mul_i32 s14, s35, 1152")
    def reads(c, s):
        b = (c % NSLOT % 3) * SLOT
        f = FR + 20 * s
        l = []
        for t in range(2):
            for j in range(2):
                l.append(f"  ds_read_b64_tr_b16 v[{f + 4 * t + 2 * j}:{f + 4 * t + 2 * j + 1}], v{6 + 2 * s + t} offset:{b + 256 * j}")
        x = [f"  ds_read_b128 v[{f + 8 + 4 * i}:{f + 11 + 4 * i}], v{4 + s} offset:{b + 2048 * i}" for i in range(3)]
        return [l[0], l[1], x[0], l[2], l[3], x[1], x[2]]
    def mfma(d, x, y):
        a(f"  v_mfma_f32_16x16x32_bf16 v[{d}:{d + 3}], v[{x}:{x + 3}], v[{y}:{y + 3}], v[{d}:{d + 3}]")
    def mf(s, k, t=0, i=0):
        W, X = FR + 20 * s + 4 * t, FR + 20 * s + 8 + 4 * i
        if k == "m": mfma(ACC + 8 * i + 4 * t, W, X)
        if k == "c": mfma(CS + 4 * t, W, ONE)
        if k == "x": mfma(SX + 4 * i, ONE, X)
        if k == "q": mfma(SQ + 4 * i, X, X)
    first = [(2, "c", 0, 0), (3, "q", 0, 0), (3, "x", 0, 0), (5, "c", 1, 0), (6, "q", 0, 1), (6, "x", 0, 1), (7, "q", 0, 2), (7, "x", 0, 2)]
    mains = [("m", t, i) for i in range(3) for t in range(2)]
    for c in range(9):
        a("  s_barrier")
        if c in (0, 8): stamp(a, 12 + c // 8, alt="alt2")
        if c % NSLOT in (3, 6):
            for r in range(4, 10): a(f"  v_add_u32 v{r}, {3 * SLOT}, v{r}")
        if c == NSLOT:
            for r in range(4, 10): a(f"  v_subrev_u32 v{r}, {6 * SLOT}, v{r}")
        r0 = reads(c, 0)
        for i in range(7):
            a(r0[i])
            if c and 1 <= i: mf(1, *mains[i - 1])
        r1 = reads(c, 1)
        last = None
        for m, (n, k, t, i) in enumerate(first):
            if n != last: a(f"  s_waitcnt lgkmcnt({7 + min(m, 7) - n})")
            last = n
            mf(0, k, t, i)
            if r1: a(r1.pop(0))
        for m in mains: mf(0, *m)
        a("  s_waitcnt lgkmcnt(0)")
    for i in range(3):
        q = SQ + 4 * i
        mf(1, *mains[i])
        a(f"  v_cndmask_b32 v{SX + 4 * i + 1}, v{q}, v{q + 1}, s[26:27]")
        a(f"  v_cndmask_b32 v{SX + 4 * i + 1}, v{SX + 4 * i + 1}, v{q + 2}, s[28:29]")
        a(f"  v_cndmask_b32 v{SX + 4 * i + 1}, v{SX + 4 * i + 1}, v{q + 3}, s[30:31]")
    a("  s_mov_b32 exec_lo, 0x00f0000f")
    a("  s_mov_b32 exec_hi, 0xf0000f00")
    for i in range(3):
        a(f"  ds_write_b64 v11, v[{SX + 4 * i}:{SX + 4 * i + 1}] offset:{256 * i}")
    a("  s_mov_b32 exec_lo, 0x00010001")
    a("  s_mov_b32 exec_hi, 0x00010001")
    for t in range(2):
        a(f"  ds_write_b128 v12, v[{CS + 4 * t}:{CS + 4 * t + 3}] offset:{64 * t}")
    a("  s_mov_b64 exec, -1")
    for m in mains[3:]: mf(1, *m)
    a("  s_waitcnt lgkmcnt(0)")
    a("  s_barrier                               ; S")
    stamp(a, 14, alt="alt2")
    for i in range(3):
        a(f"  ds_read_b128 v[{SX + 4 * i}:{SX + 4 * i + 3}], v10 offset:{256 * i}")
    for t in range(2):
        a(f"  ds_read_b128 v[{SQ + 4 * t}:{SQ + 4 * t + 3}], v13 offset:{64 * t}")
    a(f"  v_mov_b32 v18, {f32(-1.0 / 576)}")
    a(f"  v_mov_b32 v19, {f32(1.0 / 576)}")
    a("  s_waitcnt lgkmcnt(2)")
    def tri(f):
        for i in range(3): a(f(SX + 4 * i))
    tri(lambda r: f"  v_pk_add_f32 v[{r}:{r + 1}], v[{r}:{r + 1}], v[{r + 2}:{r + 3}]")
    tri(lambda r: f"  v_pk_mul_f32 v[{r}:{r + 1}], v[{r}:{r + 1}], v[18:19]")
    tri(lambda r: f"  v_fma_f32 v{r + 1}, -v{r}, v{r}, v{r + 1}          ; var")
    tri(lambda r: f"  v_max_f32 v{r + 1}, 0, v{r + 1}")
    tri(lambda r: f"  v_add_f32 v{r + 1}, {f32(1e-5)}, v{r + 1}")
    tri(lambda r: f"  v_rsq_f32 v{r + 1}, v{r + 1}                 ; rstd")
    a("  s_waitcnt lgkmcnt(0)")
    for i in range(4):
        a(f"  v_pk_add_f32 v[{CS + 2 * i}:{CS + 2 * i + 1}], v[{CS + 2 * i}:{CS + 2 * i + 1}], v[{SQ + 2 * i}:{SQ + 2 * i + 1}]")
    tri(lambda r: f"  v_mul_f32 v{r + 1}, s22, v{r + 1}")
    PK, TR = 80, 92
    def scale(i):
        st = SX + 4 * i
        for t in range(2):
            d = ACC + 8 * i + 4 * t
            for h in range(2):
                r = d + 2 * h
                a(f"  v_pk_fma_f32 v[{r}:{r + 1}], v[{CS + 4 * t + 2 * h}:{CS + 4 * t + 2 * h + 1}], v[{st}:{st + 1}], v[{r}:{r + 1}] op_sel_hi:[1,0,1]")
                a(f"  v_pk_mul_f32 v[{r}:{r + 1}], v[{r}:{r + 1}], v[{st}:{st + 1}] op_sel:[0,1] op_sel_hi:[1,1]")
            a(f"  v_cvt_pk_bf16_f32 v{PK + 4 * i + 2 * t}, v{d}, v{d + 1}")
            a(f"  v_cvt_pk_bf16_f32 v{PK + 1 + 4 * i + 2 * t}, v{d + 2}, v{d + 3}")
    a("  s_cmp_eq_u32 s5, 9")
    a("  s_cbranch_scc1 K1_KV")
    for i in range(3):
        scale(i)
        a(f"  ds_write2_b64 v14, v[{PK + 4 * i}:{PK + 4 * i + 1}], v[{PK + 4 * i + 2}:{PK + 4 * i + 3}] offset0:{(1280 * i // 8) if i < 2 else 0} offset1:{(1280 * i // 8 if i < 2 else 0) + 4}")
        a(f"  ds_read_b128 v[{TR + 4 * i}:{TR + 4 * i + 3}], v15 offset:{1280 * i if i < 2 else 0}")
    for i in range(3):
        a(f"  s_waitcnt lgkmcnt({4 - 2 * i})")
        a(f"  buffer_store_dwordx4 v[{TR + 4 * i}:{TR + 4 * i + 3}], v16, s[12:15], s{23 + i} offen{SC}")
    a("  s_branch K2_A")
    a("K1_KV:")
    for i in range(3): scale(i)
    a("  s_cmp_eq_u32 s7, 1")
    a("  s_cbranch_scc1 K1_V")
    a("  v_lshlrev_b32 v3, 5, v2")
    a("  v_lshl_add_u32 v3, v1, 3, v3")
    a("  v_lshlrev_b32 v4, 2, v2")
    a("  s_lshl_b32 s20, s21, 5")
    a(f"  s_add_u32 s20, s20, {WS_KM}")
    a("  s_lshl_b32 s14, s35, 5")
    a(f"  s_add_u32 s14, s14, {WS_KM}")
    for i in range(3):
        a(f"  buffer_store_dwordx2 v[{PK + 4 * i}:{PK + 1 + 4 * i}], v3, s[12:15], s20 offen offset:{512 * i} sc1")
    a("  s_lshl_b32 s20, s21, 2")
    a(f"  s_add_u32 s20, s20, {WS_KL}")
    a("  s_lshl_b32 s14, s35, 2")
    a(f"  s_add_u32 s14, s14, {WS_KL}")
    a("  s_mov_b32 exec_lo, 0xffff0000")
    a("  s_mov_b32 exec_hi, 0")
    for i in range(3):
        a(f"  buffer_store_dword v{PK + 3 + 4 * i}, v4, s[12:15], s20 offen offset:{64 * i} sc1")
    a("  s_mov_b64 exec, -1")
    a("  s_branch K2_A")
    a("K1_V:")
    a("  v_lshlrev_b32 v4, 1, v2")
    a("  v_lshl_add_u32 v3, v1, 7, v4")
    a("  s_mul_i32 s20, s21, 40")
    a(f"  s_add_u32 s20, s20, {WS_VT}")
    a("  s_mul_i32 s14, s35, 40")
    a(f"  s_add_u32 s14, s14, {WS_VT}")
    for i in range(3):
        a(f"  buffer_store_short v{PK + 4 * i}, v3, s[12:15], s20 offen offset:{640 * i} sc1")
        a(f"  buffer_store_short_d16_hi v{PK + 4 * i}, v3, s[12:15], s20 offen offset:{640 * i + 32} sc1")
        a(f"  buffer_store_short v{PK + 1 + 4 * i}, v3, s[12:15], s20 offen offset:{640 * i + 64} sc1")
        a(f"  buffer_store_short_d16_hi v{PK + 1 + 4 * i}, v3, s[12:15], s20 offen offset:{640 * i + 96} sc1")
    a("  s_mov_b32 exec_lo, 0xffff0000")
    a("  s_mov_b32 exec_hi, 0")
    for i in range(3):
        a(f"  buffer_store_short v{PK + 3 + 4 * i}, v4, s[12:15], s20 offen offset:{640 * i + 512} sc1")
        a(f"  buffer_store_short_d16_hi v{PK + 3 + 4 * i}, v4, s[12:15], s20 offen offset:{640 * i + 544} sc1")
    a("  s_mov_b64 exec, -1")
    a("  s_branch K2_A")

    a("K1_SPARE:")
    a("  s_sub_u32 s4, s2, 240                   ; sigma 0..15")
    a("  s_lshl_b32 s60, s4, 7")
    a(f"  s_add_u32 s60, s60, {WS_FLAG + 24 * 128}")
    a("  v_lshrrev_b32 v1, 4, v0")
    a("  s_cmp_lg_u32 s3, 7")
    a("  s_cbranch_scc1 K1_TASK")
    zero_counter(a)
    srd(a, 8, 46, 47, WS_SIZE)
    a("  v_lshlrev_b32 v120, 7, v0")
    a("  v_lshlrev_b32 v121, 3, v0")
    a("  v_mov_b32 v123, 0")
    a("  s_lshl_b32 s20, s4, 9")
    a(f"  s_add_u32 s20, s20, {WS_KEYS}")
    a("  buffer_store_dwordx2 v[122:123], v121, s[8:11], s20 offen sc1")
    a("  s_lshl_b32 s20, s4, 11")
    a(f"  s_add_u32 s20, s20, {WS_FLAG}")
    a("  s_mov_b64 exec, 0xffff")
    a("  buffer_store_dword v122, v120, s[8:11], s20 offen sc1")
    a("  s_barrier")
    a("  s_lshl_b32 s20, s4, 2")
    a("  v_mov_b32 v120, s20")
    a("  v_mov_b32 v121, 1")
    a("  s_mov_b64 exec, 1")
    a("  s_waitcnt vmcnt(0)")
    a("  global_store_dword v120, v121, s[66:67] sc1")
    a("  s_mov_b64 exec, -1")
    a("  v_and_b32 v2, 15, v0")
    a("  v_cmp_gt_u32 vcc, 8, v2")
    a("  v_mov_b32 v3, 0x3f803f80")
    a("  v_mul_u32_u24 v4, 640, v1")
    a("  v_lshl_add_u32 v4, v2, 2, v4")
    a("  v_cndmask_b32 v3, 0, v3, vcc")
    a("  s_mul_i32 s20, s4, 5120")
    a(f"  s_add_u32 s20, s20, {WS_VT + 576}")
    a(f"  buffer_store_dword v3, v4, s[8:11], s20 offen sc1")
    a(f"  buffer_store_dword v3, v4, s[8:11], s20 offen offset:2560 sc1")
    if "nocp" not in OPT:
        a("  s_getpc_b64 s[68:69]")
        a("K1_PC1:")
        a("  s_mov_b32 s20, K2_LAST-K1_PC1-4")
        a("  v_lshlrev_b32 v7, 7, v0")
        for i in range(4):
            a(f"  v_add_u32 v8, {8192 * i}, v7")
            a(f"  v_min_u32 v{9 + i}, s20, v8")
            a(f"  global_load_dword v{9 + i}, v{9 + i}, s[68:69]")
    a("  s_branch K1_SPD")
    a("K1_TASK:")
    a("  v_bfe_u32 v13, v0, 3, 1                 ; b")
    a("  v_bfe_u32 v14, v0, 5, 1                 ; e/4")
    a("  v_lshl_add_u32 v13, v14, 1, v13         ; ea%4")
    a("  v_bfe_u32 v15, v0, 4, 1                 ; p")
    a("  v_mul_u32_u24 v15, 18, v15")
    a("  v_add_u32 v16, v15, v13")
    a("  v_mul_u32_u24 v13, 72, v13")
    a("  v_add_u32 v17, v15, v13")
    a("  v_and_b32 v14, 7, v0")
    a("  v_lshlrev_b32 v14, 4, v14")
    a("  v_bfe_u32 v2, v0, 2, 2")
    a("  v_and_b32 v3, 3, v0")
    a("  v_lshl_add_u32 v24, v1, 3, v2")
    a("  v_lshlrev_b32 v24, 7, v24")
    a("  v_lshl_add_u32 v24, v3, 3, v24")
    a("  s_lshl_b32 s22, s3, 13")
    a("  v_add_u32 v24, s22, v24")
    a("  v_lshlrev_b32 v25, 4, v0")
    a("  s_movk_i32 s23, 1152")
    a("  s_lshl_b32 s34, s3, 4")
    a("  s_add_u32 s34, s34, s4")
    a("  s_waitcnt lgkmcnt(0)")
    srd(a, 28, 44, 45, 663552)
    srd(a, 8, 46, 47, WS_SIZE)
    a("  s_barrier")
    for n in range(2):
        if n: a("  s_add_u32 s34, s34, 112")
        a("  s_mul_i32 s5, s34, 3641")
        a("  s_lshr_b32 s5, s5, 16                   ; step")
        a("  s_mul_i32 s6, s5, 18")
        a("  s_sub_u32 s6, s34, s6")
        a("  s_and_b32 s7, s6, 1                     ; hB")
        a("  s_lshr_b32 s6, s6, 1")
        a("  s_mul_i32 s21, s5, 72")
        a(f"  s_lshl_b32 s{24 + n}, s6, 3")
        a(f"  s_add_u32 s{24 + n}, s{24 + n}, s21")
        a(f"  s_add_u32 s{24 + n}, s{24 + n}, s7")
        a(f"  s_lshl_b32 s{24 + n}, s{24 + n}, 10")
        a(f"  s_add_u32 s{24 + n}, s{24 + n}, {WS_WOL}")
        a("  s_lshl_b32 s26, s7, 2")
        a("  s_add_u32 s21, s21, s26")
        a("  s_add_u32 s26, s7, 16")
        a("  s_cmp_eq_u32 s5, 8")
        a("  s_cselect_b32 s21, s26, s21")
        a("  s_cselect_b64 vcc, -1, 0")
        a("  s_cselect_b32 s26, 0x120, 8             ; row step of gb%2")
        a("  s_mul_i32 s21, s21, 1152")
        a("  s_mul_i32 s26, s26, 1152")
        a("  s_lshl_b32 s6, s6, 7")
        a("  s_add_u32 s21, s21, s6")
        a("  s_cmp_ge_u32 s34, 162")
        a(f"  s_cselect_b32 s{24 + n}, 0x10000000, s{24 + n}")
        a("  s_cselect_b32 s21, 0x10000000, s21")
        a("  s_add_u32 s26, s26, s21")
        a(f"  v_cndmask_b32 v{18 + n}, v16, v17, vcc")
        a(f"  v_mad_u32_u24 v{18 + n}, v{18 + n}, s23, v14")
        for gb in range(4):
            a(f"  s_add_u32 m0, s22, {4096 * n + 1024 * gb}")
            a(f"  s_add_u32 s27, s{(21, 26)[gb % 2]}, {36 * 1152 * (gb // 2)}")
            a(f"  buffer_load_dwordx4 v{18 + n}, s[28:31], s27 offen nt lds")
    for n in range(2):
        a(f"  s_waitcnt vmcnt(4)")
        for t in range(4):
            a(f"  ds_read_b64_tr_b16 v[{32 + 16 * n + 4 * t}:{33 + 16 * n + 4 * t}], v24 offset:{4096 * n + 32 * t}")
            a(f"  ds_read_b64_tr_b16 v[{34 + 16 * n + 4 * t}:{35 + 16 * n + 4 * t}], v24 offset:{4096 * n + 32 * t + 512}")
        for t in range(4):
            a(f"  s_waitcnt lgkmcnt({6 - 2 * t})")
            a(f"  buffer_store_dwordx4 v[{32 + 16 * n + 4 * t}:{35 + 16 * n + 4 * t}], v25, s[8:11], s{24 + n} offen sc1")
            if t < 3: a(f"  s_add_u32 s{24 + n}, s{24 + n}, 2048")
    a("  s_cmp_lt_u32 s3, 4")
    a("  s_cbranch_scc1 K2_A")
    a("K1_SPD:")
    gu_setup(a)
    a("  s_waitcnt vmcnt(0)")
    a("  s_branch K2_B")
```

```python
from asmlib import *
from layout import *
from k1 import srd

NA, NB = 3, 5
L_PA = 0
L_PB = 20480
L_H = 0
HI = 1184
HS = 4 * HI
L_ST = 18944
L_MR = L_ST + 512
L_X = 20480
L_XS = L_X + 9216
L_TOK = L_XS + 256
L_TOP = L_TOK + 256
L_ACT = L_TOP + 256
L_RED = L_ACT + 512
L_XI = L_D
def q_off(t): return 1280 * t
SAFE = 0 if 'forcesafe' in OPT else 0x53800000

class Wave:
    def __init__(self, a, KM, V, KL, idx):
        self.a, self.KM, self.V, self.KL, self.idx = a, KM, V, KL, idx
    def pv(self, O, buf, u, k):
        v = self.V + 16 * u + 4 * k
        self.a(f"  v_smfmac_f32_32x32x32_bf16 v[{O}:{O + 15}], v[{v}:{v + 3}], v[{buf + 8 * k}:{buf + 8 * k + 7}], v{self.idx} abid:1")
    def qk2(self, buf, u, QL):
        k = self.KL + 2 * u
        self.a(f"  v_mfma_f32_32x32x4_2b_bf16 v[{buf}:{buf + 31}], v[{k}:{k + 1}], v[{QL}:{QL + 1}], 0")
    def qkm(self, buf, u, h, QM):
        k = self.KM + 8 * u + 4 * h
        b = buf + 16 * h
        self.a(f"  v_mfma_f32_32x32x16_bf16 v[{b}:{b + 15}], v[{k}:{k + 3}], v[{QM}:{QM + 3}], v[{b}:{b + 15}]")
    def unit(self, X, Y, O, u, prev=None, nxt=None, hook=None):
        a = self.a
        hook = hook or (lambda p: None)
        E = lambda i0, i1: [a(f"  v_exp_f32 v{X + i}, v{X + i}") for i in range(i0, i1)]
        E(0, 2)
        if callable(prev): prev()
        elif prev: self.pv(prev[0], Y, prev[1], 3)
        E(2, 5)
        hook("pre2b")
        if nxt: self.qk2(Y, nxt[0], nxt[2])
        E(5, 9)
        hook("early")
        E(9, 13)
        hook("prepv0")
        self.pv(O, X, u, 0)
        E(13, 16)
        hook("mid")
        E(16, 18)
        self.pv(O, X, u, 1)
        E(18, 21)
        hook("preqk")
        if nxt: self.qkm(Y, nxt[0], 0, nxt[1])
        E(21, 24)
        if nxt: self.qkm(Y, nxt[0], 1, nxt[1])
        E(24, 27)
        hook("prepv2")
        self.pv(O, X, u, 2)
        E(27, 30)
        hook("late")
        E(30, 32)

def pa_slot(q):
    return L_PB + 10240 if q == 0 else L_PA + (q % 2) * 10240
def kv_setup(a, skey):
    a(f"  s_lshl_b32 s20, {skey}, 10")
    a(f"  s_add_u32 s20, s20, {WS_KM}")
    a(f"  s_mul_i32 s21, {skey}, 1280")
    a(f"  s_add_u32 s21, s21, {WS_VT}")
    a(f"  s_lshl_b32 s22, {skey}, 7")
    a(f"  s_add_u32 s22, s22, {WS_KL}")
def kv_list(a, w, u, vK, vV, vKL):
    l = [(("k", u), None, f"  buffer_load_dword v{w.KL + 2 * u}, {vKL}, s[8:11], s22 offen offset:{256 * u} sc1")]
    for h in range(2):
        r = w.KM + 8 * u + 4 * h
        l.append((("k", u), "  s_add_u32 s20, s20, 2048" if h == 0 and u else None,
                  f"  buffer_load_dwordx4 v[{r}:{r + 3}], {vK}, s[8:11], s20 offen offset:{1024 * h} sc1"))
    for k in range(4):
        r = w.V + 16 * u + 4 * k
        l.append((("v", u, k), "  s_add_u32 s21, s21, 2560" if k == 0 and u else None,
                  f"  buffer_load_dwordx4 v[{r}:{r + 3}], {vV}, s[8:11], s21 offen offset:{640 * k} sc1"))
    return l

BEFORE = [True]
def cleanup(a, regs, K):
    for st, m in enumerate(("row_half_mirror", "quad_perm:[2,3,0,1]", "quad_perm:[1,0,3,2]")):
        for x, t in regs:
            a(f"  v_mov_b32_dpp v{t}, v{x} {m} row_mask:0xf bank_mask:0xf bound_ctrl:1")
        for (x, t), k in zip(regs, K):
            a(f"  v_med3_u32 v{x}, v{x}, v{t}, v{k + st}")

GU, DN, DD = 88, 160, 200
C_DN, C_GU = 240, 241
def tail_scalars(f, isB):
    f("  s_lshl_b32 s68, s3, 10")
    f(f"  s_add_u32 s69, s68, {WS_KEYS}")
    f("  s_lshl_b32 s71, s3, 7")
    f(f"  s_mul_i32 s46, s3, {8 * PSTR}")
    f("  s_lshl_b32 s47, s56, 7")
    f("  s_add_u32 s46, s46, s47")
    f(f"  s_add_u32 s46, s46, {WS_PART}")
    f(f"  s_add_u32 s47, s46, {64 * PSTR}")
    f(f"  s_add_u32 s48, s46, {128 * PSTR}")
    f.lines.append("  s_cmp_ge_u32 s3, 2\n  s_cselect_b32 s48, 0x10000000, s48")
    f("  s_lshl_b32 s49, s3, 5")
    f(f"  s_add_u32 s49, s49, {L_TOP}")
    f("  s_bfe_i32 s50, s3, 0x10000")
    f("  s_lshr_b32 s51, s3, 1")
    f("  s_and_b32 s52, s50, 576")
    f("  s_mul_i32 s53, s51, 2304")
    f("  s_add_u32 s53, s53, s52")
    f("  s_add_u32 s53, s53, s5")
    f(f"  s_mul_i32 s54, s51, {HS}")
    f("  s_add_u32 s52, s52, s54")
    f("  s_lshl_b32 s51, s51, 4")
    f(f"  s_add_u32 s51, s51, {L_MR}")
    f("  s_lshl_b32 s54, s3, 2")
    if isB:
        f(f"  s_mul_i32 s36, s56, {PSTR}")
        f(f"  s_add_u32 s36, s36, {WS_PART}")
        f("  s_lshl_b32 s37, s6, 10")
        f("  s_add_u32 s37, s37, s36")
        f("  s_add_u32 s37, s37, 16384")
        f("  s_lshl_b32 s38, s6, 12")
        f("  s_add_u32 s36, s36, s38")
        f("  s_lshl_b32 s38, s4, 3")
        f("  s_sub_u32 s38, 2047, s38")
        f("  s_lshl_b32 s39, s4, 5")
        f(f"  s_add_u32 s39, s39, {WS_KEYS}")
        f("  s_lshl_b32 s55, s4, 7")
        f(f"  s_add_u32 s55, s55, {WS_STAT}")
    else:
        f("  s_bfe_u32 s36, s56, 0x20001")
        f("  s_lshl_b32 s36, s36, 2")
        f("  s_lshr_b32 s37, s56, 3")
        f("  s_lshl_b32 s37, s37, 1")
        f("  s_and_b32 s38, s56, 1")
        f("  s_add_u32 s37, s37, s38")
        f("  s_lshl_b32 s38, s37, 8")
        f("  s_lshl_b32 s37, s37, 5")
        f("  s_lshl_b32 s39, s6, 7")
        f(f"  s_add_u32 s39, s39, {L_ST}")

def ffn_consts_b(a):
    a("  v_lshrrev_b32 v1, 4, v0                 ; gb")
    a("  v_and_b32 v2, 15, v0")
    a("  v_bfe_u32 v3, v0, 1, 1                  ; p")
    a("  v_and_b32 v7, 7, v0")
    a("  v_lshrrev_b32 v5, 1, v1")
    a("  v_mul_u32_u24 v5, 9216, v5")
    a("  v_and_b32 v6, 1, v1")
    a("  v_mul_u32_u24 v6, 576, v6")
    a("  v_add_u32 v5, v5, v6")
    a("  v_lshl_add_u32 v5, v2, 2, v5")
    a(f"  v_add_u32 v{C_DN}, {L_D}, v5")
    a("  v_lshrrev_b32 v5, 1, v1")
    a("  v_lshlrev_b32 v5, 4, v5")
    a("  v_and_b32 v6, 1, v1")
    a("  v_bfe_u32 v8, v0, 3, 1")
    a("  v_lshl_add_u32 v6, v8, 1, v6            ; (k>>2)&3")
    a("  v_lshl_add_u32 v5, v6, 2, v5")
    a("  v_bfe_u32 v8, v0, 2, 1")
    a("  v_add_u32 v5, v5, v8")
    a("  v_lshlrev_b32 v5, 6, v5")
    a("  v_xor_b32 v6, s6, v6")
    a("  v_lshl_add_u32 v5, v6, 4, v5")
    a(f"  v_mul_u32_u24 v6, {L_U - L_G}, v3")
    a("  v_add_u32 v5, v5, v6")
    a("  v_and_b32 v6, 1, v0")
    a("  v_lshl_add_u32 v5, v6, 3, v5")
    a(f"  v_add_u32 v{C_GU}, {L_G}, v5")

def ffn_prep(a, isB):
    a("  v_lshrrev_b32 v1, 4, v0                 ; gb")
    a("  v_bfe_u32 v3, v0, 1, 1                  ; p")
    a("  v_and_b32 v7, 7, v0")
    a("  v_lshrrev_b32 v2, 3, v0")
    if isB:
        a("  v_mul_u32_u24 v5, 0xaaaa, v3")
        a("  v_mul_u32_u24 v6, 0x5555, v3")
        a("  v_lshl_or_b32 v5, v6, 16, v5")
        a("  v_add_u32 v73, 0x88884444, v5")
        a("  v_and_b32 v6, 1, v2")
        a("  v_lshl_add_u32 v5, v1, 2, v6")
        a("  v_lshlrev_b32 v82, 4, v5")
        a("  v_lshlrev_b32 v5, 6, v2")
        a("  v_lshl_add_u32 v5, v7, 1, v5")
        a("  v_lshl_add_u32 v83, s6, 4, v5")
        a("  v_bfe_u32 v5, v0, 2, 2")
        a("  v_and_b32 v6, 1, v0")
        a("  v_lshl_add_u32 v5, v5, 1, v6")
        a("  v_lshlrev_b32 v5, 6, v5")
        a("  v_lshl_add_u32 v84, v1, 4, v5")
    a("  v_bfe_i32 v51, v0, 2, 1")
    a("  v_bfe_i32 v52, v0, 1, 1")
    a("  v_bfe_i32 v53, v0, 0, 1")
    a("  v_xor_b32 v52, v52, v51")
    a("  v_xor_b32 v53, v53, v51")
    for i in range(3): a(f"  v_not_b32 v{48 + i}, v{51 + i}")
    for n, bit in enumerate((3, 4, 5)):
        a(f"  v_bfe_i32 v5, v0, {bit}, 1")
        for i in range(3): a(f"  v_xor_b32 v{54 + 3 * n + i}, v5, v{48 + i}")
    for i in range(3): a(f"  v_xor_b32 v{63 + i}, s50, v{48 + i}")
    a("  v_lshlrev_b32 v69, 2, v0")
    a("  v_and_b32 v5, 12, v51")
    a("  v_xor_b32 v66, v5, v69")
    a("  v_xor_b32 v67, 28, v66                  ; reversed")
    a("  v_lshlrev_b32 v78, 2, v7")
    a("  v_add_u32 v68, s49, v78")
    a("  v_lshlrev_b32 v70, 4, v0")
    a("  v_lshlrev_b32 v71, 5, v1")
    a("  v_lshl_add_u32 v71, v3, 4, v71          ; 32*ga + 16*p")
    a("  v_add_u32 v72, s68, v70")
    a(f"  v_mul_u32_u24 v5, {PSTR}, v2")
    a("  v_lshl_add_u32 v74, v7, 4, v5")
    a("  v_and_b32 v6, 0x200, v70")
    a("  v_lshl_add_u32 v6, v7, 6, v6")
    a("  v_and_b32 v5, 32, v71")
    a("  v_add3_u32 v75, v5, v6, s54")
    if not isB:
        a("  v_and_or_b32 v5, v2, 1, s36")
        a("  v_lshlrev_b32 v76, 2, v5")
        a("  v_and_b32 v6, 2, v51")
        a("  v_add_lshl_u32 v5, v5, v6, 4")
        a("  v_and_b32 v6, 12, v69")
        a("  v_add3_u32 v77, v5, v6, s38")
        a("  v_lshlrev_b32 v79, 6, v0")

def ffn_tail(a):
    a("  s_mov_b64 exec, -1")
    a(f"  s_cmp_ge_u32 s2, {NF}")
    a("  s_cbranch_scc1 K2_END")
    a("  s_setprio 0")
    a("  s_cmp_lt_u32 s3, 4")
    a("  s_cbranch_scc1 K2_POLL0")
    z = [f"  v_mov_b32 v{228 + i}, 0x3f803f80" for i in range(4)] + [f"  v_mov_b32 v{DD + 27 - i}, 0" for i in range(28)]
    for st in range(9):
        for hB in range(2):
            for j in range(2):
                r = GU + 8 * st + 4 * hB + 2 * j
                a(f"  ds_read_b64_tr_b16 v[{r}:{r + 1}], v{C_GU} offset:{(64 * st + 32 * hB + 2 * j) * 64}")
                if z: a(z.pop(0))
        if st >= 2:
            a("  s_waitcnt lgkmcnt(8)")
            a(f"  v_smfmac_f32_16x16x64_bf16 v[224:227], v[228:231], v[{GU + 8 * (st - 2)}:{GU + 8 * (st - 2) + 7}], v73")
    for st in (7, 8):
        a(f"  s_waitcnt lgkmcnt({4 * (8 - st)})")
        a(f"  v_smfmac_f32_16x16x64_bf16 v[224:227], v[228:231], v[{GU + 8 * st}:{GU + 8 * st + 7}], v73")
    a(f"  v_lshl_add_u32 v85, s6, 11, v{C_DN}")
    a("  s_lshl_b32 s24, s6, 6")
    a("  s_and_b32 s24, s24, 64")
    a(f"  v_add_u32 v86, 8192, v{C_DN}")
    a("  v_xor_b32 v86, s24, v86")
    a("  v_add_f32 v80, v224, v226")
    a("  v_mov_b32 v81, v80")
    a("  v_mov_b32_dpp v81, v80 row_ror:8 row_mask:0xf bank_mask:0x3")
    a("  v_mov_b32_dpp v80, v80 row_ror:8 row_mask:0xf bank_mask:0xc")
    a("K2_POLL0:")
    a("  s_mov_b32 s70, 0")
    a("  s_movk_i32 s24, 1152")
    stamp(a, 14)
    a("  s_waitcnt vmcnt(0) lgkmcnt(0)")
    stamp(a, 15)
    a("K2_POLL:")
    for m in range(4):
        a(f"  buffer_load_dword v{16 + m}, v{66 + m % 2}, s[8:11], s69 offen offset:{256 * m} sc1")
    a("  s_add_u32 s70, s70, 1")
    a("  s_waitcnt vmcnt(0)")
    a("  v_min3_u32 v20, v16, v17, v18")
    a("  v_max_u32 v16, v16, v17")
    a("  v_min_u32 v20, v20, v19")
    a("  v_max_u32 v18, v18, v19")
    a("  v_cmp_eq_u32 vcc, 0, v20")
    a(f"  s_cmp_lt_u32 s70, {SPIN}")
    a("  s_cselect_b64 vcc, vcc, 0")
    a("  s_cbranch_vccnz K2_POLL")
    stamp(a, 16)
    if DIAG: a(f"  s_mov_b32 s{ST0 + 23}, s70")
    cleanup(a, [(16, 17), (18, 19)], [48, 51])
    a("  v_max_u32 v16, v16, v18")
    cleanup(a, [(16, 17)], [54])
    def upper(last):
        a("  v_max_u32_dpp v16, v16, v16 row_ror:8 row_mask:0xf bank_mask:0xf bound_ctrl:1")
        cleanup(a, [(16, 17)], [57])
        a("  v_mov_b32 v17, v16")
        a("  v_permlane16_swap_b32 v16, v17")
        a("  v_max_u32 v16, v16, v17")
        cleanup(a, [(16, 17)], [60])
        a("  v_mov_b32 v17, v16")
        a("  v_permlane32_swap_b32 v16, v17")
        a("  v_max_u32 v16, v16, v17")
        if not last: cleanup(a, [(16, 17)], [63])
    upper(False)
    a("  s_mov_b64 exec, 0xff")
    a("  ds_write_b32 v68, v16")
    a("  s_mov_b64 exec, -1")
    a("  s_waitcnt lgkmcnt(0)")
    a("  s_barrier")
    a(f"  ds_read_b32 v16, v69 offset:{L_TOP}")
    a("  s_mov_b32 s70, 0")
    a("  s_waitcnt lgkmcnt(0)")
    upper(True)
    a("  v_not_b32_dpp v17, v16 quad_perm:[0,1,0,1] row_mask:0xf bank_mask:0x3")
    a("  v_not_b32_dpp v17, v16 quad_perm:[2,3,2,3] row_mask:0xf bank_mask:0xc")
    a("  v_and_b32 v17, 0x7ff, v17")
    stamp(a, 17)
    a("  v_mad_u32_u24 v18, v17, s24, v71")
    a("  s_cmp_ge_u32 s3, 2")
    a("  s_cbranch_scc1 K2_ROW1")
    a("  s_cmp_eq_u32 s3, 1")
    a("  s_cbranch_scc1 K2_ROWS")
    def retry(label, regs):
        a("  s_add_u32 s70, s70, 1")
        a("  s_waitcnt vmcnt(0)")
        a(f"  v_max3_u32 v28, v{regs[0]}, v{regs[1]}, v{regs[2]}")
        for i in range(3, len(regs) - 1, 2): a(f"  v_max3_u32 v28, v28, v{regs[i]}, v{regs[i + 1]}")
        if len(regs) % 2 == 0: a(f"  v_max_u32 v28, v28, v{regs[-1]}")
        a("  v_cmp_eq_u32 vcc, -1, v28")
        a(f"  s_cmp_lt_u32 s70, {SPIN}")
        a("  s_cselect_b64 vcc, vcc, 0")
        a(f"  s_cbranch_vccnz {label}")
    a("K2_ROW2:")
    a("  buffer_load_dwordx4 v[20:23], v18, s[16:19], 0 offen sc1")
    a("  buffer_load_dwordx4 v[24:27], v18, s[16:19], 0 offen offset:1024 sc1")
    retry("K2_ROW2", [20, 23, 24, 27])
    a(f"  ds_write_b128 v70, v[24:27] offset:{L_X + 8192}")
    a("  s_branch K2_ROWD")
    a("K2_ROWS:")
    a("  v_lshlrev_b32 v19, 4, v17")
    a(f"  s_mov_b32 s26, {WS_STAT}")
    a("K2_ROWS1:")
    a("  buffer_load_dwordx4 v[20:23], v18, s[16:19], s71 offen sc1")
    a("  buffer_load_dwordx4 v[24:27], v19, s[8:11], s26 offen sc1")
    a(f"  ds_write_b32 v69, v17 offset:{L_TOK}")
    retry("K2_ROWS1", [20, 23, 24, 27])
    a("  s_mov_b64 exec, 0xffff")
    a(f"  ds_write_b128 v70, v[24:27] offset:{L_XS}")
    a("  s_mov_b64 exec, -1")
    a("  s_branch K2_ROWD")
    a("K2_ROW1:")
    a("  buffer_load_dwordx4 v[20:23], v18, s[16:19], s71 offen sc1")
    a("  s_cmp_lt_u32 s3, 4")
    a("  s_cbranch_scc1 K2_ROW1W")
    for m in range(5):
        if m < 4:
            a(f"  v_xor_b32 v1, {64 * (m % 2)}, v85")
            if m >= 2: a("  v_add_u32 v1, 1024, v1")
        else: a("  v_mov_b32 v1, v86")
        a("  v_add_u32 v2, 18432, v1")
        for h in range(4):
            r = DN + 8 * m + 2 * h
            a(f"  ds_read2_b32 v[{r}:{r + 1}], v{1 + h // 2} offset0:{64 * (h % 2)} offset1:{64 * (h % 2) + 32}")
        if m >= 2: a(f"  s_waitcnt lgkmcnt({8 if m < 4 else 0})")
    a("K2_ROW1W:")
    retry("K2_ROW1", [20, 21, 23])
    a("K2_ROWD:")
    stamp(a, 18)
    a(f"  ds_write_b128 v72, v[20:23] offset:{L_X}")
    a("  s_mov_b32 s70, 0")
    a("  s_cmp_ge_u32 s3, 4")
    a("  s_waitcnt lgkmcnt(0)")
    a("  s_barrier")
    a("  s_cbranch_scc1 K2_GU")
    a(f"  ds_read_b32 v14, v76 offset:{L_TOK}")
    a(f"  ds_read_b32 v15, v77 offset:{L_X}")
    a("  s_waitcnt lgkmcnt(0)")
    a("  v_mad_u32_u24 v14, v14, s24, v78")
    a("  v_lshlrev_b32 v30, 16, v15")
    a("  v_and_b32 v31, 0xffff0000, v15")
    a("  s_barrier")
    a("  s_branch K2_D3")
    a("K2_GU:")
    for st in range(9):
        a(f"  ds_read_b128 v[{8 + 4 * st}:{11 + 4 * st}], v70 offset:{L_X + 1024 * st}")
    a(f"  ds_read_b128 v[4:7], v82 offset:{L_XS}")
    for st in range(9):
        a(f"  s_waitcnt lgkmcnt({9 - st})")
        a(f"  v_smfmac_f32_16x16x64_bf16 v[220:223], v[{8 + 4 * st}:{11 + 4 * st}], v[{GU + 8 * st}:{GU + 8 * st + 7}], v73")
    a("  s_waitcnt lgkmcnt(0)")
    a("  v_mul_f32 v7, v7, v5                    ; c * sigmoid(r)")
    a("  v_mul_f32 v80, v80, v4")
    a("  v_mul_f32 v81, v81, v4")
    a(f"  v_mul_f32 v6, {f32(-math.log2(math.e))}, v5")
    a("  v_pk_add_f32 v[220:221], v[220:221], v[222:223]")
    a("  v_sub_f32 v2, v220, v80")
    a("  v_sub_f32 v3, v221, v81")
    a("  v_sub_f32_dpp v2, v221, v80 row_ror:8 row_mask:0xf bank_mask:0xc")
    a("  v_sub_f32_dpp v3, v220, v81 row_ror:8 row_mask:0xf bank_mask:0x3")
    a("  v_mul_f32 v1, v2, v6")
    a("  v_exp_f32 v1, v1")
    a("  v_mul_f32 v2, v2, v5                    ; g")
    a("  v_add_f32 v1, 1.0, v1")
    a("  v_rcp_f32 v1, v1")
    a("  v_mul_f32 v3, v3, v7                    ; u * sigmoid(r)")
    a("  v_mul_f32 v2, v2, v1                    ; silu(g)")
    a("  v_mul_f32 v2, v2, v3")
    a("  v_cvt_pk_bf16_f32 v2, v2, v2")
    a(f"  ds_write_b16 v83, v2 offset:{L_ACT}")
    stamp(a, 19)
    a("  s_cmp_ge_u32 s6, 2")
    a("  s_waitcnt lgkmcnt(0)")
    a("  s_barrier")
    a(f"  ds_read_b128 v[8:11], v84 offset:{L_ACT}")
    a("  s_waitcnt lgkmcnt(0)")
    for m in range(4):
        a(f"  v_smfmac_f32_16x16x64_bf16 v[{DD + 4 * m}:{DD + 4 * m + 3}], v[8:11], v[{DN + 8 * m}:{DN + 8 * m + 7}], v73 abid:1")
    a("  s_cbranch_scc1 K2_D2")
    a(f"  v_smfmac_f32_16x16x64_bf16 v[{DD + 16}:{DD + 19}], v[8:11], v[{DN + 32}:{DN + 39}], v73 abid:1")
    a("K2_D2:")
    a("  s_nop 3")
    for m in range(4):
        a(f"  buffer_store_dwordx4 v[{DD + 4 * m}:{DD + 4 * m + 3}], v70, s[8:11], s36 offen offset:{1024 * m} sc1")
    a("  s_cbranch_scc1 K2_D3")
    a(f"  buffer_store_dwordx4 v[{DD + 16}:{DD + 19}], v70, s[8:11], s37 offen sc1")
    a("K2_D3:")
    stamp(a, 20)
    a("  s_waitcnt vmcnt(0)")
    a("  s_barrier")
    stamp(a, 21)
    a("K2_RED:")
    a("  buffer_load_dwordx4 v[16:19], v74, s[8:11], s46 offen sc1")
    a("  buffer_load_dwordx4 v[20:23], v74, s[8:11], s47 offen sc1")
    a("  buffer_load_dwordx4 v[24:27], v74, s[8:11], s48 offen sc1")
    retry("K2_RED", [16, 19, 20, 23, 24, 27])
    stamp(a, 22)
    a("  v_pk_add_f32 v[16:17], v[16:17], v[20:21]")
    a("  v_pk_add_f32 v[18:19], v[18:19], v[22:23]")
    a("  v_pk_add_f32 v[16:17], v[16:17], v[24:25]")
    a("  v_pk_add_f32 v[18:19], v[18:19], v[26:27]")
    a("  v_permlane32_swap_b32 v16, v17")
    a("  v_permlane32_swap_b32 v18, v19")
    a("  v_add_f32 v16, v16, v17")
    a("  v_add_f32 v18, v18, v19")
    a("  v_permlane16_swap_b32 v16, v18")
    a("  v_add_f32 v16, v16, v18")
    a("  v_add_f32_dpp v16, v16, v16 row_ror:8 row_mask:0xf bank_mask:0xf bound_ctrl:1")
    a("  s_mov_b32 exec_lo, 0x00ff00ff")
    a("  s_mov_b32 exec_hi, 0x00ff00ff")
    a(f"  ds_write_b32 v75, v16 offset:{L_RED}")
    a("  s_cmp_lg_u32 s3, 0")
    a("  s_waitcnt lgkmcnt(0)")
    a("  s_barrier")
    a("  s_cbranch_scc1 K2_END")
    a("  s_mov_b64 exec, 0xffff")
    for i in range(4):
        a(f"  ds_read_b128 v[{32 + 4 * i}:{35 + 4 * i}], v79 offset:{L_RED + 16 * i}")
    a("  s_waitcnt lgkmcnt(2)")
    a("  v_pk_add_f32 v[32:33], v[32:33], v[34:35]")
    a("  v_pk_add_f32 v[36:37], v[36:37], v[38:39]")
    a("  v_pk_add_f32 v[32:33], v[32:33], v[36:37]")
    a("  s_waitcnt lgkmcnt(0)")
    a("  v_pk_add_f32 v[40:41], v[40:41], v[42:43]")
    a("  v_pk_add_f32 v[44:45], v[44:45], v[46:47]")
    a("  v_add_f32 v32, v32, v33")
    a("  v_pk_add_f32 v[40:41], v[40:41], v[44:45]")
    a("  v_add_f32 v30, v30, v32")
    a("  v_add_f32 v40, v40, v41")
    a("  v_add_f32 v31, v31, v40")
    a("  v_cvt_pk_bf16_f32 v30, v30, v31")
    a("  buffer_store_dword v30, v14, s[16:19], s37 offen sc1")

def lane_kv(a, vK, vV, vKL):
    a("  v_lshrrev_b32 v1, 5, v0                 ; hi")
    a("  v_and_b32 v2, 31, v0                    ; row")
    a("  v_lshlrev_b32 v3, 5, v2")
    a(f"  v_lshl_add_u32 v{vK}, v1, 4, v3")
    a("  v_lshlrev_b32 v4, 1, v2")
    a("  s_mov_b32 s24, 0xfffff9f8")
    a("  v_bfe_u32 v4, s24, v4, 2")
    a("  v_cmp_gt_u32 vcc, 16, v2")
    a("  v_add_u32 v4, 16, v4")
    a(f"  v_lshlrev_b32 v{vKL}, 2, v0")
    a("  v_cndmask_b32 v4, v4, v2, vcc")
    a("  v_lshlrev_b32 v4, 5, v4")
    a(f"  v_lshl_add_u32 v{vV}, v1, 4, v4")
def lane_q(a, vQ, vQL):
    a("  v_bfe_u32 v6, v0, 2, 2")
    a("  v_and_b32 v7, 1, v0")
    a("  v_lshl_add_u32 v6, v6, 1, v7            ; t")
    a("  v_mul_u32_u24 v6, 1152, v6")
    a("  v_bfe_u32 v7, v0, 4, 1")
    a("  v_bfe_u32 v8, v0, 1, 1")
    a("  v_lshl_add_u32 v7, v7, 1, v8")
    a(f"  v_mad_u32_u24 v{vQL}, v7, 36, v6")
    a("  v_lshrrev_b32 v7, 5, v0")
    a(f"  v_lshl_add_u32 v{vQ}, v7, 4, v{vQL}")
def common_scalars(a):
    a("  s_and_b32 s4, s2, 7")
    a("  s_lshl_b32 s4, s4, 5")
    a("  s_lshr_b32 s5, s2, 3")
    a("  s_add_u32 s4, s4, s5                    ; W: tokens 8W..8W+7")
    a("  s_mul_i32 s5, s4, 9216")
    a("  s_and_b32 s6, s3, 3")
    a("  s_mul_i32 s7, s6, 2560")
    srd(a, 12, 36, 37, 2359296)
    srd(a, 16, 64, 65, 2359296)

def gen_k2(a):
    vm = []
    def vload(tag, text):
        a(text); vm.append(tag)
    def vwait(tag):
        last = max((i for i, t in enumerate(vm) if t == tag), default=None)
        if last is None: return
        n = len(vm) - 1 - last
        a(f"  s_waitcnt vmcnt({n})")
        del vm[:last + 1]
    def issue(l, n=99):
        for i in range(min(n, len(l))):
            tag, pre, text = l.pop(0)
            if pre: a(pre)
            vload(tag, text)
    nb = [3]
    def bar():
        a("  s_waitcnt lgkmcnt(0)")
        if BEFORE[0]: stamp(a, nb[0])
        a("  s_barrier")
        if not BEFORE[0]: stamp(a, nb[0])
        nb[0] += 1
    def qread(p):
        a(f"  ds_read_b32 v{QL[p % 2]}, v{Q4} offset:{q_off(p) + 1024}")
        a(f"  ds_read_b128 v[{QM[p % 2]}:{QM[p % 2] + 3}], v{Q16} offset:{q_off(p)}")

    KM, V, KL = 112, 136, 184
    IDX, L16, L8, Z = 185, 187, 189, 196
    W16, W8, Q16, Q4 = 197, 244, 245, 246
    QM, QL = (190, 248), (194, 252)
    ACC, AF, LF, PEND, CHK = 198, 234, 238, 242, 243
    O, RING = 64, 80
    VN2, VDMA = 247, 255
    w = Wave(a, KM, V, KL, IDX)
    a("K2_A:")
    a("  s_barrier")
    stamp(a, 15, alt="alt2")
    common_scalars(a)
    lane_kv(a, 96, 97, 98)
    a("  s_lshl_b32 s23, s6, 4")
    kv_setup(a, "s23")
    kv = [kv_list(a, w, u, "v96", "v97", "v98") for u in range(NA)]
    a("  v_bfe_u32 v8, v0, 1, 1")
    a("  v_mul_u32_u24 v8, 0xaaaa, v8")
    a(f"  v_add_u32 v{IDX}, 0xdddd4444, v8")
    a(f"  v_lshlrev_b32 v{L16}, 4, v0")
    a(f"  v_lshlrev_b32 v{L8}, 3, v0")
    a(f"  v_add_u32 v{W16}, s7, v{L16}")
    a(f"  v_add_u32 v{W8}, s7, v{L8}")
    a(f"  v_add_u32 v{Q16}, {L_QB}, v{L16}")
    a(f"  v_add_u32 v{Q4}, {L_QB}, v98")
    a(f"  v_mov_b32 v{Z}, 0")
    a(f"  v_mov_b32 v{QL[0] + 1}, 0")
    a(f"  v_mov_b32 v{QL[1] + 1}, 0")
    a(f"  v_mov_b32 v{CHK}, 0")
    for i in range(36):
        a(f"  v_mov_b32 v{ACC + i}, 0")
    a(f"  v_mov_b32 v1, {L_CNT}")
    a("  v_mov_b32 v2, 1")
    a("  v_mov_b32 v3, 0")
    a("  s_mov_b64 exec, 1")
    a("  s_waitcnt vmcnt(0)")
    stamp(a, 16, alt="alt2")
    a("  ds_add_rtn_u32 v1, v1, v2")
    a("  s_waitcnt lgkmcnt(0)")
    a("  v_cmp_eq_u32 vcc, 4, v1")
    a("  s_cbranch_vccz K2_NOFLAG")
    a("  buffer_store_dword v2, v3, s[8:11], s60 offen sc1")
    a("K2_NOFLAG:")
    a("  s_mov_b64 exec, -1")
    a("  s_mul_i32 s25, s6, 288")
    a("  v_lshrrev_b32 v11, 4, v0")
    a("  v_mul_u32_u24 v13, 2304, v11")
    a("  v_and_b32 v12, 15, v0")
    a(f"  v_lshl_add_u32 v{VN2}, v12, 1, s25")
    a(f"  v_add_u32 v254, v{VN2}, v13")
    a(f"  v_add_u32 v254, {L_XI}, v254")
    a("  v_lshrrev_b32 v11, 3, v0")
    a("  v_mul_u32_u24 v13, 1152, v11")
    a("  v_and_b32 v11, 4, v11")
    a("  v_and_b32 v12, 7, v0")
    a("  v_xor_b32 v12, v12, v11")
    a(f"  v_lshl_add_u32 v{VDMA}, v12, 4, v13")
    expert_index(a)
    srd(a, 32, 54, 55, 5308416)
    a(f"  s_cmp_lt_u32 s2, {NF}")
    a("  s_cselect_b32 s34, s34, 0")
    a("  s_mul_i32 s58, s6, 9216")
    a("  s_mul_i32 s59, s56, 36864")
    a("  s_add_u32 s59, s59, s58")
    a("  s_mul_i32 s27, s6, 18432")
    a(f"  s_add_u32 s27, s27, {WS_WOL}")
    f = Asm(); tail_scalars(f, False)
    for l in f.lines: a(l)
    a("  s_setprio 2")
    a("  s_waitcnt vmcnt(0)")
    a("  s_barrier")
    stamp(a, 17, alt="alt2")
    issue(kv[0], 3)
    for j in range(9):
        a(f"  ds_read_u16_d16_hi v{ACC + 4 * j}, v254 offset:{32 * j}")
        a(f"  ds_read_u16_d16_hi v{ACC + 4 * j + 1}, v254 offset:{32 * j + 1152}")
        if j >= 4: a("  s_waitcnt lgkmcnt(8)")
        issue(kv[0] or kv[1], 1)
    issue(kv[1])
    stamp(a, 2)

    def dn(cb):
        return ("dma", f"  s_add_u32 m0, s58, {L_D + 896 * cb}", f"  buffer_load_dwordx4 v{VDMA}, s[32:35], s59 offen offset:{128 * cb} nt lds")
    DNS = [int(x) for x in os.environ.get("DNS", "3,3,3,0,0").split(",")]
    dmas = {p: [dn(k) for k in range(sum(DNS[:p]), sum(DNS[:p + 1]))] for p in range(5)}

    where = {}
    def wo_load(step, j, r):
        if "nowo" in OPT or ("halfwo" in OPT and j % 2): where[step, j] = r; return
        where[step, j] = r
        a(f"  s_add_u32 s24, s27, {step * 73728 + j * 2048}")
        vload(("wo", step, j), f"  buffer_load_dwordx4 v[{r}:{r + 3}], v{L16}, s[8:11], s24 offen sc1")
        vload(("wo", step, j), f"  buffer_load_dwordx4 v[{r + 4}:{r + 7}], v{L16}, s[8:11], s24 offen offset:1024 sc1")
    def op(step, j):
        f = AF if step < 8 else LF
        vwait(("wo", step, j))
        r = where[step, j]
        if "noOP" not in OPT:
            a(f"  v_smfmac_f32_16x16x64_bf16 v[{ACC + 4 * j}:{ACC + 4 * j + 3}], v[{f}:{f + 3}], v[{r}:{r + 7}], v{IDX}")
        return r
    def zero(o, ql):
        a(f"  v_mfma_f32_32x32x8_bf16 v[{o}:{o + 15}], v[{ql}:{ql + 1}], v[{Z}:{Z + 1}], 0   ; accumulator = 0")
    def flushA(q, o):
        b = pa_slot(q)
        a(f"  ds_write_b128 v{W16}, v[{o}:{o + 3}] offset:{b}")
        a(f"  ds_write_b128 v{W16}, v[{o + 4}:{o + 7}] offset:{b + 1024}")
        a(f"  ds_write_b64 v{W8}, v[{o + 8}:{o + 9}] offset:{b + 2048}")
    def R(p, TP, TA, TB, shadow=None):
        if "noR" in OPT: return
        b = L_PB + (p % 2) * 10240
        for s in range(4):
            a(f"  ds_read_b64 v[{TP + 2 * s}:{TP + 2 * s + 1}], v{L8} offset:{b + 2560 * s + 2048}")
        for s in range(4):
            a(f"  ds_read_b128 v[{TA + 4 * s}:{TA + 4 * s + 3}], v{L16} offset:{b + 2560 * s}")
        for s in range(4):
            a(f"  ds_read_b128 v[{TB + 4 * s}:{TB + 4 * s + 3}], v{L16} offset:{b + 2560 * s + 1024}")
        def add3(t, st):
            a(f"  v_pk_add_f32 v[{t}:{t + 1}], v[{t}:{t + 1}], v[{t + st}:{t + st + 1}]")
            a(f"  v_pk_add_f32 v[{t + 2 * st}:{t + 2 * st + 1}], v[{t + 2 * st}:{t + 2 * st + 1}], v[{t + 3 * st}:{t + 3 * st + 1}]")
            a(f"  v_pk_add_f32 v[{t}:{t + 1}], v[{t}:{t + 1}], v[{t + 2 * st}:{t + 2 * st + 1}]")
        rc = TP + 2
        if shadow: shadow()
        a("  s_waitcnt lgkmcnt(8)")
        add3(TP, 2)
        a(f"  v_rcp_f32 v{rc}, v{TP + 1}")
        for h, T in enumerate((TA, TB)):
            a(f"  s_waitcnt lgkmcnt({4 - 4 * h})")
            add3(T, 4); add3(T + 2, 4)
            a(f"  v_pk_mul_f32 v[{T}:{T + 1}], v[{T}:{T + 1}], v[{rc}:{rc + 1}] op_sel_hi:[1,0]")
            a(f"  v_pk_mul_f32 v[{T + 2}:{T + 3}], v[{T + 2}:{T + 3}], v[{rc}:{rc + 1}] op_sel_hi:[1,0]")
            a(f"  v_cvt_pk_bf16_f32 v{AF + 2 * h}, v{T}, v{T + 1}")
            a(f"  v_cvt_pk_bf16_f32 v{AF + 2 * h + 1}, v{T + 2}, v{T + 3}")
        a(f"  v_max3_u32 v{CHK}, v{CHK}, v{TP + 1}, v{rc}")
        if p % 2 == 0:
            a(f"  v_mul_f32 v{PEND}, v{TP}, v{rc}")
        else:
            a(f"  v_mul_f32 v{TP}, v{TP}, v{rc}")
            a(f"  v_cvt_pk_bf16_f32 v{LF + p // 2}, v{PEND}, v{TP}")

    seq = [(0, 0), (1, 0), (0, 1), (1, 1), (0, 2), (1, 2)] + [(q, u) for q in range(2, 8) for u in range(3)]
    Oof = lambda q: RING if q == 1 else O
    a("  s_barrier")
    qread(0); qread(1)
    issue(kv[2], 3)
    vwait(("k", 0))
    a("  s_waitcnt lgkmcnt(0)")
    stamp(a, 12, alt=True)
    w.qk2(0, 0, QL[0])
    zero(O, QL[0])
    zero(RING, QL[0])
    issue(kv[2], 2)
    w.qkm(0, 0, 0, QM[0])
    w.qkm(0, 0, 1, QM[0])
    issue(kv[2], 2)
    a("  s_setprio 0")
    for n, (q, u) in enumerate(seq):
        X, Y = 32 * (n % 2), 32 * ((n + 1) % 2)
        nx = seq[n + 1] if n + 1 < len(seq) else None
        p = q - 3
        if n == 0: prev = None
        elif u == 0 and q >= 3: prev = lambda: zero(O, QL[q % 2])
        else: prev = (Oof(seq[n - 1][0]), seq[n - 1][1])
        def hook(pos):
            if pos == "pre2b" and nx:
                vwait(("k", nx[1]))
                if (nx[0] >= 4 or nx[0] == 2) and nx[1] == 0: a("  s_waitcnt lgkmcnt(0)")
            if pos == "prepv0": vwait(("v", u, 1))
            if pos == "prepv2": vwait(("v", u, 3))
            if n == 4 and pos == "late": qread(2); qread(3)
            if n == 5 and pos == "mid": flushA(0, O)
            if n == 5 and pos == "late":
                a("  s_waitcnt lgkmcnt(0)"); zero(O, QL[0])
            if n == 6 and pos == "mid": flushA(1, RING)
        w.unit(X, Y, Oof(q), u, prev=prev, nxt=(nx[1], QM[nx[0] % 2], QL[nx[0] % 2]) if nx else None, hook=hook)
        if n < 10: stamp(a, 13 + n, alt=True)
        if q >= 2 and u == 0:
            bar()
            a("  s_setprio 2")
        if 3 <= q < 7 and u == 1: qread(q + 1)
        if p >= 1 and u == 1:
            for j in range(4, 8): wo_load(p, j - 4, op(p - 1, j))
        if q >= 2 and u == 2:
            F = X
            w.pv(O, X, u, 3)
            if p == -1:
                for j in range(4): wo_load(0, j, RING + 8 * j)
                flushA(q, O)
            else:
                wo_load(p, 8, F)
                if q == 7:
                    for j in range(3): wo_load(5, j, 112 + 8 * j)
                flushA(q, O)
                R(p, F + 8, F + 16, O)
                for j in range(4): wo_load(p, j + 4, op(p, j))
                op(p, 8)
                issue(dmas[p])
            if q < 7:
                a("  s_waitcnt lgkmcnt(0)")
                a("  s_setprio 0")
    SY = lambda j: RING + 8 * j if j < 4 else 8 * (j - 4)
    WR = [184, 186, 188, 190, 191, 192, 193, 194, 195]
    for j in range(3, 6): wo_load(5, j, 112 + 8 * j)
    for j in range(4, 8): op(4, j)
    bar()
    E7 = int(os.environ.get("E7", "3"))
    for j in range(6, 9): wo_load(5, j, 112 + 8 * j)
    R(5, 40, 48, O)
    for j in range(9):
        wo_load(6, j, SY(j)); op(5, j)
    for j in range(E7): wo_load(7, j, 112 + 8 * j)
    bar()
    for j in range(E7, E7 + 3): wo_load(7, j, 112 + 8 * j)
    R(6, 40, 48, O)
    for j in range(E7 + 3, 9): wo_load(7, j, 112 + 8 * j)
    for j in range(9): wo_load(8, j, op(6, j))
    vwait("dma")
    a(f"  v_add_u32 v254, {L_WR}, v{VN2}")
    for j in range(9):
        a(f"  ds_read_u16 v{WR[j]}, v254 offset:{32 * j}")
    a(f"  v_lshrrev_b32 v252, 7, v{L16}")
    a("  v_lshl_add_u32 v252, v252, 4, s39")
    a(f"  v_lshrrev_b32 v253, 8, v{L16}")
    a(f"  v_bfe_u32 v251, v{L16}, 5, 2")
    a("  v_lshl_add_u32 v253, v253, 2, v251")
    a(f"  v_mul_u32_u24 v253, {HI}, v253")
    a("  v_and_or_b32 v253, v252, 16, v253")
    a(f"  v_and_b32 v251, 8, v{L8}")
    a("  v_add3_u32 v253, v253, v251, s25")
    bar()
    R(7, 40, 48, O, lambda: [a(f"  v_lshlrev_b32 v{r}, 16, v{r}") for r in WR])
    a(f"  v_cmp_lt_u32 vcc, {hex(SAFE)}, v{CHK}")
    a("K2_OP7:")
    def stats(j):
        r = ACC + 4 * j
        a(f"  v_pk_add_f32 v[{r}:{r + 1}], v[{r}:{r + 1}], v[{r + 2}:{r + 3}]")
        wr = WR[j]
        sel = f"op_sel:[0,{wr % 2},0] op_sel_hi:[1,{wr % 2},1]"
        wp = f"v[{wr - wr % 2}:{wr - wr % 2 + 1}]"
        if j == 0:
            a(f"  v_pk_mul_f32 v[42:43], v[{r}:{r + 1}], v[{r}:{r + 1}]")
            a(f"  v_pk_mul_f32 v[44:45], v[{r}:{r + 1}], {wp} op_sel_hi:[1,0]")
        else:
            if j == 1: a(f"  v_pk_add_f32 v[40:41], v[{ACC}:{ACC + 1}], v[{r}:{r + 1}]")
            else: a(f"  v_pk_add_f32 v[40:41], v[40:41], v[{r}:{r + 1}]")
            a(f"  v_pk_fma_f32 v[42:43], v[{r}:{r + 1}], v[{r}:{r + 1}], v[42:43]")
            a(f"  v_pk_fma_f32 v[44:45], v[{r}:{r + 1}], {wp}, v[44:45] {sel}")
    for j in range(4): op(7, j)
    a("  s_cbranch_vccnz K2_SAFE")
    for j in range(9):
        op(8, j)
        if j + 4 < 9: op(7, j + 4)
        if j >= 4: stats(j - 4)
    for j in range(5, 9): stats(j)
    for i in range(3):
        a(f"  v_add_f32_dpp v{248 + i}, v{40 + 2 * i}, v{40 + 2 * i} row_ror:8 row_mask:0xf bank_mask:0x3")
    for i in range(3):
        a(f"  v_add_f32_dpp v{248 + i}, v{41 + 2 * i}, v{41 + 2 * i} row_ror:8 row_mask:0xf bank_mask:0xc")
    for m in ("row_half_mirror", "quad_perm:[2,3,0,1]", "quad_perm:[1,0,3,2]"):
        for i in range(3):
            a(f"  v_add_f32_dpp v{248 + i}, v{248 + i}, v{248 + i} {m} row_mask:0xf bank_mask:0xf")
    a("  s_mov_b32 exec_lo, 0x01010101")
    a("  s_mov_b32 exec_hi, 0x01010101")
    a("  ds_write_b128 v252, v[248:251]")
    a("  s_mov_b64 exec, -1")
    bar()
    a("  s_setprio 0")
    for j in range(9):
        a(f"  ds_write_b64 v253, v[{ACC + 4 * j}:{ACC + 4 * j + 1}] offset:{L_H + 32 * j}")
    a(f"  v_lshrrev_b32 v0, 4, v{L16}")
    a(f"  s_cmp_ge_u32 s2, {NF}")
    a("  s_cbranch_scc1 K2_T2")
    ffn_prep(a, False)
    a("  s_branch K2_T2")

    a("K2_SAFE:")
    S, KMs, Vs, KLs, QMs, QLs, M, LV = 0, 32, 40, 56, 58, 62, 80, 84
    a("  s_waitcnt vmcnt(0)")
    a("  s_nop 7")
    a(f"  v_lshrrev_b32 v0, 4, v{L16}")
    lane_kv(a, 96, 97, 98)
    lane_q(a, 99, 100)
    a("  v_lshrrev_b32 v1, 4, v0")
    a("  v_mul_u32_u24 v1, 2304, v1")
    a(f"  v_add_u32 v1, v1, v{VN2}")
    for i in range(36): a(f"  v_mov_b32 v{ACC + i}, 0")
    for j in range(9):
        a(f"  buffer_load_short_d16_hi v{ACC + 4 * j}, v1, s[12:15], s5 offen offset:{32 * j}")
        a(f"  buffer_load_short_d16_hi v{ACC + 4 * j + 1}, v1, s[12:15], s5 offen offset:{32 * j + 1152}")
    a(f"  v_mov_b32 v{KLs + 1}, 0")
    a(f"  v_mov_b32 v{QLs + 1}, 0")
    ws_ = Wave(a, KMs, Vs, KLs, IDX)
    def scores(withv):
        a(f"  buffer_load_dword v{KLs}, v98, s[8:11], s22 offen sc1")
        for h in range(2):
            a(f"  buffer_load_dwordx4 v[{KMs + 4 * h}:{KMs + 4 * h + 3}], v96, s[8:11], s20 offen offset:{1024 * h} sc1")
        if withv:
            for k in range(4):
                a(f"  buffer_load_dwordx4 v[{Vs + 4 * k}:{Vs + 4 * k + 3}], v97, s[8:11], s21 offen offset:{640 * k} sc1")
        a("  s_add_u32 s20, s20, 2048")
        a("  s_add_u32 s21, s21, 2560")
        a("  s_add_u32 s22, s22, 256")
        a("  s_waitcnt vmcnt(0)")
        ws_.qk2(S, 0, QLs); ws_.qkm(S, 0, 0, QMs); ws_.qkm(S, 0, 1, QMs)
    def rewind():
        a(f"  s_mov_b32 s20, {WS_KM}")
        a(f"  s_mov_b32 s21, {WS_VT}")
        a(f"  s_mov_b32 s22, {WS_KL}")
    a("  s_mov_b32 s23, s5")
    a("  s_mov_b32 s26, s27")
    a("  s_mov_b32 s44, 0")
    a("K2_SG:")
    a(f"  buffer_load_dword v{QLs}, v100, s[8:11], s23 offen offset:32 sc1")
    a(f"  buffer_load_dwordx4 v[{QMs}:{QMs + 3}], v99, s[8:11], s23 offen sc1")
    a(f"  v_mov_b32 v{M}, 0xff800000")
    rewind()
    a("K2_S1:")
    scores(False)
    for i in range(0, 32, 2):
        a(f"  v_max3_f32 v{M}, v{M}, v{S + i}, v{S + i + 1}")
    a(f"  s_cmp_lt_u32 s22, {WS_KL + 8192}")
    a("  s_cbranch_scc1 K2_S1")
    a(f"  v_mov_b32 v{M + 1}, v{M}")
    a(f"  v_permlane32_swap_b32 v{M}, v{M + 1}")
    a(f"  v_max_f32 v{M}, v{M}, v{M + 1}")
    for i in range(16): a(f"  v_mov_b32 v{O + i}, 0")
    rewind()
    a("K2_S2:")
    scores(True)
    for i in range(32): a(f"  v_sub_f32 v{S + i}, v{S + i}, v{M}")
    for i in range(32): a(f"  v_exp_f32 v{S + i}, v{S + i}")
    for k in range(4): ws_.pv(O, S, 0, k)
    a(f"  s_cmp_lt_u32 s22, {WS_KL + 8192}")
    a("  s_cbranch_scc1 K2_S2")
    for j in range(9):
        a(f"  buffer_load_dwordx4 v[{112 + 8 * j}:{115 + 8 * j}], v{L16}, s[8:11], s26 offen sc1")
        a(f"  buffer_load_dwordx4 v[{116 + 8 * j}:{119 + 8 * j}], v{L16}, s[8:11], s26 offen offset:1024 sc1")
        a(f"  s_add_u32 s26, s26, {2048 if j < 8 else 73728 - 8 * 2048}")
    a(f"  v_rcp_f32 v{M}, v{O + 9}")
    for i in range(7): a(f"  v_mov_b32 v{LV + i}, v{LV + i + 1}")
    for i in range(8): a(f"  v_mul_f32 v{O + i}, v{O + i}, v{M}")
    a(f"  v_mul_f32 v{LV + 7}, v{O + 8}, v{M}")
    for i in range(4): a(f"  v_cvt_pk_bf16_f32 v{AF + i}, v{O + 2 * i}, v{O + 2 * i + 1}")
    a("  s_add_u32 s23, s23, 144")
    a("  s_add_u32 s44, s44, 1")
    a("  s_cmp_eq_u32 s44, 8")
    a("  s_waitcnt vmcnt(0)")
    a("  s_cbranch_scc1 K2_SD")
    for j in range(9):
        a(f"  v_smfmac_f32_16x16x64_bf16 v[{ACC + 4 * j}:{ACC + 4 * j + 3}], v[{AF}:{AF + 3}], v[{112 + 8 * j}:{119 + 8 * j}], v{IDX}")
    a("  s_branch K2_SG")
    a("K2_SD:")
    for i in range(4): a(f"  v_cvt_pk_bf16_f32 v{LF + i}, v{LV + 2 * i}, v{LV + 2 * i + 1}")
    for j in range(9):
        r = where[8, j]
        assert where[7, j] == 112 + 8 * j
        a(f"  buffer_load_dwordx4 v[{r}:{r + 3}], v{L16}, s[8:11], s26 offen sc1")
        a(f"  buffer_load_dwordx4 v[{r + 4}:{r + 7}], v{L16}, s[8:11], s26 offen offset:1024 sc1")
        a("  s_add_u32 s26, s26, 2048")
    a("  s_mov_b64 vcc, 0")
    a("  s_waitcnt vmcnt(0)")
    a("  s_branch K2_OP7")

    a("K2_B:")
    KM, V, KL = 96, 136, 216
    IDX, W16, W8, VK, VV = 217, 219, 221, 223, 225
    QM, QL = (226, 230), (234, 236)
    L16, VKL, VQ, VQL, Q16, Q4 = 239, 242, 244, 245, 254, 255
    OB = (64, 80)
    w = Wave(a, KM, V, KL, IDX)
    vm.clear()
    BEFORE[0] = False; nb[0] = 3
    a("  s_setprio 0")
    srd(a, 8, 46, 47, WS_SIZE)
    common_scalars(a)
    lane_q(a, VQ, VQL)
    lane_kv(a, VK, VV, VKL)
    a(f"  v_mov_b32 v{IDX}, 0xdddddddd")
    a(f"  v_lshlrev_b32 v{L16}, 4, v0")
    a(f"  v_add_u32 v{W16}, s7, v{L16}")
    a(f"  v_lshl_add_u32 v{W8}, v0, 3, s7")
    a(f"  v_add_u32 v{Q16}, {L_QB}, v{L16}")
    a(f"  v_add_u32 v{Q4}, {L_QB}, v{VKL}")
    a(f"  v_mov_b32 v{QL[0] + 1}, 0")
    a(f"  v_mov_b32 v{QL[1] + 1}, 0")
    a("  s_cmp_eq_u32 s6, 0")
    a("  s_cselect_b32 s28, s36, s48")
    a("  s_cselect_b32 s29, s37, s49")
    a("  s_cselect_b32 s30, s14, 1152")
    a("  s_and_b32 s29, s29, 0xffff")
    a("  s_mov_b32 s31, 0x20000")
    a("  s_lshl_b32 s25, s6, 10")
    a("  s_add_u32 s44, s5, 8192")
    a("  s_sub_u32 s45, s25, 1024")
    a("  s_min_u32 s45, s45, 1024")
    a(f"  s_add_u32 s26, s45, {L_WR}")
    a("  s_cmp_eq_u32 s6, 0")
    a("  s_cselect_b32 s44, s44, s45")
    a(f"  s_cselect_b32 s45, {L_XI + 8192}, s26")
    a("  v_and_b32 v22, 60, v242")
    a("  s_barrier                               ; E")
    a("  s_cmp_lg_u32 s3, 4")
    a("  s_cbranch_scc1 K2_NOCHK")
    a("  global_load_dword v23, v22, s[66:67] sc1")
    a("K2_NOCHK:")
    a(f"  s_add_u32 m0, s25, {L_XI}")
    a("  s_add_u32 s24, s25, s5")
    a(f"  buffer_load_dwordx4 v{L16}, s[12:15], s24 offen lds")
    a(f"  s_add_u32 m0, s25, {L_XI + 4096}")
    a("  s_add_u32 s24, s24, 4096")
    a(f"  buffer_load_dwordx4 v{L16}, s[12:15], s24 offen lds")
    a("  s_mov_b32 m0, s45")
    a("  s_cmp_ge_u32 s6, 2")
    a("  s_cselect_b64 exec, 0xff, -1")
    a(f"  buffer_load_dwordx4 v{L16}, s[28:31], s44 offen lds")
    a("  s_mov_b64 exec, -1")
    for i in range(sum(GUB[:4]), sum(GUB)): gu(a, i)
    for i in range(16): a(f"  v_mov_b32 v{OB[0] + i}, 0")
    for i in range(10, 16): a(f"  v_mov_b32 v{OB[1] + i}, 0")
    ffn_consts_b(a)
    a("  v_mul_u32_u24 v243, 84, v0")
    a("  s_lshl_b32 s23, s6, 4")
    a(f"  s_add_u32 s23, s23, {2 * NA}")
    kv_setup(a, "s23")
    a("  s_mul_i32 s64, s6, 144")
    a("  s_add_u32 s64, s64, s5")
    a("  s_mul_i32 s59, s6, 1280")
    a(f"  s_add_u32 s59, s59, {L_QB}")
    a("  s_lshr_b32 s57, s2, 3")
    a("  s_lshl_b32 s57, s57, 2")
    a("  s_add_u32 s57, s57, s6")
    a("  s_mul_i32 s57, s57, 5184")
    a(f"  s_add_u32 s57, s57, {WS_WOL}")
    a("  s_lshl_b32 s65, s2, 2")
    a("  s_add_u32 s65, s65, s6")
    a("  s_lshl_b32 s65, s65, 10")
    a(f"  s_add_u32 s65, s65, {WS_PART - 4096 * NF}")
    f = Asm(); tail_scalars(f, True)
    for l in f.lines: a(l)
    a("  s_mov_b32 m0, s59")
    a("  s_setprio 1")
    a("  s_cmp_lg_u32 s3, 4")
    a("  s_cbranch_scc1 K2_R0")
    a("  s_lshr_b32 s24, s2, 3")
    a("  s_and_b32 s26, s2, 7")
    a("  s_mul_i32 s26, s26, 3")
    a("  s_cmp_ge_u32 s24, 12")
    a("  s_addc_u32 s26, s26, 0")
    a("  s_cmp_ge_u32 s24, 22")
    a("  s_addc_u32 s26, s26, 0")
    a("  s_mul_i32 s26, s26, 9")
    a("  v_min_u32 v1, 48, v0")
    a("  v_add_u32 v2, s26, v1")
    a("  v_cmp_gt_u32 vcc, 40, v0")
    a(f"  s_mov_b32 s24, {WS_FLAG}")
    a("  s_mov_b32 s70, 0")
    a("  v_cndmask_b32 v1, v2, v1, vcc")
    a("  v_lshlrev_b32 v1, 7, v1")
    a(f"  v_mov_b32 v3, {L_CNT}")
    a("  v_mov_b32 v4, 1")
    a("  v_mov_b32 v5, 0")
    a(f"  s_waitcnt vmcnt({3 + GUB[4]})")
    a("K2_WC:")
    a("  v_cmp_eq_u32 vcc, 0, v23")
    a("  s_add_u32 s70, s70, 1")
    a(f"  s_cmp_lt_u32 s70, {SPIN}")
    a("  s_cselect_b64 vcc, vcc, 0")
    a("  s_cbranch_vccz K2_WD")
    a("  global_load_dword v23, v22, s[66:67] sc1")
    a("  s_waitcnt vmcnt(0)")
    a("  s_branch K2_WC")
    a("K2_WD:")
    a("  s_mov_b64 exec, 1")
    a("  ds_add_rtn_u32 v2, v3, v4")
    a("  s_waitcnt lgkmcnt(0)")
    a("  v_cmp_eq_u32 vcc, 4, v2")
    a("  s_cbranch_vccz K2_W0")
    a("  buffer_store_dword v4, v5, s[8:11], s60 offen sc1")
    a("K2_W0:                                    ; no point in looking before this workgroup's own stores are through")
    a("  ds_read_b32 v2, v3")
    a("  s_waitcnt lgkmcnt(0)")
    a("  v_cmp_gt_u32 vcc, 5, v2")
    a("  s_cbranch_vccnz K2_W0")
    a("  s_mov_b64 exec, -1")
    a("K2_W1:")
    a("  buffer_load_dword v2, v1, s[8:11], s24 offen sc1")
    a("  s_add_u32 s70, s70, 1")
    a("  s_waitcnt vmcnt(0)")
    a("  v_cmp_eq_u32 vcc, 0, v2")
    a(f"  s_cmp_lt_u32 s70, {SPIN}")
    a("  s_cselect_b64 vcc, vcc, 0")
    a("  s_cbranch_vccnz K2_W1")
    a("K2_R0:")
    a("  s_waitcnt vmcnt(0)")
    a("  s_barrier                               ; R0")
    stamp(a, 17, alt="alt2")
    vload("st", f"  buffer_load_dwordx4 v{VQ}, s[8:11], s64 offen sc1 lds")
    a(f"  s_add_u32 m0, s59, {1024 - 32}")
    vload("st", f"  buffer_load_dword v{VQL}, s[8:11], s64 offen offset:32 sc1 lds")
    vwait("st")
    a("  s_barrier")
    stamp(a, 2)
    qread(0); qread(1)
    a("  s_waitcnt lgkmcnt(0)")
    kv = [kv_list(a, w, u, f"v{VK}", f"v{VV}", f"v{VKL}") for u in range(NB)]
    issue(kv[0]); issue(kv[1]); issue(kv[2])
    later = kv[3] + kv[4] + [("st", None, "  buffer_load_dword v243, v243, s[8:11], s57 offen sc1"),
             ("st", f"  s_add_u32 m0, s59, {5120 - 576}", f"  buffer_load_dwordx4 v{VQ}, s[8:11], s64 offen offset:576 sc1 lds"),
             ("st", f"  s_add_u32 m0, s59, {5120 + 1024 - 608}", f"  buffer_load_dword v{VQL}, s[8:11], s64 offen offset:608 sc1 lds")]
    stamp(a, 12, alt=True)
    def init(p, o=None):
        b = pa_slot(p); o = o or OB[p % 2]
        a(f"  ds_read_b128 v[{o}:{o + 3}], v{W16} offset:{b}")
        a(f"  ds_read_b128 v[{o + 4}:{o + 7}], v{W16} offset:{b + 1024}")
        a(f"  ds_read_b64 v[{o + 8}:{o + 9}], v{W8} offset:{b + 2048}")
    def flushB(p):
        b = L_PB + (p % 2) * 10240; o = OB[p % 2]
        a(f"  ds_write_b128 v{W16}, v[{o}:{o + 3}] offset:{b}")
        a(f"  ds_write_b128 v{W16}, v[{o + 4}:{o + 7}] offset:{b + 1024}")
        a(f"  ds_write_b64 v{W8}, v[{o + 8}:{o + 9}] offset:{b + 2048}")
    def chores(p):
        if p == 1 and "noclr" not in OPT:
            for i in range(4): a(f"  v_mov_b32 v{244 + i}, -1")
            a("  s_mul_i32 s24, s6, 2304")
            a("  s_add_u32 s24, s24, s5")
            for i in range(2):
                a(f"  buffer_store_dwordx4 v[244:247], v{L16}, s[16:19], s24 offen offset:{1024 * i} sc1")
            a("  s_mov_b64 exec, 0xffff")
            a(f"  buffer_store_dwordx4 v[244:247], v{L16}, s[16:19], s24 offen offset:2048 sc1")
            a("  s_lshl_b32 s24, s6, 5")
            a("  s_add_u32 s24, s24, s55")
            a("  s_mov_b64 exec, 3")
            a(f"  buffer_store_dwordx4 v[244:247], v{L16}, s[8:11], s24 offen sc1")
            a("  s_mov_b64 exec, -1")
        if p <= 5:
            a(f"  s_cmp_lt_u32 s2, {NF}")
            a(f"  s_cbranch_scc1 K2_CH{p}")
            for j in range(2 if 2 <= p <= 4 and "nopclr" not in OPT else 0):
                a(f"  buffer_store_dwordx4 v[244:247], v{L16}, s[8:11], s65 offen sc1")
                a(f"  s_add_u32 s65, s65, {448 * 1024}")
            a(f"  s_branch K2_CD{p}")
            a(f"K2_CH{p}:")
            for i in range(sum(GUS[:p - 1]), sum(GUS[:p])): gu(a, sum(GUB) + i)
            a(f"K2_CD{p}:")
    vwait(("k", 0))
    a("  s_waitcnt lgkmcnt(0)")
    w.qk2(0, 0, QL[0])
    w.qkm(0, 0, 0, QM[0])
    w.qkm(0, 0, 1, QM[0])
    for p in range(8):
        for u in range(NB):
            n = NB * p + u
            last = (p == 7 and u == NB - 1)
            def hook(pos, p=p, u=u):
                if pos == "pre2b" and u + 1 < NB: vwait(("k", u + 1))
                if pos == "prepv0": vwait(("v", u, 1))
                if pos == "prepv2": vwait(("v", u, 3))
                if p == 0:
                    if pos in ("early", "mid", "preqk", "late"): issue(later, 2)
                    if u == 3 and pos == "late":
                        bar()
                        init(1); init(0, 244)
                    if u == 4 and pos == "late": a("  s_waitcnt lgkmcnt(0)")
                    return
                if pos == "mid" and u == 0:
                    if p == 1:
                        for i in range(0, 10, 2):
                            a(f"  v_pk_add_f32 v[{OB[0] + i}:{OB[0] + i + 1}], v[{OB[0] + i}:{OB[0] + i + 1}], v[{244 + i}:{245 + i}]")
                    flushB(p - 1)
                if pos == "late" and u == 0:
                    vwait("st")
                    if p == 7: a("  s_waitcnt vmcnt(0)")
                    bar()
                if pos == "late" and u == (0 if p < 6 else 1) and p < 7:
                    init(p + 1); qread(p + 1); chores(p)
                if pos == "late" and u == 3 and p < 7: a("  s_waitcnt lgkmcnt(0)")
            prev = None if n == 0 else ((OB[p % 2], u - 1) if u else (OB[(p - 1) % 2], NB - 1))
            nxt = None if last else ((u + 1, QM[p % 2], QL[p % 2]) if u + 1 < NB else (0, QM[(p + 1) % 2], QL[(p + 1) % 2]))
            w.unit(32 * (n % 2), 32 * ((n + 1) % 2), OB[p % 2], u, prev=prev, nxt=nxt, hook=hook)
            if n < 5: stamp(a, 14 + n, alt=True)
    w.pv(OB[1], 32 * ((8 * NB - 1) % 2), NB - 1, 3)
    flushB(7)
    bar()
    a(f"  v_lshrrev_b32 v0, 4, v{L16}")
    a(f"  s_cmp_ge_u32 s2, {NF}")
    a("  s_cbranch_scc1 K2_NOPREP")
    ffn_prep(a, True)
    a("K2_NOPREP:")
    a("  s_cmp_lg_u32 s3, 4")
    a("  s_cbranch_scc1 K2_T1B")
    a(f"  v_add_u32 v1, {L_WR}, v{L16}")
    for i in range(4): a(f"  v_mov_b32 v{20 + i}, 0")
    a("  ds_read_b128 v[16:19], v1")
    a("  s_mov_b64 exec, 0xff")
    a("  ds_read_b128 v[20:23], v1 offset:1024")
    a("  s_mov_b64 exec, -1")
    for i in range(4): a(f"  v_mov_b32 v{24 + i}, 0x3f803f80")
    a("  v_lshrrev_b32 v1, 3, v0                 ; t")
    a("  v_and_b32 v2, 7, v0                     ; j")
    a("  s_waitcnt lgkmcnt(0)")
    a("  v_mfma_f32_16x16x32_bf16 v[12:15], v[24:27], v[16:19], 0")
    a("  v_mfma_f32_16x16x32_bf16 v[12:15], v[24:27], v[20:23], v[12:15]")
    a("  v_lshlrev_b32 v3, 4, v1")
    a("  v_lshlrev_b32 v4, 4, v2")
    a("  v_sub_u32 v5, s38, v1                   ; 2047 - token t")
    a("  v_sub_u32 v6, s38, v2                   ; 2047 - token j")
    a("  v_lshlrev_b32 v7, 3, v1                 ; 8t")
    a("  v_and_b32 v10, 0x30, v0")
    a("  v_and_b32 v11, 1, v1")
    a("  v_lshl_add_u32 v10, v11, 2, v10")
    a(f"  v_add_u32 v10, {L_MR}, v10")
    for m in ("row_ror:8", "row_ror:4", "row_ror:2", "row_ror:1"):
        a(f"  v_add_f32_dpp v12, v12, v12 {m} row_mask:0xf bank_mask:0xf")
    a(f"  v_mov_b32 v14, {f32(1.0 / 576)}")
    a("  s_movk_i32 s25, 0x7ff")
    a("  s_brev_b32 s26, 1")
    a("  s_setprio 3")
    a("  s_barrier                               ; T1")
    stamp(a, 12)
    for s in range(4):
        a(f"  ds_read_b128 v[{16 + 4 * s}:{19 + 4 * s}], v3 offset:{L_ST + 128 * s}")
        a(f"  ds_read_b128 v[{32 + 4 * s}:{35 + 4 * s}], v4 offset:{L_ST + 128 * s}")
    def both(f):
        f(16); f(32)
    a("  s_waitcnt lgkmcnt(4)")
    both(lambda b: (a(f"  v_pk_add_f32 v[{b}:{b + 1}], v[{b}:{b + 1}], v[{b + 4}:{b + 5}]"),
                    a(f"  v_add_f32 v{b + 2}, v{b + 2}, v{b + 6}")))
    a("  s_waitcnt lgkmcnt(0)")
    both(lambda b: a(f"  v_pk_add_f32 v[{b + 8}:{b + 9}], v[{b + 8}:{b + 9}], v[{b + 12}:{b + 13}]"))
    both(lambda b: a(f"  v_pk_add_f32 v[{b}:{b + 1}], v[{b}:{b + 1}], v[{b + 8}:{b + 9}]"))
    both(lambda b: a(f"  v_pk_mul_f32 v[{b}:{b + 1}], v[{b}:{b + 1}], v[14:15] op_sel_hi:[1,0]"))
    both(lambda b: a(f"  v_fma_f32 v{b + 1}, -v{b}, v{b}, v{b + 1}          ; var"))
    both(lambda b: a(f"  v_max_f32 v{b + 1}, 0, v{b + 1}"))
    both(lambda b: a(f"  v_add_f32 v{b + 1}, {f32(1e-5)}, v{b + 1}"))
    both(lambda b: a(f"  v_rsq_f32 v{b + 1}, v{b + 1}                 ; rstd"))
    both(lambda b: a(f"  v_add_f32 v{b + 10}, v{b + 10}, v{b + 14}"))
    both(lambda b: a(f"  v_add_f32 v{b + 2}, v{b + 2}, v{b + 10}"))
    both(lambda b: a(f"  v_fma_f32 v{b + 2}, -v{b}, v12, v{b + 2}"))
    both(lambda b: a(f"  v_mul_f32 v{b + 2}, v{b + 2}, v{b + 1}"))
    both(lambda b: a(f"  v_ashrrev_i32 v{b + 4}, 31, v{b + 2}"))
    both(lambda b: a(f"  v_bitop3_b32 v{b + 4}, v{b + 4}, s26, v{b + 2} bitop3:0x56"))
    a("  v_bfi_b32 v20, s25, v5, v20")
    a("  v_bfi_b32 v36, s25, v6, v36")
    a("  v_cmp_gt_u32 vcc, v36, v20")
    a("  v_max_u32 v20, 1, v20")
    a("  s_mov_b32 exec_lo, 0x01010101")
    a("  v_lshrrev_b64 v[8:9], v7, vcc")
    a("  s_mov_b32 exec_hi, 0x01010101")
    a("  v_and_b32 v8, 0xff, v8")
    a("  v_bcnt_u32_b32 v8, v8, 0")
    a("  v_lshlrev_b32 v8, 2, v8")
    a("  buffer_store_dword v20, v8, s[8:11], s39 offen sc1")
    a("  v_add_f32 v21, 1.0, v17")
    a("  v_mul_f32 v22, -v16, v17")
    a("  ds_write2_b32 v10, v21, v22 offset0:0 offset1:2")
    a("  v_rcp_f32 v21, v21")
    a(f"  v_mul_f32 v19, {f32(-math.log2(math.e))}, v18")
    a("  v_exp_f32 v19, v19")
    a("  v_mul_f32 v17, v17, v21")
    a("  v_add_f32 v19, 1.0, v19")
    a("  v_rcp_f32 v19, v19")
    a("  buffer_store_dwordx4 v[16:19], v3, s[8:11], s55 offen sc1")
    a("  s_mov_b64 exec, -1")
    a("  s_branch K2_T2")
    a("K2_T1B:")
    a("  s_barrier                               ; T1")

    a("K2_T2:")
    a("  v_lshlrev_b32 v3, 4, v0")
    a("  v_add_u32 v1, s52, v3")
    a("  v_mov_b32 v2, s51")
    a("  s_waitcnt lgkmcnt(0)")
    stamp(a, 13)
    a("  s_barrier                               ; T2")
    a("  s_mov_b32 exec_hi, 0xf")
    a("  ds_read_b128 v[4:7], v2")
    for i in range(4):
        a(f"  ds_read_b128 v[{8 + 4 * i}:{11 + 4 * i}], v1 offset:{L_H + HI * i}")
    for i in range(4):
        a(f"  s_waitcnt lgkmcnt({3 - i})")
        r = 8 + 4 * i
        a(f"  v_pk_fma_f32 v[{r}:{r + 1}], v[{r}:{r + 1}], v[4:5], v[6:7]")
        a(f"  v_pk_fma_f32 v[{r + 2}:{r + 3}], v[{r + 2}:{r + 3}], v[4:5], v[6:7]")
        a(f"  v_cvt_pk_bf16_f32 v{24 + i}, v{r}, v{r + 2}")
        a(f"  v_cvt_pk_bf16_f32 v{28 + i}, v{r + 1}, v{r + 3}")
    a("  buffer_store_dwordx4 v[24:27], v3, s[16:19], s53 offen sc1")
    a("  buffer_store_dwordx4 v[28:31], v3, s[16:19], s53 offen offset:1152 sc1")
    ffn_tail(a)
    a("K2_END:")
    stamp_dump(a, 1, "s3")
    a("K2_EXIT:")
    a("  s_endpgm")
    a("K2_LAST:")
```

```python
import struct, math
WS_Q = 0
WS_KM = 0x240000
WS_KL = 0x250000
WS_VT = 0x252000
WS_KEYS = 0x266000
WS_STAT = 0x268000
WS_WOL = 0x270000
WS_FLAG = 0x312000
WS_PART = 0x31A000
PSTR = 18432 + 128
WS_END = WS_PART + 144 * PSTR
QSCALE = 18 ** -0.5 * math.log2(math.e)
def f32(x):
    return "0x%08x" % struct.unpack("<I", struct.pack("<f", x))[0]

import os
DIAG = int(os.environ.get("DIAG", "0"))
WS_DBG = WS_END + 0x20000
WS_SIZE = WS_DBG + 2 * 256 * 8 * 128 if DIAG else WS_END
ST0 = 74
STAMPS = [int(x) for x in os.environ.get("STAMPS", "").split(",") if x]
if STAMPS: STAMPS += [0, 1, 24, 25]
OPT = set(os.environ.get("OPT", "").split(","))
def stamp(a, i, real=False, alt=False):
    if ("alt" in OPT or "alt2" in OPT) and 12 <= i <= 23 and not alt: return
    if alt and ("alt" if alt is True else alt) not in OPT: return
    if not DIAG or (STAMPS and i not in STAMPS): return
    a(f"  {'s_memrealtime' if (real or DIAG == 2) else 's_memtime'} s[100:101]")
    a("  s_waitcnt lgkmcnt(0)")
    a(f"  s_mov_b32 s{ST0 + i}, s100")
def stamp_init(a):
    if not DIAG: return
    for i in range(26): a(f"  s_mov_b32 s{ST0 + i}, 0")
    stamp(a, 0, True); stamp(a, 1)
def stamp_dump(a, kern, swave):
    if not DIAG: return
    stamp(a, 24); stamp(a, 25, True)
    if kern == 0 and DIAG == 1: a("  s_sleep 20")
    a("  s_mov_b64 exec, 1")
    a(f"  s_lshl_b32 s100, s2, 3")
    a(f"  s_add_u32 s100, s100, {swave}")
    a(f"  s_lshl_b32 s100, s100, 7")
    a(f"  s_add_u32 s100, s100, {WS_DBG + kern * 256 * 8 * 128}")
    a("  s_nop 4")
    a("  v_mov_b32 v0, 0")
    for i in range(26):
        a(f"  v_mov_b32 v1, s{ST0 + i}")
        a(f"  buffer_store_dword v1, v0, s[8:11], s100 offen offset:{4 * i}")

KNAME = "sequential_preLN__grouped_kv_mqa__moe_arch_mod__prompt_kernel"
NF = 144
SPIN = 0x40000
L_G = 40960
L_U = L_G + 36864 + 128
L_D = L_U + 36864
L_WR = L_D + 36864
L_QB = L_WR + 1152
L_CNT = L_QB + 10240
LDS_SIZE = L_CNT + 64 + 256
def lane_gu(a, v):
    a("  v_lshrrev_b32 v14, 4, v0")
    a("  v_lshrrev_b32 v16, 2, v0")
    a("  v_mul_u32_u24 v16, 9216, v16")
    a("  v_and_b32 v15, 3, v0")
    a("  v_xor_b32 v15, v15, v14")
    a(f"  v_lshl_add_u32 v{v}, v15, 4, v16")
def expert_index(f):
    f("  s_and_b32 s56, s2, 7")
    f("  s_mul_i32 s56, s56, 18")
    f("  s_lshr_b32 s57, s2, 3")
    f("  s_add_u32 s56, s56, s57")
VGU = 238
def gu_setup(f):
    lane_gu(f, VGU)
    expert_index(f)
    f("  s_mov_b32 s32, s50")
    f("  s_and_b32 s33, s51, 0xffff")
    f("  s_mov_b32 s35, 0x20000")
    f("  s_mov_b32 s40, s52")
    f("  s_and_b32 s41, s53, 0xffff")
    f("  s_mov_b32 s43, 0x20000")
    f(f"  s_cmp_lt_u32 s2, {NF}")
    f("  s_cselect_b32 s34, 5308416, 0")
    f("  s_mov_b32 s42, s34")
    f("  s_and_b32 s57, s3, 3")
    f("  s_lshl_b32 s58, s57, 10")
    f("  s_mul_i32 s62, s57, 147456")
    f("  s_lshl_b32 s57, s56, 6")
    f("  s_add_u32 s62, s62, s57")
def gu(a, i):
    m, k = i // 9, i % 9
    a(f"  s_add_u32 m0, s58, {(L_G, L_U)[m] + 4096 * k}")
    a(f"  s_add_u32 s57, s62, {589824 * k}")
    a(f"  buffer_load_dwordx4 v{VGU}, s[{(32, 40)[m]}:{(35, 43)[m]}], s57 offen{'' if 'pl2' in OPT else ' nt'} lds")
GUB = [int(x) for x in os.environ.get("GUB", "3,0,3,0,3").split(",")]
GUS = [int(x) for x in os.environ.get("GUS", "0,3,2,2,2").split(",")]
```

```python
import sys
from asmlib import *
from layout import *
import k1, k2

NAME = "sequential_preLN__grouped_kv_mqa__moe_arch_mod__prompt"
def kd(name, vgpr, sgpr=102 if DIAG else 96):
    return f'''.amdhsa_kernel {name}
  .amdhsa_next_free_vgpr {vgpr}
  .amdhsa_next_free_sgpr {sgpr}
  .amdhsa_accum_offset {(vgpr + 3) // 4 * 4}
  .amdhsa_group_segment_fixed_size 0
  .amdhsa_kernarg_size 104
  .amdhsa_user_sgpr_count 2
  .amdhsa_user_sgpr_kernarg_segment_ptr 1
  .amdhsa_system_sgpr_workgroup_id_x 1
.end_amdhsa_kernel
'''
def build(verbose=True):
    a = Asm()
    k1.gen_k1(a); k2.gen_k2(a)
    once = lambda *ls: (lambda l, n: l in ls and n == 1 or l in ("K2_SD", "K2_WD") and n == 2)
    paths = [once("K1_COMP", "K2_POLL0"), once("K1_COMP", "K1_NOPF", "K1_NORS", "K1_KV", "K2_NOFLAG", "K2_POLL0", "K2_ROWS"),
             once("K1_COMP", "K1_KV", "K1_V", "K2_POLL0", "K2_ROW1", "K2_ROW1W", "K2_SAFE", "K2_S1", "K2_S2"),
             once("K2_ROW1", "K2_GU"), once("K2_R0", "K2_NOCHK", "K2_CH1", "K2_CH2", "K2_CH3", "K2_CH4", "K2_CH5", "K2_T1B", "K2_ROW1", "K2_GU", "K2_D2", "K2_D3"),
             once("K1_SPARE", "K2_R0", "K2_NOPREP", "K2_END"), once("K1_SPARE", "K1_TASK", "K2_NOPREP", "K2_END"), once("K1_SPARE", "K1_TASK", "K2_A", "K2_T2", "K2_END")]
    assert k1.K1_LDS <= L_CNT and LDS_SIZE <= 163840
    s = open("header.txt").read() + f"; @launch grid=(256,1,1) block=(512,1,1) lds={LDS_SIZE}\n"
    s += '.amdgcn_target "amdgcn-amd-amdhsa--gfx950"\n.text\n'
    rep = []
    ins = fix_hazards(a.lines, rep)
    if verbose:
        print("instructions:", sum(1 for i in ins if i.mn), "nops inserted:", len(rep))
        for r in rep: print("   nop", r)
    for d in paths:
        tr = trace_path(ins, KNAME, d)
        if verbose: print("path barriers", sum(1 for i in tr if i.mn == "s_barrier"))
        for e in check_waits(tr, "")[:3]: print("WAIT ERROR", e)
    s += f".globl {KNAME}\n.p2align 8\n.type {KNAME},@function\n" + "\n".join(i.text for i in ins) + "\n"
    s += '.section .rodata,"a"\n.p2align 6\n' + kd(KNAME, 256)
    return s
if __name__ == "__main__":
    out = sys.argv[1] if len(sys.argv) > 1 else f"cdna_kernels/{NAME}.s"
    open(out, "w").write(build())
```

```python
from asmlib import *
from layout import *

SLOT = 20480
NSLOT = 7
DEPTH = int(os.environ.get("DEPTH", "3"))
L_STAT = NSLOT * SLOT
L_CS = L_STAT + 1536
L_TR = L_CS + 512
K1_LDS = L_TR + 4 * 3840
SC = " sc1"

NTW = " nt" if "ntw" in OPT else ""
NTX = " nt" if "ntx" in OPT else ""

def zero_counter(a):
    a("  s_waitcnt lgkmcnt(0)")
    srd(a, 28, 48, 49, 1152)
    a(f"  s_mov_b32 m0, {L_WR}")
    a("  v_lshlrev_b32 v123, 4, v0")
    a("  buffer_load_dwordx4 v123, s[28:31], 0 offen lds")
    a("  s_mov_b64 exec, 0xff")
    a("  buffer_load_dwordx4 v123, s[28:31], 0 offen offset:1024 lds")
    a("  s_mov_b64 exec, -1")
    a("  v_mov_b32 v122, 0")
    a(f"  v_mov_b32 v123, {L_CNT}")
    a("  ds_write_b32 v123, v122")
    a("  s_waitcnt lgkmcnt(0)")
def flag_slot(a):
    a("  s_and_b32 s60, s2, 7")
    a("  s_mul_i32 s60, s60, 3")
    a("  s_add_u32 s60, s60, s34")
    a("  s_mul_i32 s61, s60, 9")
    a("  s_add_u32 s61, s61, s5")
    a("  s_add_u32 s61, s61, 40")
    a("  s_cmp_eq_u32 s5, 9")
    a("  s_cselect_b32 s60, s60, s61")
    a("  s_lshl_b32 s60, s60, 7")
    a(f"  s_add_u32 s60, s60, {WS_FLAG}")

def gen_k1(a):
    a(KNAME + ":")
    a("  s_cmp_ge_u32 s2, 256")
    a("  s_cbranch_scc1 K2_EXIT")
    stamp_init(a)
    a("  s_load_dwordx8 s[36:43], s[0:1], 0")
    a("  s_load_dwordx2 s[44:45], s[0:1], 32     ; wo")
    a("  s_load_dwordx2 s[46:47], s[0:1], 96     ; ws")
    a("  s_load_dwordx8 s[48:55], s[0:1], 48")
    a("  s_load_dwordx4 s[64:67], s[0:1], 80")
    a("  v_lshrrev_b32 v1, 6, v0")
    a("  v_and_b32 v0, 63, v0                    ; lane")
    a("  v_readfirstlane_b32 s3, v1              ; wave")
    a("  s_and_b32 s4, s2, 7")
    a("  s_lshr_b32 s5, s2, 3")
    a("  s_cmp_ge_u32 s5, 30")
    a("  s_cbranch_scc1 K1_SPARE")
    a("  s_mul_i32 s34, s5, 26")
    a("  s_lshr_b32 s34, s34, 8                  ; T 0..2")
    a("  s_mul_i32 s6, s34, 10")
    a("  s_sub_u32 s5, s5, s6")
    a("  s_lshl_b32 s4, s4, 8")
    a("  s_mul_i32 s6, s34, 80")
    a("  s_add_u32 s4, s4, s6")
    a("  s_add_u32 s35, s4, 96")
    a("  s_min_u32 s6, s6, 16")
    a("  s_add_u32 s4, s4, s6")
    a("  s_cmp_lt_u32 s3, 4")
    a("  s_cbranch_scc1 K1_COMP")

    if "noprio" not in OPT: a("  s_setprio 1")
    a("  s_sub_u32 s63, s3, 4                    ; h")
    a("  v_lshrrev_b32 v1, 3, v0")
    a("  v_mul_u32_u24 v2, 1152, v1")
    a("  v_lshrrev_b32 v3, 4, v0")
    a("  v_and_b32 v4, 7, v0")
    a("  v_xor_b32 v3, v3, v4")
    a("  s_lshl_b32 s6, s63, 2")
    a("  s_and_b32 s6, s6, 4")
    a("  v_xor_b32 v3, s6, v3")
    a("  v_lshl_add_u32 v10, v3, 4, v2           ; blocks 0, 2")
    a("  v_xor_b32 v11, 64, v10")
    a("  v_add_u32 v11, 9216, v11                ; block 1")
    a("  v_add_u32 v12, 18432, v10")
    a("  v_lshrrev_b32 v2, 2, v0")
    a("  v_lshrrev_b32 v3, 5, v0")
    a("  v_lshlrev_b32 v3, 1, v3")
    a("  v_and_b32 v4, 3, v0")
    a("  v_xor_b32 v3, v3, v4")
    a("  v_lshlrev_b32 v3, 4, v3")
    a("  s_cmp_eq_u32 s5, 9")
    a("  s_cselect_b32 s7, 36, 1152")
    a("  s_cselect_b32 s20, 20, 48")
    a("  v_min_u32 v3, s20, v3")
    a("  v_mad_u32_u24 v13, v2, s7, v3")
    a("  s_mul_i32 s21, s63, 3072")
    a("  s_lshl_b32 s22, s63, 10")
    a("  s_add_u32 s22, s22, 12288")
    a("  s_mul_i32 s23, s34, 3")
    a("  s_add_u32 s23, s23, s5")
    a("  s_mul_i32 s24, s23, 7282")
    a("  s_lshr_b32 s24, s24, 16")
    a("  s_mul_i32 s24, s24, 9")
    a("  s_sub_u32 s23, s23, s24")
    a("  s_mov_b32 s6, s23")
    a("  s_mul_i32 s24, s63, 24")
    a("  s_add_u32 s24, s24, s4")
    a("  s_mul_i32 s24, s24, 1152")
    a("  s_lshl_b32 s25, s7, 4")
    a("  s_mul_i32 s25, s25, s63")
    a("  s_lshl_b32 s26, s5, 7")
    a("  s_cmp_eq_u32 s5, 9")
    a("  s_cselect_b32 s26, 0, s26")
    a("  s_cselect_b32 s27, 0, 64")
    a("  s_add_u32 s25, s25, s26")
    a("  s_lshl_b32 s7, s7, 6")
    a("  s_waitcnt lgkmcnt(0)")
    srd(a, 12, 36, 37, 0)
    a("  s_mul_i32 s14, s35, 1152")
    a("  s_cmp_eq_u32 s5, 9")
    a("  s_cselect_b32 s16, s40, s38")
    a("  s_cselect_b32 s17, s41, s39")
    a("  s_cselect_b32 s28, s42, s38")
    a("  s_cselect_b32 s29, s43, s39")
    a("  s_mov_b32 s18, 663552")
    a("  s_cselect_b32 s18, 20736, s18")
    a("  s_mov_b32 s30, s18")
    a("  s_and_b32 s17, s17, 0xffff")
    a("  s_and_b32 s29, s29, 0xffff")
    a("  s_mov_b32 s19, 0x20000")
    a("  s_mov_b32 s31, 0x20000")
    order = []
    def dma(k, c):
        b = (c % NSLOT) * SLOT
        if k == "w":
            a("  s_mul_i32 s33, s6, s7")
            a(f"  s_add_u32 m0, s22, {b}")
            a("  s_add_u32 s33, s33, s25")
            a("  buffer_load_dwordx4 v13, s[16:19], s33 offen" + NTW + " lds")
            a(f"  s_add_u32 m0, s22, {b + 4096}")
            a("  s_add_u32 s33, s33, s27")
            a("  buffer_load_dwordx4 v13, s[28:31], s33 offen" + NTW + " lds")
            a("  s_add_u32 s6, s6, 1")
            a("  s_cmp_eq_u32 s6, 9")
            a("  s_cselect_b32 s6, 0, s6")
            order.extend([c] * 2)
        else:
            a("  s_lshl_b32 s32, s23, 7")
            a(f"  s_add_u32 m0, s21, {b}")
            a("  s_add_u32 s32, s32, s24")
            a("  buffer_load_dwordx4 v10, s[12:15], s32 offen" + NTX + " lds")
            a(f"  s_add_u32 m0, s21, {b + 1024}")
            a("  s_add_u32 s23, s23, 1")
            a("  buffer_load_dwordx4 v11, s[12:15], s32 offen" + NTX + " lds")
            a(f"  s_add_u32 m0, s21, {b + 2048}")
            a("  s_cmp_eq_u32 s23, 9")
            a("  s_cselect_b32 s23, 0, s23")
            a("  buffer_load_dwordx4 v12, s[12:15], s32 offen" + NTX + " lds")
            order.extend([c] * 3)
    sched = os.environ.get("K1S", "w0 x0 w1 x1 w2 x2 | w3 x3 | w4 x4 | w5 x5 | w6 x6 | w7 x7 | w8 x8 | | |").split("|")
    ng = 0
    def stage(n):
        nonlocal ng
        for i in range(n): gu(a, ng); ng += 1; order.append(-1)
    for c in range(9):
        for t in sched[c].split(): dma(t[0], int(t[1]))
        assert order.count(c) == 5 and max(order) < c + NSLOT - 1
        if c == 6:
            assert len(order) == 45
            flag_slot(a)
            gu_setup(a)
        if c >= 7: stage(GUB[c - 7])
        if c == 7:
            clears(a, "a")
            if "noclr" not in OPT: order.extend([-1] * 4)
        a(f"  s_waitcnt vmcnt({len(order) - 1 - max(i for i, x in enumerate(order) if x == c)})")
        a("  s_barrier")
    stage(GUB[2])
    clears2(a, "a")
    a("  s_barrier                               ; S")
    stage(GUB[3])
    a("  s_branch K2_B")

    a("K1_COMP:")
    if "nocp" not in OPT:
        a("  s_cmp_lg_u32 s3, 0")
        a("  s_cbranch_scc1 K1_NOPF")
        a("  s_getpc_b64 s[68:69]")
        a("K1_PC0:")
        a(f"  s_sub_u32 s68, s68, K1_PC0-{KNAME}")
        a("  s_subb_u32 s69, s69, 0")
        a("  v_lshlrev_b32 v120, 7, v0")
        a("  global_load_dword v120, v120, s[68:69]")
        a("K1_NOPF:")
    flag_slot(a)
    a("  s_waitcnt lgkmcnt(0)")
    srd(a, 8, 46, 47, WS_SIZE)
    a("  s_cmp_lg_u32 s3, 1")
    a("  s_cbranch_scc1 K1_NORS")
    zero_counter(a)
    a("K1_NORS:")
    a("  s_lshr_b32 s6, s3, 1                    ; tw")
    a("  s_and_b32 s7, s3, 1                     ; cw")
    a("  v_lshrrev_b32 v1, 4, v0                 ; g")
    a("  v_and_b32 v2, 15, v0                    ; j")
    a("  v_lshrrev_b32 v3, 1, v2")
    a("  v_xor_b32 v3, v3, v1")
    a("  v_lshlrev_b32 v3, 4, v3")
    a("  v_lshl_add_u32 v3, v2, 7, v3")
    a("  s_mul_i32 s20, s6, 6144")
    a("  s_xor_b32 s23, s6, s7")
    a("  s_lshl_b32 s24, s23, 6")
    a("  v_xor_b32 v3, s24, v3")
    a("  v_add_u32 v4, s20, v3")
    a("  v_xor_b32 v5, 64, v4")
    a("  v_bfe_u32 v3, v0, 2, 2")
    a("  v_lshl_add_u32 v3, v1, 3, v3")
    a("  v_lshlrev_b32 v3, 6, v3")
    a("  v_and_b32 v6, 1, v1")
    a("  v_lshl_add_u32 v3, v6, 5, v3")
    a("  v_and_b32 v6, 3, v0")
    a("  v_lshl_add_u32 v3, v6, 3, v3")
    a("  s_lshl_b32 s20, s7, 12")
    a("  s_add_u32 s20, s20, 12288")
    a("  s_lshl_b32 s24, s23, 11")
    a("  s_add_u32 s20, s20, s24")
    a("  v_add_u32 v6, s20, v3")
    a("  v_xor_b32 v7, 32, v6                    ; tile 1")
    a("  v_xor_b32 v8, 0x800, v6")
    a("  v_xor_b32 v9, 0x800, v7")
    ACC, CS, SX, SQ, ONE, FR = 20, 44, 52, 64, 76, 80
    for i in range(56): a(f"  v_mov_b32 v{ACC + i}, 0")
    for i in range(4): a(f"  v_mov_b32 v{ONE + i}, 0x3f803f80")
    a("  s_mul_i32 s20, s6, 768")
    a(f"  s_add_u32 s20, s20, {L_STAT}")
    a("  v_lshl_add_u32 v10, v2, 4, s20")
    a("  s_lshl_b32 s24, s7, 3")
    a("  v_add_u32 v11, s24, v10")
    a("  s_lshl_b32 s20, s3, 7")
    a(f"  s_add_u32 s20, s20, {L_CS}")
    a("  v_lshl_add_u32 v12, v1, 4, s20")
    a("  v_xor_b32 v13, 0x100, v12               ; partner's")
    a("  s_mul_i32 s20, s3, 3840")
    a(f"  s_add_u32 s20, s20, {L_TR}")
    a("  v_mul_u32_u24 v14, 80, v2")
    a("  v_lshl_add_u32 v14, v1, 3, v14")
    a("  v_add_u32 v14, s20, v14")
    a("  v_lshrrev_b32 v3, 2, v0")
    a("  v_and_b32 v17, 3, v0")
    a("  v_mul_u32_u24 v15, 80, v3")
    a("  v_lshl_add_u32 v15, v17, 4, v15")
    a("  v_add_u32 v15, s20, v15")
    a("  v_mul_u32_u24 v16, 1152, v3")
    a("  v_lshl_add_u32 v16, v17, 4, v16         ; Q store")
    for i, m in enumerate((0x22222222, 0x44444444, 0x88888888)):
        a(f"  s_mov_b32 s{26 + 2 * i}, {hex(m)}")
        a(f"  s_mov_b32 s{27 + 2 * i}, {hex(m)}")
    a("  s_mul_i32 s21, s6, 48")
    a("  s_add_u32 s21, s21, s4")
    a(f"  s_mov_b32 s22, {f32(QSCALE)}")
    a("  s_cmp_eq_u32 s5, 9")
    a("  s_cselect_b32 s22, 1.0, s22")
    a("  s_mul_i32 s20, s21, 1152")
    a("  s_lshl_b32 s23, s5, 7")
    a("  s_add_u32 s20, s20, s23")
    a("  s_lshl_b32 s23, s7, 6")
    a("  s_add_u32 s23, s20, s23")
    a("  s_add_u32 s24, s23, 18432")
    a("  s_add_u32 s25, s23, 36864")
    srd(a, 12, 46, 47, 0)
    a("  s_mul_i32 s14, s35, 1152")
    def reads(c, s):
        b = (c % NSLOT % 3) * SLOT
        f = FR + 20 * s
        l = []
        for t in range(2):
            for j in range(2):
                l.append(f"  ds_read_b64_tr_b16 v[{f + 4 * t + 2 * j}:{f + 4 * t + 2 * j + 1}], v{6 + 2 * s + t} offset:{b + 256 * j}")
        x = [f"  ds_read_b128 v[{f + 8 + 4 * i}:{f + 11 + 4 * i}], v{4 + s} offset:{b + 2048 * i}" for i in range(3)]
        return [l[0], l[1], x[0], l[2], l[3], x[1], x[2]]
    def mfma(d, x, y):
        a(f"  v_mfma_f32_16x16x32_bf16 v[{d}:{d + 3}], v[{x}:{x + 3}], v[{y}:{y + 3}], v[{d}:{d + 3}]")
    def mf(s, k, t=0, i=0):
        W, X = FR + 20 * s + 4 * t, FR + 20 * s + 8 + 4 * i
        if k == "m": mfma(ACC + 8 * i + 4 * t, W, X)
        if k == "c": mfma(CS + 4 * t, W, ONE)
        if k == "x": mfma(SX + 4 * i, ONE, X)
        if k == "q": mfma(SQ + 4 * i, X, X)
    first = [(2, "c", 0, 0), (3, "q", 0, 0), (3, "x", 0, 0), (5, "c", 1, 0), (6, "q", 0, 1), (6, "x", 0, 1), (7, "q", 0, 2), (7, "x", 0, 2)]
    mains = [("m", t, i) for i in range(3) for t in range(2)]
    for c in range(9):
        a("  s_barrier")
        if c in (0, 8): stamp(a, 12 + c // 8, alt="alt2")
        if c % NSLOT in (3, 6):
            for r in range(4, 10): a(f"  v_add_u32 v{r}, {3 * SLOT}, v{r}")
        if c == NSLOT:
            for r in range(4, 10): a(f"  v_subrev_u32 v{r}, {6 * SLOT}, v{r}")
        r0 = reads(c, 0)
        for i in range(7):
            a(r0[i])
            if c and 1 <= i: mf(1, *mains[i - 1])
        r1 = reads(c, 1)
        last = None
        for m, (n, k, t, i) in enumerate(first):
            if n != last: a(f"  s_waitcnt lgkmcnt({7 + min(m, 7) - n})")
            last = n
            mf(0, k, t, i)
            if r1: a(r1.pop(0))
        for m in mains: mf(0, *m)
        a("  s_waitcnt lgkmcnt(0)")
    for i in range(3):
        q = SQ + 4 * i
        mf(1, *mains[i])
        a(f"  v_cndmask_b32 v{SX + 4 * i + 1}, v{q}, v{q + 1}, s[26:27]")
        a(f"  v_cndmask_b32 v{SX + 4 * i + 1}, v{SX + 4 * i + 1}, v{q + 2}, s[28:29]")
        a(f"  v_cndmask_b32 v{SX + 4 * i + 1}, v{SX + 4 * i + 1}, v{q + 3}, s[30:31]")
    a("  s_mov_b32 exec_lo, 0x00f0000f")
    a("  s_mov_b32 exec_hi, 0xf0000f00")
    for i in range(3):
        a(f"  ds_write_b64 v11, v[{SX + 4 * i}:{SX + 4 * i + 1}] offset:{256 * i}")
    a("  s_mov_b32 exec_lo, 0x00010001")
    a("  s_mov_b32 exec_hi, 0x00010001")
    for t in range(2):
        a(f"  ds_write_b128 v12, v[{CS + 4 * t}:{CS + 4 * t + 3}] offset:{64 * t}")
    a("  s_mov_b64 exec, -1")
    for m in mains[3:]: mf(1, *m)
    a("  s_waitcnt lgkmcnt(0)")
    a("  s_barrier                               ; S")
    stamp(a, 14, alt="alt2")
    for i in range(3):
        a(f"  ds_read_b128 v[{SX + 4 * i}:{SX + 4 * i + 3}], v10 offset:{256 * i}")
    for t in range(2):
        a(f"  ds_read_b128 v[{SQ + 4 * t}:{SQ + 4 * t + 3}], v13 offset:{64 * t}")
    a(f"  v_mov_b32 v18, {f32(-1.0 / 576)}")
    a(f"  v_mov_b32 v19, {f32(1.0 / 576)}")
    a("  s_waitcnt lgkmcnt(2)")
    def tri(f):
        for i in range(3): a(f(SX + 4 * i))
    tri(lambda r: f"  v_pk_add_f32 v[{r}:{r + 1}], v[{r}:{r + 1}], v[{r + 2}:{r + 3}]")
    tri(lambda r: f"  v_pk_mul_f32 v[{r}:{r + 1}], v[{r}:{r + 1}], v[18:19]")
    tri(lambda r: f"  v_fma_f32 v{r + 1}, -v{r}, v{r}, v{r + 1}          ; var")
    tri(lambda r: f"  v_max_f32 v{r + 1}, 0, v{r + 1}")
    tri(lambda r: f"  v_add_f32 v{r + 1}, {f32(1e-5)}, v{r + 1}")
    tri(lambda r: f"  v_rsq_f32 v{r + 1}, v{r + 1}                 ; rstd")
    a("  s_waitcnt lgkmcnt(0)")
    for i in range(4):
        a(f"  v_pk_add_f32 v[{CS + 2 * i}:{CS + 2 * i + 1}], v[{CS + 2 * i}:{CS + 2 * i + 1}], v[{SQ + 2 * i}:{SQ + 2 * i + 1}]")
    tri(lambda r: f"  v_mul_f32 v{r + 1}, s22, v{r + 1}")
    PK, TR = 80, 92
    def scale(i):
        st = SX + 4 * i
        for t in range(2):
            d = ACC + 8 * i + 4 * t
            for h in range(2):
                r = d + 2 * h
                a(f"  v_pk_fma_f32 v[{r}:{r + 1}], v[{CS + 4 * t + 2 * h}:{CS + 4 * t + 2 * h + 1}], v[{st}:{st + 1}], v[{r}:{r + 1}] op_sel_hi:[1,0,1]")
                a(f"  v_pk_mul_f32 v[{r}:{r + 1}], v[{r}:{r + 1}], v[{st}:{st + 1}] op_sel:[0,1] op_sel_hi:[1,1]")
            a(f"  v_cvt_pk_bf16_f32 v{PK + 4 * i + 2 * t}, v{d}, v{d + 1}")
            a(f"  v_cvt_pk_bf16_f32 v{PK + 1 + 4 * i + 2 * t}, v{d + 2}, v{d + 3}")
    a("  s_cmp_eq_u32 s5, 9")
    a("  s_cbranch_scc1 K1_KV")
    for i in range(3):
        scale(i)
        a(f"  ds_write2_b64 v14, v[{PK + 4 * i}:{PK + 4 * i + 1}], v[{PK + 4 * i + 2}:{PK + 4 * i + 3}] offset0:{(1280 * i // 8) if i < 2 else 0} offset1:{(1280 * i // 8 if i < 2 else 0) + 4}")
        a(f"  ds_read_b128 v[{TR + 4 * i}:{TR + 4 * i + 3}], v15 offset:{1280 * i if i < 2 else 0}")
    for i in range(3):
        a(f"  s_waitcnt lgkmcnt({4 - 2 * i})")
        a(f"  buffer_store_dwordx4 v[{TR + 4 * i}:{TR + 4 * i + 3}], v16, s[12:15], s{23 + i} offen{SC}")
    a("  s_branch K2_A")
    a("K1_KV:")
    for i in range(3): scale(i)
    a("  s_cmp_eq_u32 s7, 1")
    a("  s_cbranch_scc1 K1_V")
    a("  v_lshlrev_b32 v3, 5, v2")
    a("  v_lshl_add_u32 v3, v1, 3, v3")
    a("  v_lshlrev_b32 v4, 2, v2")
    a("  s_lshl_b32 s20, s21, 5")
    a(f"  s_add_u32 s20, s20, {WS_KM}")
    a("  s_lshl_b32 s14, s35, 5")
    a(f"  s_add_u32 s14, s14, {WS_KM}")
    for i in range(3):
        a(f"  buffer_store_dwordx2 v[{PK + 4 * i}:{PK + 1 + 4 * i}], v3, s[12:15], s20 offen offset:{512 * i} sc1")
    a("  s_lshl_b32 s20, s21, 2")
    a(f"  s_add_u32 s20, s20, {WS_KL}")
    a("  s_lshl_b32 s14, s35, 2")
    a(f"  s_add_u32 s14, s14, {WS_KL}")
    a("  s_mov_b32 exec_lo, 0xffff0000")
    a("  s_mov_b32 exec_hi, 0")
    for i in range(3):
        a(f"  buffer_store_dword v{PK + 3 + 4 * i}, v4, s[12:15], s20 offen offset:{64 * i} sc1")
    a("  s_mov_b64 exec, -1")
    a("  s_branch K2_A")
    a("K1_V:")
    a("  v_lshlrev_b32 v4, 1, v2")
    a("  v_lshl_add_u32 v3, v1, 7, v4")
    a("  s_mul_i32 s20, s21, 40")
    a(f"  s_add_u32 s20, s20, {WS_VT}")
    a("  s_mul_i32 s14, s35, 40")
    a(f"  s_add_u32 s14, s14, {WS_VT}")
    for i in range(3):
        a(f"  buffer_store_short v{PK + 4 * i}, v3, s[12:15], s20 offen offset:{640 * i} sc1")
        a(f"  buffer_store_short_d16_hi v{PK + 4 * i}, v3, s[12:15], s20 offen offset:{640 * i + 32} sc1")
        a(f"  buffer_store_short v{PK + 1 + 4 * i}, v3, s[12:15], s20 offen offset:{640 * i + 64} sc1")
        a(f"  buffer_store_short_d16_hi v{PK + 1 + 4 * i}, v3, s[12:15], s20 offen offset:{640 * i + 96} sc1")
    a("  s_mov_b32 exec_lo, 0xffff0000")
    a("  s_mov_b32 exec_hi, 0")
    for i in range(3):
        a(f"  buffer_store_short v{PK + 3 + 4 * i}, v4, s[12:15], s20 offen offset:{640 * i + 512} sc1")
        a(f"  buffer_store_short_d16_hi v{PK + 3 + 4 * i}, v4, s[12:15], s20 offen offset:{640 * i + 544} sc1")
    a("  s_mov_b64 exec, -1")
    a("  s_branch K2_A")

    a("K1_SPARE:")
    a("  s_sub_u32 s4, s2, 240                   ; sigma 0..15")
    a("  s_lshl_b32 s60, s4, 7")
    a(f"  s_add_u32 s60, s60, {WS_FLAG + 24 * 128}")
    a("  v_lshrrev_b32 v1, 4, v0")
    a("  s_cmp_lg_u32 s3, 7")
    a("  s_cbranch_scc1 K1_TASK")
    zero_counter(a)
    srd(a, 8, 46, 47, WS_SIZE)
    a("  v_lshlrev_b32 v120, 7, v0")
    a("  v_lshlrev_b32 v121, 3, v0")
    a("  v_mov_b32 v123, 0")
    a("  s_lshl_b32 s20, s4, 9")
    a(f"  s_add_u32 s20, s20, {WS_KEYS}")
    a("  buffer_store_dwordx2 v[122:123], v121, s[8:11], s20 offen sc1")
    a("  s_lshl_b32 s20, s4, 11")
    a(f"  s_add_u32 s20, s20, {WS_FLAG}")
    a("  s_mov_b64 exec, 0xffff")
    a("  buffer_store_dword v122, v120, s[8:11], s20 offen sc1")
    a("  s_barrier")
    a("  s_lshl_b32 s20, s4, 2")
    a("  v_mov_b32 v120, s20")
    a("  v_mov_b32 v121, 1")
    a("  s_mov_b64 exec, 1")
    a("  s_waitcnt vmcnt(0)")
    a("  global_store_dword v120, v121, s[66:67] sc1")
    a("  s_mov_b64 exec, -1")
    a("  v_and_b32 v2, 15, v0")
    a("  v_cmp_gt_u32 vcc, 8, v2")
    a("  v_mov_b32 v3, 0x3f803f80")
    a("  v_mul_u32_u24 v4, 640, v1")
    a("  v_lshl_add_u32 v4, v2, 2, v4")
    a("  v_cndmask_b32 v3, 0, v3, vcc")
    a("  s_mul_i32 s20, s4, 5120")
    a(f"  s_add_u32 s20, s20, {WS_VT + 576}")
    a(f"  buffer_store_dword v3, v4, s[8:11], s20 offen sc1")
    a(f"  buffer_store_dword v3, v4, s[8:11], s20 offen offset:2560 sc1")
    if "nocp" not in OPT:
        a("  s_getpc_b64 s[68:69]")
        a("K1_PC1:")
        a("  s_mov_b32 s20, K2_LAST-K1_PC1-4")
        a("  v_lshlrev_b32 v7, 7, v0")
        for i in range(4):
            a(f"  v_add_u32 v8, {8192 * i}, v7")
            a(f"  v_min_u32 v{9 + i}, s20, v8")
            a(f"  global_load_dword v{9 + i}, v{9 + i}, s[68:69]")
    a("  s_branch K1_SPD")
    a("K1_TASK:")
    a("  v_bfe_u32 v13, v0, 3, 1                 ; b")
    a("  v_bfe_u32 v14, v0, 5, 1                 ; e/4")
    a("  v_lshl_add_u32 v13, v14, 1, v13         ; ea%4")
    a("  v_bfe_u32 v15, v0, 4, 1                 ; p")
    a("  v_mul_u32_u24 v15, 18, v15")
    a("  v_add_u32 v16, v15, v13")
    a("  v_mul_u32_u24 v13, 72, v13")
    a("  v_add_u32 v17, v15, v13")
    a("  v_and_b32 v14, 7, v0")
    a("  v_lshlrev_b32 v14, 4, v14")
    a("  v_bfe_u32 v2, v0, 2, 2")
    a("  v_and_b32 v3, 3, v0")
    a("  v_lshl_add_u32 v24, v1, 3, v2")
    a("  v_lshlrev_b32 v24, 7, v24")
    a("  v_lshl_add_u32 v24, v3, 3, v24")
    a("  s_lshl_b32 s22, s3, 13")
    a("  v_add_u32 v24, s22, v24")
    a("  v_lshlrev_b32 v25, 4, v0")
    a("  s_movk_i32 s23, 1152")
    a("  s_lshl_b32 s34, s3, 4")
    a("  s_add_u32 s34, s34, s4")
    a("  s_waitcnt lgkmcnt(0)")
    srd(a, 28, 44, 45, 663552)
    srd(a, 8, 46, 47, WS_SIZE)
    a("  s_barrier")
    for n in range(2):
        if n: a("  s_add_u32 s34, s34, 112")
        a("  s_mul_i32 s5, s34, 3641")
        a("  s_lshr_b32 s5, s5, 16                   ; step")
        a("  s_mul_i32 s6, s5, 18")
        a("  s_sub_u32 s6, s34, s6")
        a("  s_and_b32 s7, s6, 1                     ; hB")
        a("  s_lshr_b32 s6, s6, 1")
        a("  s_mul_i32 s21, s5, 72")
        a(f"  s_lshl_b32 s{24 + n}, s6, 3")
        a(f"  s_add_u32 s{24 + n}, s{24 + n}, s21")
        a(f"  s_add_u32 s{24 + n}, s{24 + n}, s7")
        a(f"  s_lshl_b32 s{24 + n}, s{24 + n}, 10")
        a(f"  s_add_u32 s{24 + n}, s{24 + n}, {WS_WOL}")
        a("  s_lshl_b32 s26, s7, 2")
        a("  s_add_u32 s21, s21, s26")
        a("  s_add_u32 s26, s7, 16")
        a("  s_cmp_eq_u32 s5, 8")
        a("  s_cselect_b32 s21, s26, s21")
        a("  s_cselect_b64 vcc, -1, 0")
        a("  s_cselect_b32 s26, 0x120, 8             ; row step of gb%2")
        a("  s_mul_i32 s21, s21, 1152")
        a("  s_mul_i32 s26, s26, 1152")
        a("  s_lshl_b32 s6, s6, 7")
        a("  s_add_u32 s21, s21, s6")
        a("  s_cmp_ge_u32 s34, 162")
        a(f"  s_cselect_b32 s{24 + n}, 0x10000000, s{24 + n}")
        a("  s_cselect_b32 s21, 0x10000000, s21")
        a("  s_add_u32 s26, s26, s21")
        a(f"  v_cndmask_b32 v{18 + n}, v16, v17, vcc")
        a(f"  v_mad_u32_u24 v{18 + n}, v{18 + n}, s23, v14")
        for gb in range(4):
            a(f"  s_add_u32 m0, s22, {4096 * n + 1024 * gb}")
            a(f"  s_add_u32 s27, s{(21, 26)[gb % 2]}, {36 * 1152 * (gb // 2)}")
            a(f"  buffer_load_dwordx4 v{18 + n}, s[28:31], s27 offen{NT} lds")
    for n in range(2):
        a(f"  s_waitcnt vmcnt(4)")
        for t in range(4):
            a(f"  ds_read_b64_tr_b16 v[{32 + 16 * n + 4 * t}:{33 + 16 * n + 4 * t}], v24 offset:{4096 * n + 32 * t}")
            a(f"  ds_read_b64_tr_b16 v[{34 + 16 * n + 4 * t}:{35 + 16 * n + 4 * t}], v24 offset:{4096 * n + 32 * t + 512}")
        for t in range(4):
            a(f"  s_waitcnt lgkmcnt({6 - 2 * t})")
            a(f"  buffer_store_dwordx4 v[{32 + 16 * n + 4 * t}:{35 + 16 * n + 4 * t}], v25, s[8:11], s{24 + n} offen sc1")
            if t < 3: a(f"  s_add_u32 s{24 + n}, s{24 + n}, 2048")
    a("  s_cmp_lt_u32 s3, 4")
    a("  s_cbranch_scc1 K2_A")
    a("K1_SPD:")
    gu_setup(a)
    clears(a, "b"); clears2(a, "b")
    a("  s_waitcnt vmcnt(0)")
    a("  s_branch K2_B")
```

```python
from asmlib import *
from layout import *

NA, NB = 3, 5
L_PA = 0
L_PB = 20480
L_H = 0
HI = 1184
HS = 4 * HI
L_ST = 18944
L_MR = L_ST + 512
L_X = 20480
L_XS = L_X + 9216
L_TOK = L_XS + 256
L_TOP = L_TOK + 256
L_ACT = L_TOP + 256
L_RED = L_ACT + 512
L_XI = L_D
def q_off(t): return 1280 * t
SAFE = 0 if 'forcesafe' in OPT else 0x53800000

class Wave:
    def __init__(self, a, KM, V, KL, idx):
        self.a, self.KM, self.V, self.KL, self.idx = a, KM, V, KL, idx
    def pv(self, O, buf, u, k):
        v = self.V + 16 * u + 4 * k
        self.a(f"  v_smfmac_f32_32x32x32_bf16 v[{O}:{O + 15}], v[{v}:{v + 3}], v[{buf + 8 * k}:{buf + 8 * k + 7}], v{self.idx} abid:1")
    def qk2(self, buf, u, QL):
        k = self.KL + 2 * u
        self.a(f"  v_mfma_f32_32x32x4_2b_bf16 v[{buf}:{buf + 31}], v[{k}:{k + 1}], v[{QL}:{QL + 1}], 0")
    def qkm(self, buf, u, h, QM):
        k = self.KM + 8 * u + 4 * h
        b = buf + 16 * h
        self.a(f"  v_mfma_f32_32x32x16_bf16 v[{b}:{b + 15}], v[{k}:{k + 3}], v[{QM}:{QM + 3}], v[{b}:{b + 15}]")
    def unit(self, X, Y, O, u, prev=None, nxt=None, hook=None):
        a = self.a
        hook = hook or (lambda p: None)
        E = lambda i0, i1: [a(f"  v_exp_f32 v{X + i}, v{X + i}") for i in range(i0, i1)]
        E(0, 2)
        if callable(prev): prev()
        elif prev: self.pv(prev[0], Y, prev[1], 3)
        E(2, 5)
        hook("pre2b")
        if nxt: self.qk2(Y, nxt[0], nxt[2])
        E(5, 9)
        hook("early")
        E(9, 13)
        hook("prepv0")
        self.pv(O, X, u, 0)
        E(13, 16)
        hook("mid")
        E(16, 18)
        self.pv(O, X, u, 1)
        E(18, 21)
        hook("preqk")
        if nxt: self.qkm(Y, nxt[0], 0, nxt[1])
        E(21, 24)
        if nxt: self.qkm(Y, nxt[0], 1, nxt[1])
        E(24, 27)
        hook("prepv2")
        self.pv(O, X, u, 2)
        E(27, 30)
        hook("late")
        E(30, 32)

def pa_slot(q):
    return L_PB + 10240 if q == 0 else L_PA + (q % 2) * 10240
def kv_setup(a, skey):
    a(f"  s_lshl_b32 s20, {skey}, 10")
    a(f"  s_add_u32 s20, s20, {WS_KM}")
    a(f"  s_mul_i32 s21, {skey}, 1280")
    a(f"  s_add_u32 s21, s21, {WS_VT}")
    a(f"  s_lshl_b32 s22, {skey}, 7")
    a(f"  s_add_u32 s22, s22, {WS_KL}")
def kv_list(a, w, u, vK, vV, vKL):
    l = [(("k", u), None, f"  buffer_load_dword v{w.KL + 2 * u}, {vKL}, s[8:11], s22 offen offset:{256 * u} sc1")]
    for h in range(2):
        r = w.KM + 8 * u + 4 * h
        l.append((("k", u), "  s_add_u32 s20, s20, 2048" if h == 0 and u else None,
                  f"  buffer_load_dwordx4 v[{r}:{r + 3}], {vK}, s[8:11], s20 offen offset:{1024 * h} sc1"))
    for k in range(4):
        r = w.V + 16 * u + 4 * k
        l.append((("v", u, k), "  s_add_u32 s21, s21, 2560" if k == 0 and u else None,
                  f"  buffer_load_dwordx4 v[{r}:{r + 3}], {vV}, s[8:11], s21 offen offset:{640 * k} sc1"))
    return l

BEFORE = [True]
def cleanup(a, regs, K):
    for st, m in enumerate(("row_half_mirror", "quad_perm:[2,3,0,1]", "quad_perm:[1,0,3,2]")):
        for x, t in regs:
            a(f"  v_mov_b32_dpp v{t}, v{x} {m} row_mask:0xf bank_mask:0xf bound_ctrl:1")
        for (x, t), k in zip(regs, K):
            a(f"  v_med3_u32 v{x}, v{x}, v{t}, v{k + st}")

GU, DN, DD = 88, 160, 200
C_DN, C_GU = 240, 241
def tail_scalars(f, isB):
    f("  s_lshl_b32 s68, s3, 10")
    f("  s_lshl_b32 s69, s3, 11")
    f(f"  s_add_u32 s69, s69, {WS_KEYS}")
    f("  s_lshl_b32 s71, s3, 7")
    f(f"  s_mul_i32 s46, s3, {8 * PSTR}")
    f("  s_lshl_b32 s47, s56, 7")
    f("  s_add_u32 s46, s46, s47")
    f(f"  s_add_u32 s46, s46, {WS_PART}")
    f(f"  s_add_u32 s47, s46, {64 * PSTR}")
    f(f"  s_add_u32 s48, s46, {128 * PSTR}")
    f.lines.append("  s_cmp_ge_u32 s3, 2\n  s_cselect_b32 s48, 0x10000000, s48")
    f("  s_lshl_b32 s49, s3, 5")
    f(f"  s_add_u32 s49, s49, {L_TOP}")
    f("  s_bfe_i32 s50, s3, 0x10000")
    f("  s_lshl_b32 s54, s3, 2")
    if isB:
        f("  s_mul_i32 s53, s6, 2304")
        f("  s_add_u32 s53, s53, s5")
        f(f"  s_mul_i32 s52, s6, {HS}")
        f("  s_lshl_b32 s51, s6, 4")
        f(f"  s_add_u32 s51, s51, {L_MR}")
        f(f"  s_mul_i32 s36, s56, {PSTR}")
        f(f"  s_add_u32 s36, s36, {WS_PART}")
        f("  s_lshl_b32 s37, s6, 10")
        f("  s_add_u32 s37, s37, s36")
        f("  s_add_u32 s37, s37, 16384")
        f("  s_lshl_b32 s38, s6, 12")
        f("  s_add_u32 s36, s36, s38")
        f("  s_lshl_b32 s38, s4, 3")
        f("  s_sub_u32 s38, 2047, s38")
        f("  s_lshl_b32 s39, s4, 5")
        f(f"  s_add_u32 s39, s39, {WS_KEYS}")
        f("  s_lshl_b32 s55, s4, 7")
        f(f"  s_add_u32 s55, s55, {WS_STAT}")
        f("  s_mul_i32 s72, s6, 9216")
        f("  s_mul_i32 s73, s56, 36864")
        f("  s_add_u32 s73, s73, s72")
    else:
        f("  s_bfe_u32 s36, s56, 0x20001")
        f("  s_lshl_b32 s36, s36, 2")
        f("  s_lshr_b32 s37, s56, 3")
        f("  s_lshl_b32 s37, s37, 1")
        f("  s_and_b32 s38, s56, 1")
        f("  s_add_u32 s37, s37, s38")
        f("  s_lshl_b32 s38, s37, 8")
        f("  s_lshl_b32 s37, s37, 5")
        f("  s_lshl_b32 s39, s6, 7")
        f(f"  s_add_u32 s39, s39, {L_ST}")

def ffn_consts_b(a):
    a("  v_lshrrev_b32 v1, 4, v0                 ; gb")
    a("  v_and_b32 v2, 15, v0")
    a("  v_bfe_u32 v3, v0, 1, 1                  ; p")
    a("  v_and_b32 v7, 7, v0")
    a("  v_lshrrev_b32 v5, 1, v1")
    a("  v_mul_u32_u24 v5, 9216, v5")
    a("  v_and_b32 v6, 1, v1")
    a("  v_mul_u32_u24 v6, 576, v6")
    a("  v_add_u32 v5, v5, v6")
    a("  v_lshl_add_u32 v5, v2, 2, v5")
    a(f"  v_add_u32 v{C_DN}, {L_D}, v5")
    a("  v_lshrrev_b32 v5, 1, v1")
    a("  v_lshlrev_b32 v5, 4, v5")
    a("  v_and_b32 v6, 1, v1")
    a("  v_bfe_u32 v8, v0, 3, 1")
    a("  v_lshl_add_u32 v6, v8, 1, v6            ; (k>>2)&3")
    a("  v_lshl_add_u32 v5, v6, 2, v5")
    a("  v_bfe_u32 v8, v0, 2, 1")
    a("  v_add_u32 v5, v5, v8")
    a("  v_lshlrev_b32 v5, 6, v5")
    a("  v_xor_b32 v6, s6, v6")
    a("  v_lshl_add_u32 v5, v6, 4, v5")
    a(f"  v_mul_u32_u24 v6, {L_U - L_G}, v3")
    a("  v_add_u32 v5, v5, v6")
    a("  v_and_b32 v6, 1, v0")
    a("  v_lshl_add_u32 v5, v6, 3, v5")
    a(f"  v_add_u32 v{C_GU}, {L_G}, v5")

def ffn_prep(a, isB):
    a("  v_lshrrev_b32 v1, 4, v0                 ; gb")
    a("  v_bfe_u32 v3, v0, 1, 1                  ; p")
    a("  v_and_b32 v7, 7, v0")
    a("  v_lshrrev_b32 v2, 3, v0")
    if isB:
        a("  v_mul_u32_u24 v4, 1152, v2")
        a("  v_and_b32 v5, 4, v2")
        a("  v_xor_b32 v5, v5, v7")
        a("  v_lshl_add_u32 v4, v5, 4, v4")
        for cb in range(9):
            a(f"  s_add_u32 m0, s72, {L_D + 896 * cb}")
            a(f"  buffer_load_dwordx4 v4, s[28:31], s73 offen offset:{128 * cb}{NT} lds")
        a("  v_mul_u32_u24 v5, 0xaaaa, v3")
        a("  v_mul_u32_u24 v6, 0x5555, v3")
        a("  v_lshl_or_b32 v5, v6, 16, v5")
        a("  v_add_u32 v73, 0x88884444, v5")
        a("  v_and_b32 v6, 1, v2")
        a("  v_lshl_add_u32 v5, v1, 2, v6")
        a("  v_lshlrev_b32 v82, 4, v5")
        a("  v_lshlrev_b32 v5, 6, v2")
        a("  v_lshl_add_u32 v5, v7, 1, v5")
        a("  v_lshl_add_u32 v83, s6, 4, v5")
        a("  v_bfe_u32 v5, v0, 2, 2")
        a("  v_and_b32 v6, 1, v0")
        a("  v_lshl_add_u32 v5, v5, 1, v6")
        a("  v_lshlrev_b32 v5, 6, v5")
        a("  v_lshl_add_u32 v84, v1, 4, v5")
    a("  v_bfe_i32 v51, v0, 2, 1")
    a("  v_bfe_i32 v52, v0, 1, 1")
    a("  v_bfe_i32 v53, v0, 0, 1")
    a("  v_xor_b32 v52, v52, v51")
    a("  v_xor_b32 v53, v53, v51")
    for i in range(3): a(f"  v_not_b32 v{48 + i}, v{51 + i}")
    for n, bit in enumerate((3, 4, 5)):
        if isB and bit != 4: continue
        a(f"  v_bfe_i32 v5, v0, {bit}, 1")
        for i in range(3): a(f"  v_xor_b32 v{54 + 3 * n + i}, v5, v{48 + i}")
    a("  v_lshlrev_b32 v69, 2, v0")
    a("  v_and_b32 v87, 0x7c, v69")
    if not isB:
        for i in range(3): a(f"  v_xor_b32 v{63 + i}, s50, v{48 + i}")
        a("  v_and_b32 v5, 12, v51")
        a("  v_xor_b32 v66, v5, v69")
        a("  v_xor_b32 v67, 28, v66                  ; reversed")
        a("  v_lshlrev_b32 v78, 2, v7")
        a("  v_add_u32 v68, s49, v78")
    a("  v_lshlrev_b32 v70, 4, v0")
    a("  v_lshlrev_b32 v71, 5, v1")
    a("  v_lshl_add_u32 v71, v3, 4, v71          ; 32*ga + 16*p")
    a("  v_add_u32 v72, s68, v70")
    a(f"  v_mul_u32_u24 v5, {PSTR}, v2")
    a("  v_lshl_add_u32 v74, v7, 4, v5")
    a("  v_and_b32 v6, 0x200, v70")
    a("  v_lshl_add_u32 v6, v7, 6, v6")
    a("  v_and_b32 v5, 32, v71")
    a("  v_add3_u32 v75, v5, v6, s54")
    if not isB:
        a("  v_and_or_b32 v5, v2, 1, s36")
        a("  v_lshlrev_b32 v76, 2, v5")
        a("  v_and_b32 v6, 2, v51")
        a("  v_add_lshl_u32 v5, v5, v6, 4")
        a("  v_and_b32 v6, 12, v69")
        a("  v_add3_u32 v77, v5, v6, s38")
        a("  v_lshlrev_b32 v79, 6, v0")

def gather_keys(a):
    a("  s_mov_b32 s70, 0")
    stamp(a, 14)
    def loads(b):
        for m in range(8):
            a(f"  buffer_load_dword v{b + m}, v{66 + m % 2}, s[8:11], s69 offen offset:{256 * m} sc1")
    def check(b):
        a(f"  v_min3_u32 v24, v{b}, v{b + 1}, v{b + 2}")
        a(f"  v_min3_u32 v25, v{b + 3}, v{b + 4}, v{b + 5}")
        a(f"  v_min3_u32 v24, v24, v{b + 6}, v{b + 7}")
        for m in range(4): a(f"  v_max_u32 v{16 + 2 * m}, v{b + 2 * m}, v{b + 2 * m + 1}")
        a("  v_min_u32 v24, v24, v25")
        a("  v_cmp_eq_u32 vcc, 0, v24")
    if "pipe" in OPT:
        loads(96)
        a("K2_POLL:")
        loads(104)
        a("  s_waitcnt vmcnt(8)")
        check(96)
        a("  s_cbranch_vccz K2_GOT")
        loads(96)
        a("  s_add_u32 s70, s70, 1")
        a("  s_waitcnt vmcnt(8)")
        check(104)
    else:
        a("K2_POLL:")
        loads(96)
        a("  s_add_u32 s70, s70, 1")
        a("  s_waitcnt vmcnt(0)")
        check(96)
    a(f"  s_cmp_lt_u32 s70, {SPIN}")
    a("  s_cselect_b64 vcc, vcc, 0")
    a("  s_cbranch_vccnz K2_POLL")
    a("K2_GOT:")
    stamp(a, 16)
    cleanup(a, [(16, 17), (18, 19), (20, 21), (22, 23)], [48, 51, 48, 51])
    a("  v_max_u32 v16, v16, v18")
    a("  v_max_u32 v18, v20, v22")
    cleanup(a, [(16, 17), (18, 19)], [48, 51])
    a("  v_max_u32 v16, v16, v18")
    cleanup(a, [(16, 17)], [54])
    a("  v_max_u32_dpp v16, v16, v16 row_ror:8 row_mask:0xf bank_mask:0xf bound_ctrl:1")
    cleanup(a, [(16, 17)], [57])
    a("  v_mov_b32 v17, v16")
    a("  v_permlane16_swap_b32 v16, v17")
    a("  v_max_u32 v16, v16, v17")
    cleanup(a, [(16, 17)], [60])
    a("  v_mov_b32 v17, v16")
    a("  v_permlane32_swap_b32 v16, v17")
    a("  v_max_u32 v16, v16, v17")
    cleanup(a, [(16, 17)], [63])
    a("  s_mov_b64 exec, 0xff")
    a("  ds_write_b32 v68, v16")
    a("  s_mov_b64 exec, -1")
    a("  s_branch K2_TOP")

def ffn_tail(a):
    a("  s_mov_b64 exec, -1")
    a(f"  s_cmp_ge_u32 s2, {NF}")
    a("  s_cbranch_scc1 K2_END")
    a("  s_setprio 0")
    z = [f"  v_mov_b32 v{228 + i}, 0x3f803f80" for i in range(4)] + [f"  v_mov_b32 v{DD + 27 - i}, 0" for i in range(28)]
    for st in range(9):
        for hB in range(2):
            for j in range(2):
                r = GU + 8 * st + 4 * hB + 2 * j
                a(f"  ds_read_b64_tr_b16 v[{r}:{r + 1}], v{C_GU} offset:{(64 * st + 32 * hB + 2 * j) * 64}")
                if z: a(z.pop(0))
        if st >= 2:
            a("  s_waitcnt lgkmcnt(8)")
            a(f"  v_smfmac_f32_16x16x64_bf16 v[224:227], v[228:231], v[{GU + 8 * (st - 2)}:{GU + 8 * (st - 2) + 7}], v73")
    for st in (7, 8):
        a(f"  s_waitcnt lgkmcnt({4 * (8 - st)})")
        a(f"  v_smfmac_f32_16x16x64_bf16 v[224:227], v[228:231], v[{GU + 8 * st}:{GU + 8 * st + 7}], v73")
    a(f"  v_lshl_add_u32 v85, s6, 11, v{C_DN}")
    a("  s_lshl_b32 s24, s6, 6")
    a("  s_and_b32 s24, s24, 64")
    a(f"  v_add_u32 v86, 8192, v{C_DN}")
    a("  v_xor_b32 v86, s24, v86")
    a("  v_add_f32 v80, v224, v226")
    a("  v_mov_b32 v81, v80")
    a("  v_mov_b32_dpp v81, v80 row_ror:8 row_mask:0xf bank_mask:0x3")
    a("  v_mov_b32_dpp v80, v80 row_ror:8 row_mask:0xf bank_mask:0xc")
    a("  s_waitcnt vmcnt(4)")
    stamp(a, 14)
    a("K2_TOP:")
    a("  s_movk_i32 s24, 1152")
    a("  s_waitcnt lgkmcnt(0)")
    a("  s_barrier")
    a(f"  ds_read_b32 v16, v87 offset:{L_TOP}")
    a("  s_mov_b32 s70, 0")
    a("  s_waitcnt lgkmcnt(0)")
    a("  v_max_u32_dpp v16, v16, v16 row_ror:8 row_mask:0xf bank_mask:0xf bound_ctrl:1")
    cleanup(a, [(16, 17)], [57])
    a("  v_mov_b32 v17, v16")
    a("  v_permlane16_swap_b32 v16, v17")
    a("  v_max_u32 v16, v16, v17")
    a("  v_not_b32_dpp v17, v16 quad_perm:[0,1,0,1] row_mask:0xf bank_mask:0x3")
    a("  v_not_b32_dpp v17, v16 quad_perm:[2,3,2,3] row_mask:0xf bank_mask:0xc")
    a("  v_and_b32 v17, 0x7ff, v17")
    stamp(a, 17)
    a("  v_mad_u32_u24 v18, v17, s24, v71")
    a("  s_cmp_ge_u32 s3, 2")
    a("  s_cbranch_scc1 K2_ROW1")
    a("  s_cmp_eq_u32 s3, 1")
    a("  s_cbranch_scc1 K2_ROWS")
    def retry(label, regs):
        a("  s_add_u32 s70, s70, 1")
        a("  s_waitcnt vmcnt(0)")
        a(f"  v_max3_u32 v28, v{regs[0]}, v{regs[1]}, v{regs[2]}")
        for i in range(3, len(regs) - 1, 2): a(f"  v_max3_u32 v28, v28, v{regs[i]}, v{regs[i + 1]}")
        if len(regs) % 2 == 0: a(f"  v_max_u32 v28, v28, v{regs[-1]}")
        a("  v_cmp_eq_u32 vcc, -1, v28")
        a(f"  s_cmp_lt_u32 s70, {SPIN}")
        a("  s_cselect_b64 vcc, vcc, 0")
        a(f"  s_cbranch_vccnz {label}")
    a("K2_ROW2:")
    a("  buffer_load_dwordx4 v[20:23], v18, s[16:19], 0 offen sc1")
    a("  buffer_load_dwordx4 v[24:27], v18, s[16:19], 0 offen offset:1024 sc1")
    retry("K2_ROW2", [20, 23, 24, 27])
    a(f"  ds_write_b128 v70, v[24:27] offset:{L_X + 8192}")
    a("  s_branch K2_ROWD")
    a("K2_ROWS:")
    a("  v_lshlrev_b32 v19, 4, v17")
    a(f"  s_mov_b32 s26, {WS_STAT}")
    a("K2_ROWS1:")
    a("  buffer_load_dwordx4 v[20:23], v18, s[16:19], s71 offen sc1")
    a("  buffer_load_dwordx4 v[24:27], v19, s[8:11], s26 offen sc1")
    a(f"  ds_write_b32 v69, v17 offset:{L_TOK}")
    retry("K2_ROWS1", [20, 23, 24, 27])
    a("  s_mov_b64 exec, 0xffff")
    a(f"  ds_write_b128 v70, v[24:27] offset:{L_XS}")
    a("  s_mov_b64 exec, -1")
    a("  s_branch K2_ROWD")
    a("K2_ROW1:")
    a("  buffer_load_dwordx4 v[20:23], v18, s[16:19], s71 offen sc1")
    a("  s_cmp_lt_u32 s3, 4")
    a("  s_cbranch_scc1 K2_ROW1W")
    for m in range(5):
        if m < 4:
            a(f"  v_xor_b32 v1, {64 * (m % 2)}, v85")
            if m >= 2: a("  v_add_u32 v1, 1024, v1")
        else: a("  v_mov_b32 v1, v86")
        a("  v_add_u32 v2, 18432, v1")
        for h in range(4):
            r = DN + 8 * m + 2 * h
            a(f"  ds_read2_b32 v[{r}:{r + 1}], v{1 + h // 2} offset0:{64 * (h % 2)} offset1:{64 * (h % 2) + 32}")
        if m >= 2: a(f"  s_waitcnt lgkmcnt({8 if m < 4 else 0})")
    a("K2_ROW1W:")
    retry("K2_ROW1", [20, 21, 23])
    a("K2_ROWD:")
    stamp(a, 18)
    a(f"  ds_write_b128 v72, v[20:23] offset:{L_X}")
    a("  s_mov_b32 s70, 0")
    a("  s_cmp_ge_u32 s3, 4")
    a("  s_waitcnt lgkmcnt(0)")
    a("  s_barrier")
    a("  s_cbranch_scc1 K2_GU")
    a(f"  ds_read_b32 v14, v76 offset:{L_TOK}")
    a(f"  ds_read_b32 v15, v77 offset:{L_X}")
    a("  s_waitcnt lgkmcnt(0)")
    a("  v_mad_u32_u24 v14, v14, s24, v78")
    a("  v_lshlrev_b32 v30, 16, v15")
    a("  v_and_b32 v31, 0xffff0000, v15")
    a("  s_barrier")
    a("  s_branch K2_D3")
    a("K2_GU:")
    for st in range(9):
        a(f"  ds_read_b128 v[{8 + 4 * st}:{11 + 4 * st}], v70 offset:{L_X + 1024 * st}")
    a(f"  ds_read_b128 v[4:7], v82 offset:{L_XS}")
    for st in range(9):
        a(f"  s_waitcnt lgkmcnt({9 - st})")
        a(f"  v_smfmac_f32_16x16x64_bf16 v[220:223], v[{8 + 4 * st}:{11 + 4 * st}], v[{GU + 8 * st}:{GU + 8 * st + 7}], v73")
    a("  s_waitcnt lgkmcnt(0)")
    a("  v_mul_f32 v7, v7, v5                    ; c * sigmoid(r)")
    a("  v_mul_f32 v80, v80, v4")
    a("  v_mul_f32 v81, v81, v4")
    a(f"  v_mul_f32 v6, {f32(-math.log2(math.e))}, v5")
    a("  v_pk_add_f32 v[220:221], v[220:221], v[222:223]")
    a("  v_sub_f32 v2, v220, v80")
    a("  v_sub_f32 v3, v221, v81")
    a("  v_sub_f32_dpp v2, v221, v80 row_ror:8 row_mask:0xf bank_mask:0xc")
    a("  v_sub_f32_dpp v3, v220, v81 row_ror:8 row_mask:0xf bank_mask:0x3")
    a("  v_mul_f32 v1, v2, v6")
    a("  v_exp_f32 v1, v1")
    a("  v_mul_f32 v2, v2, v5                    ; g")
    a("  v_add_f32 v1, 1.0, v1")
    a("  v_rcp_f32 v1, v1")
    a("  v_mul_f32 v3, v3, v7                    ; u * sigmoid(r)")
    a("  v_mul_f32 v2, v2, v1                    ; silu(g)")
    a("  v_mul_f32 v2, v2, v3")
    a("  v_cvt_pk_bf16_f32 v2, v2, v2")
    a(f"  ds_write_b16 v83, v2 offset:{L_ACT}")
    stamp(a, 19)
    a("  s_cmp_ge_u32 s6, 2")
    a("  s_waitcnt lgkmcnt(0)")
    a("  s_barrier")
    a(f"  ds_read_b128 v[8:11], v84 offset:{L_ACT}")
    a("  s_waitcnt lgkmcnt(0)")
    for m in range(4):
        a(f"  v_smfmac_f32_16x16x64_bf16 v[{DD + 4 * m}:{DD + 4 * m + 3}], v[8:11], v[{DN + 8 * m}:{DN + 8 * m + 7}], v73 abid:1")
    a("  s_cbranch_scc1 K2_D2")
    a(f"  v_smfmac_f32_16x16x64_bf16 v[{DD + 16}:{DD + 19}], v[8:11], v[{DN + 32}:{DN + 39}], v73 abid:1")
    a("K2_D2:")
    a("  s_nop 3")
    for m in range(4):
        a(f"  buffer_store_dwordx4 v[{DD + 4 * m}:{DD + 4 * m + 3}], v70, s[8:11], s36 offen offset:{1024 * m} sc1")
    a("  s_cbranch_scc1 K2_D3")
    a(f"  buffer_store_dwordx4 v[{DD + 16}:{DD + 19}], v70, s[8:11], s37 offen sc1")
    a("K2_D3:")
    stamp(a, 20)
    a("  s_waitcnt vmcnt(0)")
    a("  s_barrier")
    stamp(a, 21)
    a("K2_RED:")
    a("  buffer_load_dwordx4 v[16:19], v74, s[8:11], s46 offen sc1")
    a("  buffer_load_dwordx4 v[20:23], v74, s[8:11], s47 offen sc1")
    a("  buffer_load_dwordx4 v[24:27], v74, s[8:11], s48 offen sc1")
    retry("K2_RED", [16, 19, 20, 23, 24, 27])
    stamp(a, 22)
    a("  v_pk_add_f32 v[16:17], v[16:17], v[20:21]")
    a("  v_pk_add_f32 v[18:19], v[18:19], v[22:23]")
    a("  v_pk_add_f32 v[16:17], v[16:17], v[24:25]")
    a("  v_pk_add_f32 v[18:19], v[18:19], v[26:27]")
    a("  v_permlane32_swap_b32 v16, v17")
    a("  v_permlane32_swap_b32 v18, v19")
    a("  v_add_f32 v16, v16, v17")
    a("  v_add_f32 v18, v18, v19")
    a("  v_permlane16_swap_b32 v16, v18")
    a("  v_add_f32 v16, v16, v18")
    a("  v_add_f32_dpp v16, v16, v16 row_ror:8 row_mask:0xf bank_mask:0xf bound_ctrl:1")
    a("  s_mov_b32 exec_lo, 0x00ff00ff")
    a("  s_mov_b32 exec_hi, 0x00ff00ff")
    a(f"  ds_write_b32 v75, v16 offset:{L_RED}")
    a("  s_cmp_lg_u32 s3, 0")
    a("  s_waitcnt lgkmcnt(0)")
    a("  s_barrier")
    a("  s_cbranch_scc1 K2_END")
    a("  s_mov_b64 exec, 0xffff")
    for i in range(4):
        a(f"  ds_read_b128 v[{32 + 4 * i}:{35 + 4 * i}], v79 offset:{L_RED + 16 * i}")
    a("  s_waitcnt lgkmcnt(2)")
    a("  v_pk_add_f32 v[32:33], v[32:33], v[34:35]")
    a("  v_pk_add_f32 v[36:37], v[36:37], v[38:39]")
    a("  v_pk_add_f32 v[32:33], v[32:33], v[36:37]")
    a("  s_waitcnt lgkmcnt(0)")
    a("  v_pk_add_f32 v[40:41], v[40:41], v[42:43]")
    a("  v_pk_add_f32 v[44:45], v[44:45], v[46:47]")
    a("  v_add_f32 v32, v32, v33")
    a("  v_pk_add_f32 v[40:41], v[40:41], v[44:45]")
    a("  v_add_f32 v30, v30, v32")
    a("  v_add_f32 v40, v40, v41")
    a("  v_add_f32 v31, v31, v40")
    a("  v_cvt_pk_bf16_f32 v30, v30, v31")
    a("  buffer_store_dword v30, v14, s[16:19], s37 offen" + ("" if "plfin" in OPT else " sc1"))

def lane_kv(a, vK, vV, vKL):
    a("  v_lshrrev_b32 v1, 5, v0                 ; hi")
    a("  v_and_b32 v2, 31, v0                    ; row")
    a("  v_lshlrev_b32 v3, 5, v2")
    a(f"  v_lshl_add_u32 v{vK}, v1, 4, v3")
    a("  v_lshlrev_b32 v4, 1, v2")
    a("  s_mov_b32 s24, 0xfffff9f8")
    a("  v_bfe_u32 v4, s24, v4, 2")
    a("  v_cmp_gt_u32 vcc, 16, v2")
    a("  v_add_u32 v4, 16, v4")
    a(f"  v_lshlrev_b32 v{vKL}, 2, v0")
    a("  v_cndmask_b32 v4, v4, v2, vcc")
    a("  v_lshlrev_b32 v4, 5, v4")
    a(f"  v_lshl_add_u32 v{vV}, v1, 4, v4")
def lane_q(a, vQ, vQL):
    a("  v_bfe_u32 v6, v0, 2, 2")
    a("  v_and_b32 v7, 1, v0")
    a("  v_lshl_add_u32 v6, v6, 1, v7            ; t")
    a("  v_mul_u32_u24 v6, 1152, v6")
    a("  v_bfe_u32 v7, v0, 4, 1")
    a("  v_bfe_u32 v8, v0, 1, 1")
    a("  v_lshl_add_u32 v7, v7, 1, v8")
    a(f"  v_mad_u32_u24 v{vQL}, v7, 36, v6")
    a("  v_lshrrev_b32 v7, 5, v0")
    a(f"  v_lshl_add_u32 v{vQ}, v7, 4, v{vQL}")
def gen_k2(a):
    vm = []
    def vload(tag, text):
        a(text); vm.append(tag)
    def vwait(tag):
        last = max((i for i, t in enumerate(vm) if t == tag), default=None)
        if last is None: return
        n = len(vm) - 1 - last
        a(f"  s_waitcnt vmcnt({n})")
        del vm[:last + 1]
    def issue(l, n=99):
        for i in range(min(n, len(l))):
            tag, pre, text = l.pop(0)
            if pre: a(pre)
            vload(tag, text)
    nb = [3]
    def bar():
        a("  s_waitcnt lgkmcnt(0)")
        if BEFORE[0]: stamp(a, nb[0])
        a("  s_barrier")
        if not BEFORE[0]: stamp(a, nb[0])
        nb[0] += 1
    def qread(p):
        a(f"  ds_read_b32 v{QL[p % 2]}, v{Q4} offset:{q_off(p) + 1024}")
        a(f"  ds_read_b128 v[{QM[p % 2]}:{QM[p % 2] + 3}], v{Q16} offset:{q_off(p)}")

    KM, V, KL = 112, 136, 184
    IDX, L16, L8, Z = 185, 187, 189, 196
    W16, W8, Q16, Q4 = 197, 244, 245, 246
    QM, QL = (190, 248), (194, 252)
    ACC, AF, LF, PEND, CHK = 198, 234, 238, 242, 243
    O, RING = 64, 80
    VN2, VDMA = 247, 255
    w = Wave(a, KM, V, KL, IDX)
    a("K2_A:")
    a("  s_barrier")
    stamp(a, 15, alt="alt2")
    common_scalars(a)
    lane_kv(a, 96, 97, 98)
    a("  s_lshl_b32 s23, s6, 4")
    kv_setup(a, "s23")
    kv = [kv_list(a, w, u, "v96", "v97", "v98") for u in range(NA)]
    a("  v_bfe_u32 v8, v0, 1, 1")
    a("  v_mul_u32_u24 v8, 0xaaaa, v8")
    a(f"  v_add_u32 v{IDX}, 0xdddd4444, v8")
    a(f"  v_lshlrev_b32 v{L16}, 4, v0")
    a(f"  v_lshlrev_b32 v{L8}, 3, v0")
    a(f"  v_add_u32 v{W16}, s7, v{L16}")
    a(f"  v_add_u32 v{W8}, s7, v{L8}")
    a(f"  v_add_u32 v{Q16}, {L_QB}, v{L16}")
    a(f"  v_add_u32 v{Q4}, {L_QB}, v98")
    a(f"  v_mov_b32 v{Z}, 0")
    a(f"  v_mov_b32 v{QL[0] + 1}, 0")
    a(f"  v_mov_b32 v{QL[1] + 1}, 0")
    a(f"  v_mov_b32 v{CHK}, 0")
    for i in range(36):
        a(f"  v_mov_b32 v{ACC + i}, 0")
    a(f"  v_mov_b32 v1, {L_CNT}")
    a("  v_mov_b32 v2, 1")
    a("  v_mov_b32 v3, 0")
    a("  s_mov_b64 exec, 1")
    a("  s_waitcnt vmcnt(0)")
    stamp(a, 16, alt="alt2")
    a("  ds_add_rtn_u32 v1, v1, v2")
    a("  s_waitcnt lgkmcnt(0)")
    a("  v_cmp_eq_u32 vcc, 4, v1")
    a("  s_cbranch_vccz K2_NOFLAG")
    a("  buffer_store_dword v2, v3, s[8:11], s60 offen sc1")
    a("K2_NOFLAG:")
    a("  s_mov_b64 exec, -1")
    a("  s_mul_i32 s25, s6, 288")
    a("  v_lshrrev_b32 v11, 4, v0")
    a("  v_mul_u32_u24 v13, 2304, v11")
    a("  v_and_b32 v12, 15, v0")
    a(f"  v_lshl_add_u32 v{VN2}, v12, 1, s25")
    a(f"  v_add_u32 v254, v{VN2}, v13")
    a(f"  v_add_u32 v254, {L_XI}, v254")
    gu_setup(a, VDMA)
    a("  s_mul_i32 s27, s6, 18432")
    a(f"  s_add_u32 s27, s27, {WS_WOL}")
    f = Asm(); tail_scalars(f, False)
    for l in f.lines: a(l)
    stamp_start(a)
    a("  s_setprio 2")
    a("  s_waitcnt vmcnt(0)")
    a("  s_barrier")
    stamp(a, 17, alt="alt2")
    issue(kv[0], 3)
    for j in range(9):
        a(f"  ds_read_u16_d16_hi v{ACC + 4 * j}, v254 offset:{32 * j}")
        a(f"  ds_read_u16_d16_hi v{ACC + 4 * j + 1}, v254 offset:{32 * j + 1152}")
        if j >= 4: a("  s_waitcnt lgkmcnt(8)")
        issue(kv[0] or kv[1], 1)
    issue(kv[1])
    stamp(a, 2)

    def stage(p):
        for i in range(sum(GUA[:p + 1]), sum(GUA[:p + 2])):
            gu(a, sum(GUB) + i, VDMA); vm.append("dma")

    where = {}
    def wo_load(step, j, r):
        if "nowo" in OPT or ("halfwo" in OPT and j % 2): where[step, j] = r; return
        where[step, j] = r
        a(f"  s_add_u32 s24, s27, {step * 73728 + j * 2048}")
        vload(("wo", step, j), f"  buffer_load_dwordx4 v[{r}:{r + 3}], v{L16}, s[8:11], s24 offen sc1")
        vload(("wo", step, j), f"  buffer_load_dwordx4 v[{r + 4}:{r + 7}], v{L16}, s[8:11], s24 offen offset:1024 sc1")
    def op(step, j):
        f = AF if step < 8 else LF
        vwait(("wo", step, j))
        r = where[step, j]
        if "noOP" not in OPT:
            a(f"  v_smfmac_f32_16x16x64_bf16 v[{ACC + 4 * j}:{ACC + 4 * j + 3}], v[{f}:{f + 3}], v[{r}:{r + 7}], v{IDX}")
        return r
    def zero(o, ql):
        a(f"  v_mfma_f32_32x32x8_bf16 v[{o}:{o + 15}], v[{ql}:{ql + 1}], v[{Z}:{Z + 1}], 0   ; accumulator = 0")
    def flushA(q, o):
        b = pa_slot(q)
        a(f"  ds_write_b128 v{W16}, v[{o}:{o + 3}] offset:{b}")
        a(f"  ds_write_b128 v{W16}, v[{o + 4}:{o + 7}] offset:{b + 1024}")
        a(f"  ds_write_b64 v{W8}, v[{o + 8}:{o + 9}] offset:{b + 2048}")
    def R(p, TP, TA, TB, shadow=None):
        if "noR" in OPT: return
        b = L_PB + (p % 2) * 10240
        for s in range(4):
            a(f"  ds_read_b64 v[{TP + 2 * s}:{TP + 2 * s + 1}], v{L8} offset:{b + 2560 * s + 2048}")
        for s in range(4):
            a(f"  ds_read_b128 v[{TA + 4 * s}:{TA + 4 * s + 3}], v{L16} offset:{b + 2560 * s}")
        for s in range(4):
            a(f"  ds_read_b128 v[{TB + 4 * s}:{TB + 4 * s + 3}], v{L16} offset:{b + 2560 * s + 1024}")
        def add3(t, st):
            a(f"  v_pk_add_f32 v[{t}:{t + 1}], v[{t}:{t + 1}], v[{t + st}:{t + st + 1}]")
            a(f"  v_pk_add_f32 v[{t + 2 * st}:{t + 2 * st + 1}], v[{t + 2 * st}:{t + 2 * st + 1}], v[{t + 3 * st}:{t + 3 * st + 1}]")
            a(f"  v_pk_add_f32 v[{t}:{t + 1}], v[{t}:{t + 1}], v[{t + 2 * st}:{t + 2 * st + 1}]")
        rc = TP + 2
        if shadow: shadow()
        a("  s_waitcnt lgkmcnt(8)")
        add3(TP, 2)
        a(f"  v_rcp_f32 v{rc}, v{TP + 1}")
        for h, T in enumerate((TA, TB)):
            a(f"  s_waitcnt lgkmcnt({4 - 4 * h})")
            add3(T, 4); add3(T + 2, 4)
            a(f"  v_pk_mul_f32 v[{T}:{T + 1}], v[{T}:{T + 1}], v[{rc}:{rc + 1}] op_sel_hi:[1,0]")
            a(f"  v_pk_mul_f32 v[{T + 2}:{T + 3}], v[{T + 2}:{T + 3}], v[{rc}:{rc + 1}] op_sel_hi:[1,0]")
            a(f"  v_cvt_pk_bf16_f32 v{AF + 2 * h}, v{T}, v{T + 1}")
            a(f"  v_cvt_pk_bf16_f32 v{AF + 2 * h + 1}, v{T + 2}, v{T + 3}")
        a(f"  v_max3_u32 v{CHK}, v{CHK}, v{TP + 1}, v{rc}")
        if p % 2 == 0:
            a(f"  v_mul_f32 v{PEND}, v{TP}, v{rc}")
        else:
            a(f"  v_mul_f32 v{TP}, v{TP}, v{rc}")
            a(f"  v_cvt_pk_bf16_f32 v{LF + p // 2}, v{PEND}, v{TP}")

    seq = [(0, 0), (1, 0), (0, 1), (1, 1), (0, 2), (1, 2)] + [(q, u) for q in range(2, 8) for u in range(3)]
    Oof = lambda q: RING if q == 1 else O
    a("  s_barrier")
    qread(0); qread(1)
    issue(kv[2], 3)
    vwait(("k", 0))
    a("  s_waitcnt lgkmcnt(0)")
    stamp(a, 12, alt=True)
    w.qk2(0, 0, QL[0])
    zero(O, QL[0])
    zero(RING, QL[0])
    issue(kv[2], 2)
    w.qkm(0, 0, 0, QM[0])
    w.qkm(0, 0, 1, QM[0])
    issue(kv[2], 2)
    a("  s_setprio 0")
    for n, (q, u) in enumerate(seq):
        X, Y = 32 * (n % 2), 32 * ((n + 1) % 2)
        nx = seq[n + 1] if n + 1 < len(seq) else None
        p = q - 3
        if n == 0: prev = None
        elif u == 0 and q >= 3: prev = lambda: zero(O, QL[q % 2])
        else: prev = (Oof(seq[n - 1][0]), seq[n - 1][1])
        def hook(pos):
            if pos == "pre2b" and nx:
                vwait(("k", nx[1]))
                if (nx[0] >= 4 or nx[0] == 2) and nx[1] == 0: a("  s_waitcnt lgkmcnt(0)")
            if pos == "prepv0": vwait(("v", u, 1))
            if pos == "prepv2": vwait(("v", u, 3))
            if n == 4 and pos == "late": qread(2); qread(3)
            if n == 5 and pos == "mid": flushA(0, O)
            if n == 5 and pos == "late":
                a("  s_waitcnt lgkmcnt(0)"); zero(O, QL[0])
            if n == 6 and pos == "mid": flushA(1, RING)
        w.unit(X, Y, Oof(q), u, prev=prev, nxt=(nx[1], QM[nx[0] % 2], QL[nx[0] % 2]) if nx else None, hook=hook)
        if n < 10: stamp(a, 13 + n, alt=True)
        if q >= 2 and u == 0:
            bar()
            a("  s_setprio 2")
        if 3 <= q < 7 and u == 1: qread(q + 1)
        if p >= 1 and u == 1:
            for j in range(4, 8): wo_load(p, j - 4, op(p - 1, j))
        if q >= 2 and u == 2:
            F = X
            w.pv(O, X, u, 3)
            if p == -1:
                for j in range(4): wo_load(0, j, RING + 8 * j)
                flushA(q, O)
                stage(p)
            else:
                wo_load(p, 8, F)
                if q == 7:
                    for j in range(3): wo_load(5, j, 112 + 8 * j)
                flushA(q, O)
                R(p, F + 8, F + 16, O)
                for j in range(4): wo_load(p, j + 4, op(p, j))
                op(p, 8)
                if p < 4: stage(p)
            if q < 7:
                a("  s_waitcnt lgkmcnt(0)")
                a("  s_setprio 0")
    SY = lambda j: RING + 8 * j if j < 4 else 8 * (j - 4)
    WR = [184, 186, 188, 190, 191, 192, 193, 194, 195]
    for j in range(3, 6): wo_load(5, j, 112 + 8 * j)
    for j in range(4, 8): op(4, j)
    stage(4)
    bar()
    E7 = int(os.environ.get("E7", "3"))
    for j in range(6, 9): wo_load(5, j, 112 + 8 * j)
    R(5, 40, 48, O)
    for j in range(9):
        wo_load(6, j, SY(j)); op(5, j)
    for j in range(E7): wo_load(7, j, 112 + 8 * j)
    stage(5)
    bar()
    for j in range(E7, E7 + 3): wo_load(7, j, 112 + 8 * j)
    R(6, 40, 48, O)
    for j in range(E7 + 3, 9): wo_load(7, j, 112 + 8 * j)
    for j in range(9): wo_load(8, j, op(6, j))
    vwait("dma")
    a(f"  v_add_u32 v254, {L_WR}, v{VN2}")
    for j in range(9):
        a(f"  ds_read_u16 v{WR[j]}, v254 offset:{32 * j}")
    a(f"  v_lshrrev_b32 v252, 7, v{L16}")
    a("  v_lshl_add_u32 v252, v252, 4, s39")
    a(f"  v_lshrrev_b32 v253, 8, v{L16}")
    a(f"  v_bfe_u32 v251, v{L16}, 5, 2")
    a("  v_lshl_add_u32 v253, v253, 2, v251")
    a(f"  v_mul_u32_u24 v253, {HI}, v253")
    a("  v_and_or_b32 v253, v252, 16, v253")
    a(f"  v_and_b32 v251, 8, v{L8}")
    a("  v_add3_u32 v253, v253, v251, s25")
    bar()
    R(7, 40, 48, O, lambda: [a(f"  v_lshlrev_b32 v{r}, 16, v{r}") for r in WR])
    a(f"  v_cmp_lt_u32 vcc, {hex(SAFE)}, v{CHK}")
    a("K2_OP7:")
    def stats(j):
        r = ACC + 4 * j
        a(f"  v_pk_add_f32 v[{r}:{r + 1}], v[{r}:{r + 1}], v[{r + 2}:{r + 3}]")
        wr = WR[j]
        sel = f"op_sel:[0,{wr % 2},0] op_sel_hi:[1,{wr % 2},1]"
        wp = f"v[{wr - wr % 2}:{wr - wr % 2 + 1}]"
        if j == 0:
            a(f"  v_pk_mul_f32 v[42:43], v[{r}:{r + 1}], v[{r}:{r + 1}]")
            a(f"  v_pk_mul_f32 v[44:45], v[{r}:{r + 1}], {wp} op_sel_hi:[1,0]")
        else:
            if j == 1: a(f"  v_pk_add_f32 v[40:41], v[{ACC}:{ACC + 1}], v[{r}:{r + 1}]")
            else: a(f"  v_pk_add_f32 v[40:41], v[40:41], v[{r}:{r + 1}]")
            a(f"  v_pk_fma_f32 v[42:43], v[{r}:{r + 1}], v[{r}:{r + 1}], v[42:43]")
            a(f"  v_pk_fma_f32 v[44:45], v[{r}:{r + 1}], {wp}, v[44:45] {sel}")
    for j in range(4): op(7, j)
    a("  s_cbranch_vccnz K2_SAFE")
    for j in range(9):
        op(8, j)
        if j + 4 < 9: op(7, j + 4)
        if j >= 4: stats(j - 4)
    for j in range(5, 9): stats(j)
    for i in range(3):
        a(f"  v_add_f32_dpp v{248 + i}, v{40 + 2 * i}, v{40 + 2 * i} row_ror:8 row_mask:0xf bank_mask:0x3")
    for i in range(3):
        a(f"  v_add_f32_dpp v{248 + i}, v{41 + 2 * i}, v{41 + 2 * i} row_ror:8 row_mask:0xf bank_mask:0xc")
    for m in ("row_half_mirror", "quad_perm:[2,3,0,1]", "quad_perm:[1,0,3,2]"):
        for i in range(3):
            a(f"  v_add_f32_dpp v{248 + i}, v{248 + i}, v{248 + i} {m} row_mask:0xf bank_mask:0xf")
    a("  s_mov_b32 exec_lo, 0x01010101")
    a("  s_mov_b32 exec_hi, 0x01010101")
    a("  ds_write_b128 v252, v[248:251]")
    a("  s_mov_b64 exec, -1")
    bar()
    a("  s_setprio 0")
    for j in range(9):
        a(f"  ds_write_b64 v253, v[{ACC + 4 * j}:{ACC + 4 * j + 1}] offset:{L_H + 32 * j}")
    a(f"  v_lshrrev_b32 v0, 4, v{L16}")
    if "earlyp" in OPT: ffn_prep(a, False)
    a(f"  s_cmp_ge_u32 s2, {NF}")
    a("  s_waitcnt lgkmcnt(0)")
    stamp(a, 13)
    a("  s_barrier                               ; T2")
    a("  s_cbranch_scc1 K2_END")
    a("  s_setprio 2")
    if "earlyp" not in OPT: ffn_prep(a, False)
    for o in OPT:
        if o.startswith("slp"): a(f"  s_sleep {o[3:]}")
    gather_keys(a)

    a("K2_SAFE:")
    S, KMs, Vs, KLs, QMs, QLs, M, LV = 0, 32, 40, 56, 58, 62, 80, 84
    a("  s_waitcnt vmcnt(0)")
    a("  s_nop 7")
    a(f"  v_lshrrev_b32 v0, 4, v{L16}")
    lane_kv(a, 96, 97, 98)
    lane_q(a, 99, 100)
    a("  v_lshrrev_b32 v1, 4, v0")
    a("  v_mul_u32_u24 v1, 2304, v1")
    a(f"  v_add_u32 v1, v1, v{VN2}")
    for i in range(36): a(f"  v_mov_b32 v{ACC + i}, 0")
    for j in range(9):
        a(f"  buffer_load_short_d16_hi v{ACC + 4 * j}, v1, s[12:15], s5 offen offset:{32 * j}")
        a(f"  buffer_load_short_d16_hi v{ACC + 4 * j + 1}, v1, s[12:15], s5 offen offset:{32 * j + 1152}")
    a(f"  v_mov_b32 v{KLs + 1}, 0")
    a(f"  v_mov_b32 v{QLs + 1}, 0")
    ws_ = Wave(a, KMs, Vs, KLs, IDX)
    def scores(withv):
        a(f"  buffer_load_dword v{KLs}, v98, s[8:11], s22 offen sc1")
        for h in range(2):
            a(f"  buffer_load_dwordx4 v[{KMs + 4 * h}:{KMs + 4 * h + 3}], v96, s[8:11], s20 offen offset:{1024 * h} sc1")
        if withv:
            for k in range(4):
                a(f"  buffer_load_dwordx4 v[{Vs + 4 * k}:{Vs + 4 * k + 3}], v97, s[8:11], s21 offen offset:{640 * k} sc1")
        a("  s_add_u32 s20, s20, 2048")
        a("  s_add_u32 s21, s21, 2560")
        a("  s_add_u32 s22, s22, 256")
        a("  s_waitcnt vmcnt(0)")
        ws_.qk2(S, 0, QLs); ws_.qkm(S, 0, 0, QMs); ws_.qkm(S, 0, 1, QMs)
    def rewind():
        a(f"  s_mov_b32 s20, {WS_KM}")
        a(f"  s_mov_b32 s21, {WS_VT}")
        a(f"  s_mov_b32 s22, {WS_KL}")
    a("  s_mov_b32 s23, s5")
    a("  s_mov_b32 s26, s27")
    a("  s_mov_b32 s44, 0")
    a("K2_SG:")
    a(f"  buffer_load_dword v{QLs}, v100, s[8:11], s23 offen offset:32 sc1")
    a(f"  buffer_load_dwordx4 v[{QMs}:{QMs + 3}], v99, s[8:11], s23 offen sc1")
    a(f"  v_mov_b32 v{M}, 0xff800000")
    rewind()
    a("K2_S1:")
    scores(False)
    for i in range(0, 32, 2):
        a(f"  v_max3_f32 v{M}, v{M}, v{S + i}, v{S + i + 1}")
    a(f"  s_cmp_lt_u32 s22, {WS_KL + 8192}")
    a("  s_cbranch_scc1 K2_S1")
    a(f"  v_mov_b32 v{M + 1}, v{M}")
    a(f"  v_permlane32_swap_b32 v{M}, v{M + 1}")
    a(f"  v_max_f32 v{M}, v{M}, v{M + 1}")
    for i in range(16): a(f"  v_mov_b32 v{O + i}, 0")
    rewind()
    a("K2_S2:")
    scores(True)
    for i in range(32): a(f"  v_sub_f32 v{S + i}, v{S + i}, v{M}")
    for i in range(32): a(f"  v_exp_f32 v{S + i}, v{S + i}")
    for k in range(4): ws_.pv(O, S, 0, k)
    a(f"  s_cmp_lt_u32 s22, {WS_KL + 8192}")
    a("  s_cbranch_scc1 K2_S2")
    for j in range(9):
        a(f"  buffer_load_dwordx4 v[{112 + 8 * j}:{115 + 8 * j}], v{L16}, s[8:11], s26 offen sc1")
        a(f"  buffer_load_dwordx4 v[{116 + 8 * j}:{119 + 8 * j}], v{L16}, s[8:11], s26 offen offset:1024 sc1")
        a(f"  s_add_u32 s26, s26, {2048 if j < 8 else 73728 - 8 * 2048}")
    a(f"  v_rcp_f32 v{M}, v{O + 9}")
    for i in range(7): a(f"  v_mov_b32 v{LV + i}, v{LV + i + 1}")
    for i in range(8): a(f"  v_mul_f32 v{O + i}, v{O + i}, v{M}")
    a(f"  v_mul_f32 v{LV + 7}, v{O + 8}, v{M}")
    for i in range(4): a(f"  v_cvt_pk_bf16_f32 v{AF + i}, v{O + 2 * i}, v{O + 2 * i + 1}")
    a("  s_add_u32 s23, s23, 144")
    a("  s_add_u32 s44, s44, 1")
    a("  s_cmp_eq_u32 s44, 8")
    a("  s_waitcnt vmcnt(0)")
    a("  s_cbranch_scc1 K2_SD")
    for j in range(9):
        a(f"  v_smfmac_f32_16x16x64_bf16 v[{ACC + 4 * j}:{ACC + 4 * j + 3}], v[{AF}:{AF + 3}], v[{112 + 8 * j}:{119 + 8 * j}], v{IDX}")
    a("  s_branch K2_SG")
    a("K2_SD:")
    for i in range(4): a(f"  v_cvt_pk_bf16_f32 v{LF + i}, v{LV + 2 * i}, v{LV + 2 * i + 1}")
    for j in range(9):
        r = where[8, j]
        assert where[7, j] == 112 + 8 * j
        a(f"  buffer_load_dwordx4 v[{r}:{r + 3}], v{L16}, s[8:11], s26 offen sc1")
        a(f"  buffer_load_dwordx4 v[{r + 4}:{r + 7}], v{L16}, s[8:11], s26 offen offset:1024 sc1")
        a("  s_add_u32 s26, s26, 2048")
    a("  s_mov_b64 vcc, 0")
    a("  s_waitcnt vmcnt(0)")
    a("  s_branch K2_OP7")

    a("K2_B:")
    KM, V, KL = 96, 136, 216
    IDX, W16, W8, VK, VV = 217, 219, 221, 223, 225
    QM, QL = (226, 230), (234, 236)
    L16, VKL, VQ, VQL, Q16, Q4 = 239, 242, 244, 245, 254, 255
    OB = (64, 80)
    w = Wave(a, KM, V, KL, IDX)
    vm.clear()
    BEFORE[0] = False; nb[0] = 3
    a("  s_setprio 0")
    lane_q(a, VQ, VQL)
    lane_kv(a, VK, VV, VKL)
    a(f"  v_mov_b32 v{IDX}, 0xdddddddd")
    a(f"  v_add_u32 v{W16}, s7, v{L16}")
    a(f"  v_lshl_add_u32 v{W8}, v0, 3, s7")
    a(f"  v_add_u32 v{Q16}, {L_QB}, v{L16}")
    a(f"  v_add_u32 v{Q4}, {L_QB}, v{VKL}")
    a(f"  v_mov_b32 v{QL[0] + 1}, 0")
    a(f"  v_mov_b32 v{QL[1] + 1}, 0")
    a("  s_mul_i32 s25, s6, 2304")
    a("  v_and_b32 v22, 60, v242")
    a("  s_barrier                               ; E")
    a("  s_cmp_lg_u32 s3, 4")
    a("  s_cbranch_scc1 K2_NOCHK")
    a("  global_load_dword v23, v22, s[66:67] sc1")
    a("K2_NOCHK:")
    a(f"  s_add_u32 m0, s25, {L_XI}")
    a("  s_add_u32 s24, s25, s5")
    a(f"  buffer_load_dwordx4 v{L16}, s[12:15], s24 offen lds")
    a(f"  buffer_load_dwordx4 v{L16}, s[12:15], s24 offen offset:1024 lds")
    a("  s_mov_b64 exec, 0xffff")
    a(f"  buffer_load_dwordx4 v{L16}, s[12:15], s24 offen offset:2048 lds")
    a("  s_mov_b64 exec, -1")
    for i in range(sum(GUB[:4]), sum(GUB)): gu(a, i)
    for i in range(16): a(f"  v_mov_b32 v{OB[0] + i}, 0")
    for i in range(10, 16): a(f"  v_mov_b32 v{OB[1] + i}, 0")
    ffn_consts_b(a)
    a("  v_mul_u32_u24 v243, 84, v0")
    a("  s_lshl_b32 s23, s6, 4")
    a(f"  s_add_u32 s23, s23, {2 * NA}")
    kv_setup(a, "s23")
    a("  s_mul_i32 s64, s6, 144")
    a("  s_add_u32 s64, s64, s5")
    a("  s_mul_i32 s59, s6, 1280")
    a(f"  s_add_u32 s59, s59, {L_QB}")
    a("  s_lshr_b32 s57, s2, 3")
    a("  s_lshl_b32 s57, s57, 2")
    a("  s_add_u32 s57, s57, s6")
    a("  s_mul_i32 s57, s57, 5184")
    a(f"  s_add_u32 s57, s57, {WS_WOL}")
    srd(a, 28, 54, 55, 5308416)
    f = Asm(); tail_scalars(f, True)
    for l in f.lines: a(l)
    a("  s_mov_b32 m0, s59")
    a("  s_setprio 1")
    a("  s_cmp_lg_u32 s3, 4")
    a("  s_cbranch_scc1 K2_R0")
    a("  s_lshr_b32 s24, s2, 3")
    a("  s_and_b32 s26, s2, 7")
    a("  s_mul_i32 s26, s26, 3")
    a("  s_cmp_ge_u32 s24, 12")
    a("  s_addc_u32 s26, s26, 0")
    a("  s_cmp_ge_u32 s24, 22")
    a("  s_addc_u32 s26, s26, 0")
    a("  s_mul_i32 s26, s26, 9")
    a("  v_min_u32 v1, 48, v0")
    a("  v_add_u32 v2, s26, v1")
    a("  v_cmp_gt_u32 vcc, 40, v0")
    a(f"  s_mov_b32 s24, {WS_FLAG}")
    a("  s_mov_b32 s70, 0")
    a("  v_cndmask_b32 v1, v2, v1, vcc")
    a("  v_lshlrev_b32 v1, 7, v1")
    a(f"  v_mov_b32 v3, {L_CNT}")
    a("  v_mov_b32 v4, 1")
    a("  v_mov_b32 v5, 0")
    a(f"  s_waitcnt vmcnt({3 + GUB[4]})")
    a("K2_WC:")
    a("  v_cmp_eq_u32 vcc, 0, v23")
    a("  s_add_u32 s70, s70, 1")
    a(f"  s_cmp_lt_u32 s70, {SPIN}")
    a("  s_cselect_b64 vcc, vcc, 0")
    a("  s_cbranch_vccz K2_WD")
    a("  global_load_dword v23, v22, s[66:67] sc1")
    a("  s_waitcnt vmcnt(0)")
    a("  s_branch K2_WC")
    a("K2_WD:")
    a("  s_mov_b64 exec, 1")
    a("  ds_add_rtn_u32 v2, v3, v4")
    a("  s_waitcnt lgkmcnt(0)")
    a("  v_cmp_eq_u32 vcc, 4, v2")
    a("  s_cbranch_vccz K2_W0")
    a("  buffer_store_dword v4, v5, s[8:11], s60 offen sc1")
    a("K2_W0:                                    ; no point in looking before this workgroup's own stores are through")
    a("  ds_read_b32 v2, v3")
    a("  s_waitcnt lgkmcnt(0)")
    a("  v_cmp_gt_u32 vcc, 5, v2")
    a("  s_cbranch_vccnz K2_W0")
    a("  s_mov_b64 exec, -1")
    if "pipe0" in OPT:
        a("  buffer_load_dword v6, v1, s[8:11], s24 offen sc1")
        a("  s_nop 15")
        a("K2_W1:")
        a("  buffer_load_dword v2, v1, s[8:11], s24 offen sc1")
        a("  s_waitcnt vmcnt(1)")
        a("  v_cmp_eq_u32 vcc, 0, v6")
        a("  s_cbranch_vccz K2_R1")
        a("  buffer_load_dword v6, v1, s[8:11], s24 offen sc1")
        a("  s_add_u32 s70, s70, 1")
        a("  s_waitcnt vmcnt(1)")
    else:
        a("K2_W1:")
        a("  buffer_load_dword v2, v1, s[8:11], s24 offen sc1")
        a("  s_add_u32 s70, s70, 1")
        a("  s_waitcnt vmcnt(0)")
    a("  v_cmp_eq_u32 vcc, 0, v2")
    a(f"  s_cmp_lt_u32 s70, {SPIN}")
    a("  s_cselect_b64 vcc, vcc, 0")
    a("  s_cbranch_vccnz K2_W1")
    if "pipe0" in OPT: a("  s_branch K2_R1")
    a("K2_R0:")
    a("  s_waitcnt vmcnt(0)")
    a("K2_R1:")
    a("  s_barrier                               ; R0")
    stamp(a, 17, alt="alt2")
    vload("st", f"  buffer_load_dwordx4 v{VQ}, s[8:11], s64 offen sc1 lds")
    a(f"  s_add_u32 m0, s59, {1024 - 32}")
    vload("st", f"  buffer_load_dword v{VQL}, s[8:11], s64 offen offset:32 sc1 lds")
    vwait("st")
    a("  s_barrier")
    stamp(a, 2)
    qread(0); qread(1)
    a("  s_waitcnt lgkmcnt(0)")
    kv = [kv_list(a, w, u, f"v{VK}", f"v{VV}", f"v{VKL}") for u in range(NB)]
    issue(kv[0]); issue(kv[1]); issue(kv[2])
    later = kv[3] + kv[4] + [("st", None, "  buffer_load_dword v243, v243, s[8:11], s57 offen sc1"),
             ("st", f"  s_add_u32 m0, s59, {5120 - 576}", f"  buffer_load_dwordx4 v{VQ}, s[8:11], s64 offen offset:576 sc1 lds"),
             ("st", f"  s_add_u32 m0, s59, {5120 + 1024 - 608}", f"  buffer_load_dword v{VQL}, s[8:11], s64 offen offset:608 sc1 lds")]
    stamp(a, 12, alt=True)
    def init(p, o=None):
        b = pa_slot(p); o = o or OB[p % 2]
        a(f"  ds_read_b128 v[{o}:{o + 3}], v{W16} offset:{b}")
        a(f"  ds_read_b128 v[{o + 4}:{o + 7}], v{W16} offset:{b + 1024}")
        a(f"  ds_read_b64 v[{o + 8}:{o + 9}], v{W8} offset:{b + 2048}")
    def flushB(p):
        b = L_PB + (p % 2) * 10240; o = OB[p % 2]
        a(f"  ds_write_b128 v{W16}, v[{o}:{o + 3}] offset:{b}")
        a(f"  ds_write_b128 v{W16}, v[{o + 4}:{o + 7}] offset:{b + 1024}")
        a(f"  ds_write_b64 v{W8}, v[{o + 8}:{o + 9}] offset:{b + 2048}")
    vwait(("k", 0))
    a("  s_waitcnt lgkmcnt(0)")
    w.qk2(0, 0, QL[0])
    w.qkm(0, 0, 0, QM[0])
    w.qkm(0, 0, 1, QM[0])
    for p in range(8):
        for u in range(NB):
            n = NB * p + u
            last = (p == 7 and u == NB - 1)
            def hook(pos, p=p, u=u):
                if pos == "pre2b" and u + 1 < NB: vwait(("k", u + 1))
                if pos == "prepv0": vwait(("v", u, 1))
                if pos == "prepv2": vwait(("v", u, 3))
                if p == 0:
                    if pos in ("early", "mid", "preqk", "late"): issue(later, 2)
                    if u == 3 and pos == "late":
                        bar()
                        init(1); init(0, 244)
                    if u == 4 and pos == "late": a("  s_waitcnt lgkmcnt(0)")
                    return
                if pos == "mid" and u == 0:
                    if p == 1:
                        for i in range(0, 10, 2):
                            a(f"  v_pk_add_f32 v[{OB[0] + i}:{OB[0] + i + 1}], v[{OB[0] + i}:{OB[0] + i + 1}], v[{244 + i}:{245 + i}]")
                    flushB(p - 1)
                if pos == "late" and u == 0:
                    vwait("st")
                    bar()
                if pos == "late" and u == (0 if p < 6 else 1) and p < 7:
                    init(p + 1); qread(p + 1)
                if pos == "late" and u == 3 and p < 7: a("  s_waitcnt lgkmcnt(0)")
            prev = None if n == 0 else ((OB[p % 2], u - 1) if u else (OB[(p - 1) % 2], NB - 1))
            nxt = None if last else ((u + 1, QM[p % 2], QL[p % 2]) if u + 1 < NB else (0, QM[(p + 1) % 2], QL[(p + 1) % 2]))
            w.unit(32 * (n % 2), 32 * ((n + 1) % 2), OB[p % 2], u, prev=prev, nxt=nxt, hook=hook)
            if n < 5: stamp(a, 14 + n, alt=True)
    w.pv(OB[1], 32 * ((8 * NB - 1) % 2), NB - 1, 3)
    flushB(7)
    bar()
    a(f"  v_lshrrev_b32 v0, 4, v{L16}")
    a(f"  s_cmp_ge_u32 s2, {NF}")
    a("  s_cbranch_scc1 K2_NOPREP")
    ffn_prep(a, True)
    a("K2_NOPREP:")
    a("  s_cmp_lg_u32 s3, 4")
    a("  s_cbranch_scc1 K2_T1B")
    a(f"  v_add_u32 v1, {L_WR}, v{L16}")
    for i in range(4): a(f"  v_mov_b32 v{20 + i}, 0")
    a("  ds_read_b128 v[16:19], v1")
    a("  s_mov_b64 exec, 0xff")
    a("  ds_read_b128 v[20:23], v1 offset:1024")
    a("  s_mov_b64 exec, -1")
    for i in range(4): a(f"  v_mov_b32 v{24 + i}, 0x3f803f80")
    a("  v_lshrrev_b32 v1, 3, v0                 ; t")
    a("  v_and_b32 v2, 7, v0                     ; j")
    a("  s_waitcnt lgkmcnt(0)")
    a("  v_mfma_f32_16x16x32_bf16 v[12:15], v[24:27], v[16:19], 0")
    a("  v_mfma_f32_16x16x32_bf16 v[12:15], v[24:27], v[20:23], v[12:15]")
    a("  v_lshlrev_b32 v3, 4, v1")
    a("  v_lshlrev_b32 v4, 4, v2")
    a("  v_sub_u32 v5, s38, v1                   ; 2047 - token t")
    a("  v_sub_u32 v6, s38, v2                   ; 2047 - token j")
    a("  v_lshlrev_b32 v7, 3, v1                 ; 8t")
    a("  v_and_b32 v10, 0x30, v0")
    a("  v_and_b32 v11, 1, v1")
    a("  v_lshl_add_u32 v10, v11, 2, v10")
    a(f"  v_add_u32 v10, {L_MR}, v10")
    for m in ("row_ror:8", "row_ror:4", "row_ror:2", "row_ror:1"):
        a(f"  v_add_f32_dpp v12, v12, v12 {m} row_mask:0xf bank_mask:0xf")
    a(f"  v_mov_b32 v14, {f32(1.0 / 576)}")
    a("  s_movk_i32 s25, 0x7ff")
    a("  s_brev_b32 s26, 1")
    a("  s_setprio 3")
    a("  s_barrier                               ; T1")
    stamp(a, 12)
    for s in range(4):
        a(f"  ds_read_b128 v[{16 + 4 * s}:{19 + 4 * s}], v3 offset:{L_ST + 128 * s}")
        a(f"  ds_read_b128 v[{32 + 4 * s}:{35 + 4 * s}], v4 offset:{L_ST + 128 * s}")
    def both(f):
        f(16); f(32)
    a("  s_waitcnt lgkmcnt(4)")
    both(lambda b: (a(f"  v_pk_add_f32 v[{b}:{b + 1}], v[{b}:{b + 1}], v[{b + 4}:{b + 5}]"),
                    a(f"  v_add_f32 v{b + 2}, v{b + 2}, v{b + 6}")))
    a("  s_waitcnt lgkmcnt(0)")
    both(lambda b: a(f"  v_pk_add_f32 v[{b + 8}:{b + 9}], v[{b + 8}:{b + 9}], v[{b + 12}:{b + 13}]"))
    both(lambda b: a(f"  v_pk_add_f32 v[{b}:{b + 1}], v[{b}:{b + 1}], v[{b + 8}:{b + 9}]"))
    both(lambda b: a(f"  v_pk_mul_f32 v[{b}:{b + 1}], v[{b}:{b + 1}], v[14:15] op_sel_hi:[1,0]"))
    both(lambda b: a(f"  v_fma_f32 v{b + 1}, -v{b}, v{b}, v{b + 1}          ; var"))
    both(lambda b: a(f"  v_max_f32 v{b + 1}, 0, v{b + 1}"))
    both(lambda b: a(f"  v_add_f32 v{b + 1}, {f32(1e-5)}, v{b + 1}"))
    both(lambda b: a(f"  v_rsq_f32 v{b + 1}, v{b + 1}                 ; rstd"))
    both(lambda b: a(f"  v_add_f32 v{b + 10}, v{b + 10}, v{b + 14}"))
    both(lambda b: a(f"  v_add_f32 v{b + 2}, v{b + 2}, v{b + 10}"))
    both(lambda b: a(f"  v_fma_f32 v{b + 2}, -v{b}, v12, v{b + 2}"))
    both(lambda b: a(f"  v_mul_f32 v{b + 2}, v{b + 2}, v{b + 1}"))
    both(lambda b: a(f"  v_ashrrev_i32 v{b + 4}, 31, v{b + 2}"))
    both(lambda b: a(f"  v_bitop3_b32 v{b + 4}, v{b + 4}, s26, v{b + 2} bitop3:0x56"))
    a("  v_bfi_b32 v20, s25, v5, v20")
    a("  v_bfi_b32 v36, s25, v6, v36")
    a("  v_cmp_gt_u32 vcc, v36, v20")
    a("  v_max_u32 v20, 1, v20")
    a("  s_mov_b32 exec_lo, 0x01010101")
    a("  v_lshrrev_b64 v[8:9], v7, vcc")
    a("  s_mov_b32 exec_hi, 0x01010101")
    a("  v_and_b32 v8, 0xff, v8")
    a("  v_bcnt_u32_b32 v8, v8, 0")
    a("  v_lshlrev_b32 v8, 2, v8")
    a("  buffer_store_dword v20, v8, s[8:11], s39 offen sc1")
    a("  v_add_f32 v21, 1.0, v17")
    a("  v_mul_f32 v22, -v16, v17")
    a("  ds_write2_b32 v10, v21, v22 offset0:0 offset1:2")
    a("  v_rcp_f32 v21, v21")
    a(f"  v_mul_f32 v19, {f32(-math.log2(math.e))}, v18")
    a("  v_exp_f32 v19, v19")
    a("  v_mul_f32 v17, v17, v21")
    a("  v_add_f32 v19, 1.0, v19")
    a("  v_rcp_f32 v19, v19")
    a("  buffer_store_dwordx4 v[16:19], v3, s[8:11], s55 offen sc1")
    a("  s_mov_b64 exec, -1")
    a("  s_branch K2_T2")
    a("K2_T1B:")
    a("  s_barrier                               ; T1")

    a("K2_T2:")
    a(f"  v_add_u32 v1, s52, v{L16}")
    a("  v_mov_b32 v2, s51")
    a("  s_waitcnt lgkmcnt(0)")
    stamp(a, 13)
    a("  s_barrier                               ; T2")
    a("  s_mov_b32 exec_hi, 0xf")
    a("  ds_read_b128 v[4:7], v2")
    for h in range(2):
        for i in range(4):
            a(f"  ds_read_b128 v[{8 + 16 * h + 4 * i}:{11 + 16 * h + 4 * i}], v1 offset:{L_H + HI * i + 576 * h}")
    for h in range(2):
        for i in range(4):
            a(f"  s_waitcnt lgkmcnt({7 - 4 * h - i})")
            r = 8 + 16 * h + 4 * i
            d = (40, 8)[h]
            a(f"  v_pk_fma_f32 v[{r}:{r + 1}], v[{r}:{r + 1}], v[4:5], v[6:7]")
            a(f"  v_pk_fma_f32 v[{r + 2}:{r + 3}], v[{r + 2}:{r + 3}], v[4:5], v[6:7]")
            a(f"  v_cvt_pk_bf16_f32 v{d + i}, v{r}, v{r + 2}")
            a(f"  v_cvt_pk_bf16_f32 v{d + 4 + i}, v{r + 1}, v{r + 3}")
        a(f"  buffer_store_dwordx4 v[{d}:{d + 3}], v{L16}, s[16:19], s53 offen offset:{576 * h} sc1")
        a(f"  buffer_store_dwordx4 v[{d + 4}:{d + 7}], v{L16}, s[16:19], s53 offen offset:{1152 + 576 * h} sc1")
    ffn_tail(a)
    a("K2_END:")
    stamp_dump(a, 1, "s3")
    a("K2_EXIT:")
    a("  s_endpgm")
    a("K2_LAST:")
```

```python
import struct, math
WS_Q = 0
WS_KM = 0x240000
WS_KL = 0x250000
WS_VT = 0x252000
WS_KEYS = 0x266000
WS_STAT = 0x268000
WS_WOL = 0x270000
WS_FLAG = 0x312000
WS_PART = 0x31A000
PSTR = 18432 + 128
WS_END = WS_PART + 144 * PSTR
QSCALE = 18 ** -0.5 * math.log2(math.e)
def f32(x):
    return "0x%08x" % struct.unpack("<I", struct.pack("<f", x))[0]

import os
DIAG = int(os.environ.get("DIAG", "0"))
WS_DBG = WS_END + 0x20000
WS_SIZE = WS_DBG + 2 * 256 * 8 * 128 if DIAG else WS_END
ST0 = 74
STAMPS = [int(x) for x in os.environ.get("STAMPS", "").split(",") if x]
if STAMPS: STAMPS += [0, 1, 24, 25]
OPT = set(os.environ.get("OPT", "").split(","))
def stamp(a, i, real=False, alt=False):
    if ("alt" in OPT or "alt2" in OPT) and 12 <= i <= 23 and not alt: return
    if alt and ("alt" if alt is True else alt) not in OPT: return
    if not DIAG or (STAMPS and i not in STAMPS) or (DIAG == 3 and i): return
    a(f"  {'s_memrealtime' if (real or DIAG == 2) else 's_memtime'} s[100:101]")
    a("  s_waitcnt lgkmcnt(0)")
    a(f"  s_mov_b32 s{ST0 + i}, s100")
def stamp_init(a):
    if not DIAG: return
    for i in range(26 if DIAG < 3 else 0): a(f"  s_mov_b32 s{ST0 + i}, 0")
    stamp(a, 0, True); stamp(a, 1)
def stamp_start(a):
    if DIAG != 3: return
    a("  s_lshl_b32 s100, s2, 3")
    a("  s_add_u32 s100, s100, s3")
    a("  s_lshl_b32 s100, s100, 7")
    a(f"  s_add_u32 s100, s100, {WS_DBG + 256 * 8 * 128}")
    a(f"  v_mov_b32 v1, s{ST0}")
    a("  v_mov_b32 v2, 0")
    a("  buffer_store_dword v1, v2, s[8:11], s100 offen")
    a("  buffer_store_dword v1, v2, s[8:11], s100 offen offset:512")
def stamp_dump(a, kern, swave):
    if not DIAG or DIAG == 3: return
    stamp(a, 24); stamp(a, 25, True)
    if kern == 0 and DIAG == 1: a("  s_sleep 20")
    a("  s_mov_b64 exec, 1")
    a(f"  s_lshl_b32 s100, s2, 3")
    a(f"  s_add_u32 s100, s100, {swave}")
    a(f"  s_lshl_b32 s100, s100, 7")
    a(f"  s_add_u32 s100, s100, {WS_DBG + kern * 256 * 8 * 128}")
    a("  s_nop 4")
    a("  v_mov_b32 v0, 0")
    for i in range(26):
        a(f"  v_mov_b32 v1, s{ST0 + i}")
        a(f"  buffer_store_dword v1, v0, s[8:11], s100 offen offset:{4 * i}")

KNAME = "sequential_preLN__grouped_kv_mqa__moe_arch_mod__prompt_kernel"
NF = 144
SPIN = 0x40000
L_G = 40960
L_U = L_G + 36864 + 128
L_D = L_U + 36864
L_QB = L_D + 36864
L_WR = L_QB + 10240
L_CNT = L_WR + 1152
LDS_SIZE = L_CNT + 64 + 256
def lane_gu(a, v):
    a("  v_lshrrev_b32 v14, 4, v0")
    a("  v_lshrrev_b32 v16, 2, v0")
    a("  v_mul_u32_u24 v16, 9216, v16")
    a("  v_and_b32 v15, 3, v0")
    a("  v_xor_b32 v15, v15, v14")
    a(f"  v_lshl_add_u32 v{v}, v15, 4, v16")
def expert_index(f):
    f("  s_and_b32 s56, s2, 7")
    f("  s_mul_i32 s56, s56, 18")
    f("  s_lshr_b32 s57, s2, 3")
    f("  s_add_u32 s56, s56, s57")
VGU = 238
NT = ' nt' if 'nt' in OPT else ''
def gu_setup(f, v=VGU):
    lane_gu(f, v)
    expert_index(f)
    f("  s_mov_b32 s32, s50")
    f("  s_and_b32 s33, s51, 0xffff")
    f("  s_mov_b32 s35, 0x20000")
    f("  s_mov_b32 s40, s52")
    f("  s_and_b32 s41, s53, 0xffff")
    f("  s_mov_b32 s43, 0x20000")
    f(f"  s_cmp_lt_u32 s2, {NF}")
    f("  s_cselect_b32 s34, 5308416, 0")
    f("  s_mov_b32 s42, s34")
    f("  s_and_b32 s57, s3, 3")
    f("  s_lshl_b32 s58, s57, 10")
    f("  s_mul_i32 s62, s57, 147456")
    f("  s_lshl_b32 s57, s56, 6")
    f("  s_add_u32 s62, s62, s57")
def gu(a, i, v=VGU):
    m, k = i // 9, i % 9
    a(f"  s_add_u32 m0, s58, {(L_G, L_U)[m] + 4096 * k}")
    a(f"  s_add_u32 s57, s62, {589824 * k}")
    a(f"  buffer_load_dwordx4 v{v}, s[{(32, 40)[m]}:{(35, 43)[m]}], s57 offen{NT} lds")
GUB = [int(x) for x in os.environ.get("GUB", "0,0,3,0,0").split(",")]
GUA = [int(x) for x in os.environ.get("GUA", "3,3,3,3,3,0,0").split(",")]
def srd(a, s, lo, hi, size):
    a(f"  s_mov_b32 s{s}, s{lo}")
    a(f"  s_and_b32 s{s+1}, s{hi}, 0xffff")
    a(f"  s_mov_b32 s{s+2}, {size}")
    a(f"  s_mov_b32 s{s+3}, 0x20000")
def common_scalars(a):
    a("  s_and_b32 s4, s2, 7")
    a("  s_lshl_b32 s4, s4, 5")
    a("  s_lshr_b32 s5, s2, 3")
    a("  s_add_u32 s4, s4, s5                    ; W: tokens 8W..8W+7")
    a("  s_mul_i32 s5, s4, 9216")
    a("  s_and_b32 s6, s3, 3")
    a("  s_mul_i32 s7, s6, 2560")
    srd(a, 12, 36, 37, 2359296)
    srd(a, 16, 64, 65, 2359296)
def clears(a, tag):
    srd(a, 8, 46, 47, WS_SIZE)
    common_scalars(a)
    a("  v_lshlrev_b32 v239, 4, v0")
    if "noclr" in OPT: return
    for i in range(4): a(f"  v_mov_b32 v{24 + i}, -1")
    a("  s_mul_i32 s24, s6, 2304")
    a("  s_add_u32 s24, s24, s5")
    for i in range(2):
        a(f"  buffer_store_dwordx4 v[24:27], v239, s[16:19], s24 offen offset:{1024 * i} sc1")
    a("  s_mov_b64 exec, 0xffff")
    a("  buffer_store_dwordx4 v[24:27], v239, s[16:19], s24 offen offset:2048 sc1")
    a("  s_lshl_b32 s24, s4, 2")
    a("  s_add_u32 s24, s24, s6")
    a("  s_lshl_b32 s24, s24, 5")
    a(f"  s_add_u32 s24, s24, {WS_STAT}")
    a("  s_mov_b64 exec, 3")
    a("  buffer_store_dwordx4 v[24:27], v239, s[8:11], s24 offen sc1")
    a("  s_mov_b64 exec, -1")
def clears2(a, tag):
    if "noclr" in OPT: return
    a(f"  s_cmp_lt_u32 s2, {NF}")
    a(f"  s_cbranch_scc1 K1_NC{tag}")
    a("  s_lshl_b32 s24, s2, 2")
    a("  s_add_u32 s24, s24, s6")
    a("  s_lshl_b32 s24, s24, 10")
    a(f"  s_add_u32 s24, s24, {WS_PART - 4096 * NF}")
    for j in range(6):
        a("  buffer_store_dwordx4 v[24:27], v239, s[8:11], s24 offen sc1")
        if j < 5: a(f"  s_add_u32 s24, s24, {448 * 1024}")
    a(f"K1_NC{tag}:")
```

```python
import sys
from asmlib import *
from layout import *
import k1, k2

NAME = "sequential_preLN__grouped_kv_mqa__moe_arch_mod__prompt"
def kd(name, vgpr, sgpr=102 if DIAG else 96):
    return f'''.amdhsa_kernel {name}
  .amdhsa_next_free_vgpr {vgpr}
  .amdhsa_next_free_sgpr {sgpr}
  .amdhsa_accum_offset {(vgpr + 3) // 4 * 4}
  .amdhsa_group_segment_fixed_size 0
  .amdhsa_kernarg_size 104
  .amdhsa_user_sgpr_count 2
  .amdhsa_user_sgpr_kernarg_segment_ptr 1
  .amdhsa_system_sgpr_workgroup_id_x 1
.end_amdhsa_kernel
'''
def build(verbose=True):
    a = Asm()
    k1.gen_k1(a); k2.gen_k2(a)
    once = lambda *ls: (lambda l, n: l in ls and n == 1 or l in ("K2_SD", "K2_WD") and n == 2)
    paths = [once("K1_COMP"), once("K1_COMP", "K1_NOPF", "K1_NORS", "K1_KV", "K2_NOFLAG", "K2_ROWS"),
             once("K1_COMP", "K1_KV", "K1_V", "K2_ROW1", "K2_ROW1W", "K2_SAFE", "K2_S1", "K2_S2"),
             once("K2_ROW1", "K2_GU"), once("K2_R0", "K2_NOCHK", "K1_NCa", "K2_T1B", "K2_ROW1", "K2_GU", "K2_D2", "K2_D3"),
             once("K1_SPARE", "K2_R0", "K2_NOPREP", "K2_END"), once("K1_SPARE", "K1_TASK", "K2_NOPREP", "K2_END"), once("K1_SPARE", "K1_TASK", "K2_A", "K2_END")]
    assert k1.K1_LDS <= L_WR and LDS_SIZE <= 163840
    s = open("header.txt").read() + f"; @launch grid=(256,1,1) block=(512,1,1) lds={LDS_SIZE}\n"
    s += '.amdgcn_target "amdgcn-amd-amdhsa--gfx950"\n.text\n'
    rep = []
    ins = fix_hazards(a.lines, rep)
    if verbose:
        print("instructions:", sum(1 for i in ins if i.mn), "nops inserted:", len(rep))
        for r in rep: print("   nop", r)
    for d in paths:
        tr = trace_path(ins, KNAME, d)
        if verbose: print("path barriers", sum(1 for i in tr if i.mn == "s_barrier"))
        for e in check_waits(tr, "")[:3]: print("WAIT ERROR", e)
    s += f".globl {KNAME}\n.p2align 8\n.type {KNAME},@function\n" + "\n".join(i.text for i in ins) + "\n"
    s += '.section .rodata,"a"\n.p2align 6\n' + kd(KNAME, 256)
    return s
if __name__ == "__main__":
    out = sys.argv[1] if len(sys.argv) > 1 else f"cdna_kernels/{NAME}.s"
    open(out, "w").write(build())
```

```python
import sys
from asmlib import *
from layout import *
import k1, k2

NAME = "sequential_preLN__grouped_kv_mqa__moe_arch_mod__prompt"
def kd(name, vgpr, sgpr=102 if DIAG else 96):
    return f'''.amdhsa_kernel {name}
  .amdhsa_next_free_vgpr {vgpr}
  .amdhsa_next_free_sgpr {sgpr}
  .amdhsa_accum_offset {(vgpr + 3) // 4 * 4}
  .amdhsa_group_segment_fixed_size 0
  .amdhsa_kernarg_size 104
  .amdhsa_user_sgpr_count 2
  .amdhsa_user_sgpr_kernarg_segment_ptr 1
  .amdhsa_system_sgpr_workgroup_id_x 1
.end_amdhsa_kernel
'''
def build(verbose=True):
    a = Asm()
    k1.gen_k1(a); k2.gen_k2(a)
    once = lambda *ls: (lambda l, n: l in ls and n == 1 or l in ("K2_SD", "K2_WD") and n == 2)
    paths = [once("K1_COMP", "K1_GO", "K2_A", "K2_CH0", "K2_CH1", "K2_CH2", "K2_CH3"), once("K1_COMP", "K1_NOPF", "K1_NORS", "K2_NOFLAG", "K2_ROWS"),
             once("K1_COMP", "K1_VA", "K1_V", "K2_ROW1", "K2_ROW1W", "K2_SAFE", "K2_S1", "K2_S2"),
             once("K2_ROW1", "K2_GU"), once("K1_LW", "K2_R0", "K2_NOCHK", "K2_NOFL", "K2_T1B", "K2_ROW1", "K2_GU", "K2_D2", "K2_D3"),
             once("K1_SP0", "K2_R0", "K2_NOPREP", "K2_END"), once("K1_SP0", "K1_TASK", "K1_SPD", "K2_NOPREP", "K2_END"), once("K1_SP0", "K1_TASK", "K2_END")]
    assert k1.K1_LDS <= L_WR and LDS_SIZE <= 163840
    s = open("header.txt").read() + f"; @launch grid=(256,1,1) block=(512,1,1) lds={LDS_SIZE}\n"
    s += '.amdgcn_target "amdgcn-amd-amdhsa--gfx950"\n.text\n'
    rep = []
    ins = fix_hazards(a.lines, rep)
    if verbose:
        print("instructions:", sum(1 for i in ins if i.mn), "nops inserted:", len(rep))
        for r in rep: print("   nop", r)
    for d in paths:
        tr = trace_path(ins, KNAME, d)
        if verbose: print("path barriers", sum(1 for i in tr if i.mn == "s_barrier"))
        for e in check_waits(tr, "")[:3]: print("WAIT ERROR", e)
    s += f".globl {KNAME}\n.p2align 8\n.type {KNAME},@function\n" + "\n".join(i.text for i in ins) + "\n"
    s += '.section .rodata,"a"\n.p2align 6\n' + kd(KNAME, 256)
    return s
if __name__ == "__main__":
    out = sys.argv[1] if len(sys.argv) > 1 else f"cdna_kernels/{NAME}.s"
    open(out, "w").write(build())
```

```python
from asmlib import *
from layout import *

SLOT = 20480
NSLOT = 7
DEPTH = int(os.environ.get("DEPTH", "3"))
L_STAT = NSLOT * SLOT
L_CS = L_STAT + 1024
L_TR = L_CS + 512
K1_LDS = L_TR + 4 * 3840
SC = " sc1"

NTW = " nt" if "ntw" in OPT else ""
NTX = " nt" if "ntx" in OPT else ""

def zero_counter(a):
    a("  s_waitcnt lgkmcnt(0)")
    srd(a, 28, 48, 49, 1152)
    a(f"  s_mov_b32 m0, {L_WR}")
    a("  v_lshlrev_b32 v123, 4, v0")
    a("  buffer_load_dwordx4 v123, s[28:31], 0 offen lds")
    a("  s_mov_b64 exec, 0xff")
    a("  buffer_load_dwordx4 v123, s[28:31], 0 offen offset:1024 lds")
    a("  s_mov_b64 exec, -1")
    a("  v_mov_b32 v122, 0")
    a(f"  v_mov_b32 v123, {L_CNT}")
    a("  ds_write_b32 v123, v122")
    a("  s_waitcnt lgkmcnt(0)")
def flag_slot(a):
    a("  s_and_b32 s60, s2, 7")
    a("  s_lshl_b32 s45, 1, s60")
    a("  s_mul_i32 s60, s60, 3")
    a("  s_add_u32 s60, s60, s34")
    a("  s_mul_i32 s61, s60, 9")
    a("  s_add_u32 s61, s61, s5")
    a("  s_add_u32 s61, s61, 40")
    a("  s_cmp_eq_u32 s5, 9")
    a("  s_cselect_b32 s60, s60, s61")
    a("  s_cselect_b32 s45, 0xff, s45")
    a("  s_lshl_b32 s60, s60, 7")
    a(f"  s_add_u32 s60, s60, {WS_FLAG}")

def gen_k1(a):
    a(KNAME + ":")
    a("  s_cmp_ge_u32 s2, 240")
    a("  s_cbranch_scc1 K1_SP0")
    stamp_init(a)
    def kernargs():
        a("  s_load_dwordx2 s[12:13], s[0:1], 0      ; x")
        a("  s_load_dwordx8 s[36:43], s[0:1], 0")
        a("  s_load_dwordx2 s[44:45], s[0:1], 32     ; wo")
        a("  s_load_dwordx2 s[46:47], s[0:1], 96     ; ws")
        a("  s_load_dwordx8 s[48:55], s[0:1], 48")
        a("  s_load_dwordx4 s[64:67], s[0:1], 80")
        a("  v_lshrrev_b32 v1, 6, v0")
        a("  v_and_b32 v0, 63, v0                    ; lane")
        a("  v_readfirstlane_b32 s3, v1")
        if "noswap" not in OPT: a("  s_xor_b32 s3, s3, 4")
    kernargs()
    a("  s_and_b32 s4, s2, 7")
    a("  s_lshr_b32 s5, s2, 3")
    a("  s_mul_i32 s34, s5, 26")
    a("  s_lshr_b32 s34, s34, 8                  ; T 0..2")
    a("  s_mul_i32 s6, s34, 10")
    a("  s_sub_u32 s5, s5, s6")
    a("  s_lshl_b32 s4, s4, 8")
    a("  s_lshl_b32 s6, s6, 3")
    a("  s_add_u32 s4, s4, s6")
    a("  s_add_u32 s35, s4, 96")
    a("  s_min_u32 s6, s6, 16")
    a("  s_add_u32 s4, s4, s6")
    a("  s_cmp_lt_u32 s3, 4")
    a("  s_cbranch_scc1 K1_COMP")

    a("  s_setprio 0" if "ldlow" in OPT else "  s_setprio 2")
    a("  v_lshrrev_b32 v1, 3, v0")
    a("  v_mul_u32_u24 v2, 1152, v1")
    a("  v_lshrrev_b32 v1, 4, v0")
    a("  v_xor_b32 v3, v1, v0")
    a("  v_and_b32 v3, 7, v3")
    a("  v_lshl_add_u32 v10, v3, 4, v2")
    a("  v_xor_b32 v11, 64, v10")
    a("  v_add_u32 v11, 8192, v11")
    a("  s_lshl_b32 s63, s3, 1")
    a("  s_sub_u32 s63, s63, 8")
    a("  s_min_u32 s63, s63, 5")
    a("  s_lshl_b32 s21, s63, 11")
    a("  s_mul_i32 s23, s34, 3")
    a("  s_add_u32 s23, s23, s5")
    a("  s_sub_u32 s24, s23, 9")
    a("  s_min_u32 s23, s23, s24")
    a("  s_lshl_b32 s24, s63, 4")
    a("  s_add_u32 s24, s24, s4")
    a("  s_mul_i32 s24, s24, 1152")
    a("  s_mul_i32 s14, s35, 1152")
    a("  s_mov_b32 s15, 0x20000")
    a("  s_cmp_ge_u32 s3, 6")
    a("  s_waitcnt lgkmcnt(0)")
    stamp(a, 12, alt="alt2")
    a("  s_cbranch_scc1 K1_LW")
    def w_setup():
        a("  v_lshrrev_b32 v2, 2, v0")
        a("  v_and_b32 v3, 2, v1")
        a("  v_and_b32 v4, 3, v0")
        a("  v_xor_b32 v3, v3, v4")
        a("  v_lshlrev_b32 v3, 4, v3")
        a("  s_and_b32 s22, s3, 1")
        a("  s_cselect_b64 s[16:17], s[42:43], s[40:41]")
        a("  s_lshl_b32 s25, s5, 1")
        a("  s_add_u32 s25, s25, s22")
        a("  s_lshl_b32 s25, s25, 6")
        a("  s_mov_b32 s18, 663552")
        a("  s_cmp_eq_u32 s5, 9")
        a("  s_cselect_b32 s7, 36, 1152")
        a("  s_cselect_b32 s20, 20, 48")
        a("  s_cselect_b32 s25, 0, s25")
        a("  s_cselect_b64 s[16:17], s[16:17], s[38:39]")
        a("  s_cselect_b32 s18, 20736, s18")
        a("  v_min_u32 v3, s20, v3")
        a("  v_mad_u32_u24 v13, v2, s7, v3")
        a("  s_lshl_b32 s22, s22, 12")
        a("  s_add_u32 s22, s22, 12288")
        a("  s_lshl_b32 s27, s7, 4")
        a("  s_lshl_b32 s7, s7, 6")
        a("  s_mov_b32 s19, 0x20000")
    XF, WF, SX, SQ, SC_, ONE, IX = 32, 48, 64, 72, 80, 88, 92
    def loader(hasw):
        nt = 1 if hasw else 2
        order = []
        def dmas(c):
            b = (c % NSLOT) * SLOT
            l = [f"  s_lshl_b32 s8, s23, 7\n  s_add_u32 m0, s21, {b}\n  s_add_u32 s8, s8, s24\n  buffer_load_dwordx4 v10, s[12:15], s8 offen{NTX} lds",
                 f"  buffer_load_dwordx4 v11, s[12:15], s8 offen offset:1024{NTX} lds"]
            if not hasw:
                l += [f"  s_add_u32 s8, s8, {18432 - 2048}\n  buffer_load_dwordx4 v10, s[12:15], s8 offen offset:2048{NTX} lds",
                      f"  buffer_load_dwordx4 v11, s[12:15], s8 offen offset:3072{NTX} lds"]
            else:
                l += [f"  s_mul_i32 s9, s23, s7\n  s_add_u32 m0, s22, {b}\n  s_add_u32 s9, s9, s25\n  buffer_load_dwordx4 v13, s[16:19], s9 offen lds"]
                l += [f"  s_add_u32 m0, s22, {b + 1024 * i}\n  s_add_u32 s9, s9, s27\n  buffer_load_dwordx4 v13, s[16:19], s9 offen lds" for i in range(1, 4)]
            l[-1] += "\n  s_add_u32 s23, s23, 1\n  s_cmp_eq_u32 s23, 9\n  s_cselect_b32 s23, 0, s23"
            return [(c, t) for t in l]
        def put(l, n=99):
            for i in range(min(n, len(l))):
                c, t = l.pop(0); a(t); order.append(c)
        l = dmas(0)
        put(l, 2)
        if hasw: w_setup()
        put(l)
        for c in range(1, DEPTH): put(dmas(c))
        stamp(a, 13, alt="alt2")
        a("  v_and_b32 v2, 15, v0")
        a("  v_lshrrev_b32 v3, 1, v2")
        a("  v_xor_b32 v3, v3, v1")
        a("  v_lshlrev_b32 v3, 4, v3")
        a("  v_lshl_add_u32 v3, v2, 7, v3")
        a("  v_add_u32 v4, s21, v3")
        a("  v_xor_b32 v5, 64, v4")
        if hasw:
            a("  v_bfe_u32 v3, v0, 2, 2")
            a("  v_lshl_add_u32 v3, v1, 3, v3")
            a("  v_lshlrev_b32 v3, 6, v3")
            a("  v_and_b32 v6, 1, v1")
            a("  v_lshl_add_u32 v3, v6, 5, v3")
            a("  v_and_b32 v6, 3, v0")
            a("  v_lshl_add_u32 v3, v6, 3, v3")
            a("  v_add_u32 v6, s22, v3")
            a("  v_xor_b32 v7, 32, v6")
            a("  s_and_b32 s26, s3, 1")
            a("  s_lshl_b32 s26, s26, 7")
            a(f"  s_add_u32 s26, s26, {L_CS}")
            a("  v_lshl_add_u32 v9, v2, 2, s26")
        a("  s_lshl_b32 s26, s63, 7")
        a(f"  s_add_u32 s26, s26, {L_STAT}")
        a("  v_lshl_add_u32 v8, v2, 3, s26")
        for i in range(24): a(f"  v_mov_b32 v{SX + i}, 0")
        for i in range(4): a(f"  v_mov_b32 v{ONE + i}, 0x3f803f80")
        a("  v_bfe_u32 v3, v0, 1, 1")
        a("  v_mul_u32_u24 v3, 0xaaaa, v3")
        a(f"  v_add_u32 v{IX}, 0x4444, v3")
        a(f"  s_mov_b32 s6, {f32(QSCALE)}")
        a("  s_cmp_eq_u32 s5, 9")
        a("  s_cselect_b32 s6, 1.0, s6")
        a(f"  v_mov_b32 v{IX + 1}, s6")
        flag_slot(a)
        gu_setup(a)
        for c in range(9):
            a(f"  s_waitcnt vmcnt({len(order) - 1 - max(i for i, x in enumerate(order) if x == c)})")
            if "ldst" in OPT: stamp(a, 12 + c, alt="alt3")
            a("  s_barrier")
            regs = (4, 5, 6, 7) if hasw else (4, 5)
            if c % NSLOT in (3, 6):
                for r in regs: a(f"  v_add_u32 v{r}, {3 * SLOT}, v{r}")
            if c == NSLOT:
                for r in regs: a(f"  v_subrev_u32 v{r}, {6 * SLOT}, v{r}")
            b = (c % NSLOT % 3) * SLOT
            l = dmas(c + DEPTH) if c + DEPTH < 9 else []
            def sums():
                mm = []
                for i in range(nt):
                    x = XF + 8 * i
                    for kk in range(2):
                        mm.append(f"  v_mfma_f32_16x16x32_bf16 v[{SQ + 4 * i}:{SQ + 4 * i + 3}], v[{x + 4 * kk}:{x + 4 * kk + 3}], v[{x + 4 * kk}:{x + 4 * kk + 3}], v[{SQ + 4 * i}:{SQ + 4 * i + 3}]")
                    mm.append(f"  v_smfmac_f32_16x16x64_bf16 v[{SX + 4 * i}:{SX + 4 * i + 3}], v[{ONE}:{ONE + 3}], v[{x}:{x + 7}], v{IX}")
                for t in range(2 if hasw else 0):
                    mm.append(f"  v_smfmac_f32_16x16x64_bf16 v[{SC_ + 4 * t}:{SC_ + 4 * t + 3}], v[{ONE}:{ONE + 3}], v[{WF + 8 * t}:{WF + 8 * t + 7}], v{IX}")
                return mm
            rd = [f"  ds_read_b128 v[{XF + 8 * i + 4 * kk}:{XF + 8 * i + 4 * kk + 3}], v{4 + kk} offset:{b + 2048 * i}" for i in range(nt) for kk in range(2)]
            rd += [f"  ds_read_b64_tr_b16 v[{WF + 8 * t + 4 * kk + 2 * j}:{WF + 8 * t + 4 * kk + 2 * j + 1}], v{6 + t} offset:{b + 2048 * kk + 256 * j}"
                   for t in range(2 if hasw else 0) for kk in range(2) for j in range(2)]
            work = (["  s_waitcnt lgkmcnt(0)"] + sums() if c else []) + rd
            put(l, 2)
            per = -(-len(work) // (len(l) + 1))
            while work:
                for t in work[:per]: a(t)
                work = work[per:]
                put(l, 1)
            put(l)
            if c == 8:
                a("  s_waitcnt lgkmcnt(8)" if hasw else "  s_waitcnt lgkmcnt(2)")
                for i, t in enumerate(sums()):
                    if i == 3: a("  s_waitcnt lgkmcnt(0)")
                    a(t)
            if c == 9 - DEPTH:
                assert c >= 4
                for i in range(GUB[0]): gu(a, i); order.append(-1)
            if c == 7:
                for i, m in enumerate((0x22222222, 0x44444444, 0x88888888)):
                    a(f"  s_mov_b32 s{26 + 2 * i}, {hex(m)}")
                    a(f"  s_mov_b32 s{27 + 2 * i}, {hex(m)}")
        def each(f):
            for i in range(nt): a(f(SX + 4 * i, SQ + 4 * i))
        each(lambda x, q: f"  v_cndmask_b32 v{q}, v{q}, v{q + 1}, s[26:27]")
        each(lambda x, q: f"  v_cndmask_b32 v{q}, v{q}, v{q + 2}, s[28:29]")
        each(lambda x, q: f"  v_cndmask_b32 v{q}, v{q}, v{q + 3}, s[30:31]")
        each(lambda x, q: f"  v_add_f32 v{x}, v{x}, v{x + 2}")
        each(lambda x, q: f"  v_mul_f32 v{q}, {f32(1.0 / 576)}, v{q}")
        each(lambda x, q: f"  v_mul_f32 v{x}, {f32(-1.0 / 576)}, v{x}           ; -mean")
        each(lambda x, q: f"  v_fma_f32 v{q}, -v{x}, v{x}, v{q}          ; var")
        each(lambda x, q: f"  v_max_f32 v{q}, 0, v{q}")
        each(lambda x, q: f"  v_add_f32 v{q}, {f32(1e-5)}, v{q}")
        each(lambda x, q: f"  v_rsq_f32 v{q}, v{q}")
        if hasw:
            for t in range(2): a(f"  v_add_f32 v{SC_ + 4 * t}, v{SC_ + 4 * t}, v{SC_ + 4 * t + 2}")
            a("  s_mov_b64 exec, 0xffff")
            a(f"  ds_write2_b32 v9, v{SC_}, v{SC_ + 4} offset0:0 offset1:16")
        a("  s_mov_b32 exec_lo, 0x00f0000f")
        a("  s_mov_b32 exec_hi, 0xf0000f00")
        each(lambda x, q: f"  v_mul_f32 v{x + 1}, v{q}, v{IX + 1}")
        for i in range(nt):
            a(f"  ds_write_b64 v8, v[{SX + 4 * i}:{SX + 4 * i + 1}] offset:{128 * i}")
        a("  s_mov_b64 exec, -1")
        a("  s_waitcnt lgkmcnt(0)")
        a("  s_branch K2_B")
    assert GUB[1:4] == [0, 0, 0]
    loader(False)
    a("K1_LW:")
    loader(True)

    a("K1_COMP:")
    a("  s_setprio 1")
    if "cp0" in OPT:
        a("  s_cmp_lg_u32 s3, 0")
        a("  s_cbranch_scc1 K1_NOPF")
        a("  s_getpc_b64 s[68:69]")
        a("K1_PC0:")
        a(f"  s_sub_u32 s68, s68, K1_PC0-{KNAME}")
        a("  s_subb_u32 s69, s69, 0")
        a("  v_lshlrev_b32 v120, 7, v0")
        a("  global_load_dword v120, v120, s[68:69]")
        a("K1_NOPF:")
    a("  s_waitcnt lgkmcnt(0)")
    flag_slot(a)
    srd(a, 8, 46, 47, WS_SIZE)
    a("  s_cmp_lg_u32 s3, 1")
    a("  s_cbranch_scc1 K1_NORS")
    zero_counter(a)
    a("K1_NORS:")
    a("  s_lshr_b32 s6, s3, 1                    ; tw")
    a("  s_and_b32 s7, s3, 1                     ; cw")
    a("  v_lshrrev_b32 v1, 4, v0                 ; g")
    a("  v_and_b32 v2, 15, v0                    ; j")
    a("  v_lshrrev_b32 v3, 1, v2")
    a("  v_xor_b32 v3, v3, v1")
    a("  v_lshlrev_b32 v3, 4, v3")
    a("  v_lshl_add_u32 v3, v2, 7, v3")
    a("  s_mul_i32 s20, s6, 6144")
    a("  v_add_u32 v4, s20, v3")
    a("  v_xor_b32 v5, 64, v4")
    a("  v_bfe_u32 v3, v0, 2, 2")
    a("  v_lshl_add_u32 v3, v1, 3, v3")
    a("  v_lshlrev_b32 v3, 6, v3")
    a("  v_and_b32 v6, 1, v1")
    a("  v_lshl_add_u32 v3, v6, 5, v3")
    a("  v_and_b32 v6, 3, v0")
    a("  v_lshl_add_u32 v3, v6, 3, v3")
    a("  s_lshl_b32 s20, s7, 12")
    a("  s_add_u32 s20, s20, 12288")
    a("  v_add_u32 v6, s20, v3                   ; tile 0")
    a("  v_xor_b32 v7, 32, v6                    ; tile 1")
    ACC, CS, SX, FR = 20, 44, 52, 80
    for i in range(24): a(f"  v_mov_b32 v{ACC + i}, 0")
    a("  s_mul_i32 s20, s6, 384")
    a(f"  s_add_u32 s20, s20, {L_STAT}")
    a("  v_lshl_add_u32 v10, v2, 3, s20")
    a("  s_lshl_b32 s20, s7, 7")
    a(f"  s_add_u32 s20, s20, {L_CS}")
    a("  v_lshl_add_u32 v12, v1, 4, s20")
    a("  s_mul_i32 s20, s3, 3840")
    a(f"  s_add_u32 s20, s20, {L_TR}")
    a("  v_mul_u32_u24 v14, 80, v2")
    a("  v_lshl_add_u32 v14, v1, 3, v14")
    a("  v_add_u32 v14, s20, v14")
    a("  v_lshrrev_b32 v3, 2, v0")
    a("  v_and_b32 v17, 3, v0")
    a("  v_mul_u32_u24 v15, 80, v3")
    a("  v_lshl_add_u32 v15, v17, 4, v15")
    a("  v_add_u32 v15, s20, v15")
    a("  v_mul_u32_u24 v16, 1152, v3")
    a("  v_lshl_add_u32 v16, v17, 4, v16         ; Q store")
    a("  s_mul_i32 s21, s6, 48")
    a("  s_add_u32 s21, s21, s4")
    a("  s_mul_i32 s20, s21, 1152")
    a("  s_lshl_b32 s23, s5, 7")
    a("  s_add_u32 s20, s20, s23")
    a("  s_lshl_b32 s23, s7, 6")
    a("  s_add_u32 s23, s20, s23")
    a("  s_add_u32 s24, s23, 18432")
    a("  s_add_u32 s25, s23, 36864")
    srd(a, 12, 46, 47, 0)
    a("  s_mul_i32 s14, s35, 1152")
    a("  s_mov_b64 s[32:33], -1")
    a("  s_lshl_b32 s62, s5, 1")
    a("  s_add_u32 s62, s62, s7")
    a("  s_cmp_lt_u32 s62, 18")
    a("  s_cbranch_scc1 K1_GO")
    a("  s_cmp_eq_u32 s62, 19")
    a("  s_cbranch_scc1 K1_VA")
    a("  v_lshlrev_b32 v16, 5, v3")
    a("  v_lshl_add_u32 v16, v17, 4, v16")
    a("  v_lshlrev_b32 v17, 2, v3")
    a("  s_mov_b32 s32, 0x33333333")
    a("  s_mov_b32 s33, 0x33333333")
    a("  s_lshl_b32 s23, s21, 5")
    a(f"  s_add_u32 s23, s23, {WS_KM}")
    a("  s_add_u32 s24, s23, 512")
    a("  s_add_u32 s25, s23, 1024")
    a("  s_lshl_b32 s14, s35, 5")
    a(f"  s_add_u32 s14, s14, {WS_KM}")
    a("  s_lshl_b32 s20, s21, 2")
    a(f"  s_add_u32 s20, s20, {WS_KL}")
    a("  s_branch K1_GO")
    a("K1_VA:")
    a("  v_and_b32 v15, 1, v1")
    a("  v_lshlrev_b32 v16, 4, v15")
    a("  v_lshlrev_b32 v15, 3, v15")
    a("  v_and_or_b32 v15, v3, 3, v15")
    a("  v_mul_u32_u24 v15, 80, v15")
    a("  v_lshl_add_u32 v15, v17, 3, v15")
    a("  v_and_b32 v17, 32, v0")
    a("  s_mul_i32 s20, s3, 3840")
    a(f"  s_add_u32 s20, s20, {L_TR}")
    a("  v_add3_u32 v15, v15, v17, s20")
    a("  v_lshl_add_u32 v16, v2, 5, v16")
    a("  v_mad_u32_u24 v16, v17, 10, v16")
    a("  s_mul_i32 s23, s21, 40")
    a(f"  s_add_u32 s23, s23, {WS_VT}")
    a("  s_add_u32 s24, s23, 640")
    a("  s_add_u32 s25, s23, 1280")
    a("  s_mul_i32 s14, s35, 40")
    a(f"  s_add_u32 s14, s14, {WS_VT}")
    a("K1_GO:")
    def reads(c, s):
        b = (c % NSLOT % 3) * SLOT
        f = FR + 20 * s
        l = []
        for t in range(2):
            for j in range(2):
                l.append(f"  ds_read_b64_tr_b16 v[{f + 4 * t + 2 * j}:{f + 4 * t + 2 * j + 1}], v{6 + t} offset:{b + 2048 * s + 256 * j}")
        x = [f"  ds_read_b128 v[{f + 8 + 4 * i}:{f + 11 + 4 * i}], v{4 + s} offset:{b + 2048 * i}" for i in range(3)]
        return [l[0], l[1], x[0], l[2], l[3], x[1], x[2]]
    def mfma(d, x, y):
        a(f"  v_mfma_f32_16x16x32_bf16 v[{d}:{d + 3}], v[{x}:{x + 3}], v[{y}:{y + 3}], v[{d}:{d + 3}]")
    def mf(s, t, i):
        mfma(ACC + 8 * i + 4 * t, FR + 20 * s + 4 * t, FR + 20 * s + 8 + 4 * i)
    mains = [(3, 0, 0), (5, 1, 0), (6, 0, 1), (6, 1, 1), (7, 0, 2), (7, 1, 2)]
    for c in range(9):
        a("  s_barrier")
        if c in (0, 8): stamp(a, 12 + c // 8, alt="alt2")
        stamp(a, 12 + c, alt="alt3")
        if c % NSLOT in (3, 6):
            for r in range(4, 8): a(f"  v_add_u32 v{r}, {3 * SLOT}, v{r}")
        if c == NSLOT:
            for r in range(4, 8): a(f"  v_subrev_u32 v{r}, {6 * SLOT}, v{r}")
        r0 = reads(c, 0)
        for i in range(7):
            a(r0[i])
            if c and 1 <= i:
                if i in (1, 3, 5): a(f"  s_waitcnt lgkmcnt({i + 1 + 7 - mains[i][0]})")
                mf(1, *mains[i - 1][1:])
        r1 = reads(c, 1)
        a(r1.pop(0)); a(r1.pop(0))
        last = None
        for n, t, i in mains:
            if n != last: a(f"  s_waitcnt lgkmcnt({14 - len(r1) - n})")
            last = n
            mf(0, t, i)
            if r1: a(r1.pop(0))
    for i, m in enumerate(mains):
        if i % 2 == 0: a(f"  s_waitcnt lgkmcnt({7 - mains[i + 1][0]})")
        mf(1, *m[1:])
    a("  s_barrier")
    stamp(a, 14, alt="alt2")
    for t in range(2):
        a(f"  ds_read_b128 v[{CS + 4 * t}:{CS + 4 * t + 3}], v12 offset:{64 * t}")
    for i in range(3):
        a(f"  ds_read_b64 v[{SX + 4 * i}:{SX + 4 * i + 1}], v10 offset:{128 * i}")
    a("  s_waitcnt lgkmcnt(0)")
    PK, TR = 80, 92
    def scale(i):
        st = SX + 4 * i
        for t in range(2):
            d = ACC + 8 * i + 4 * t
            for h in range(2):
                r = d + 2 * h
                a(f"  v_pk_fma_f32 v[{r}:{r + 1}], v[{CS + 4 * t + 2 * h}:{CS + 4 * t + 2 * h + 1}], v[{st}:{st + 1}], v[{r}:{r + 1}] op_sel_hi:[1,0,1]")
                a(f"  v_pk_mul_f32 v[{r}:{r + 1}], v[{r}:{r + 1}], v[{st}:{st + 1}] op_sel:[0,1] op_sel_hi:[1,1]")
            a(f"  v_cvt_pk_bf16_f32 v{PK + 4 * i + 2 * t}, v{d}, v{d + 1}")
            a(f"  v_cvt_pk_bf16_f32 v{PK + 1 + 4 * i + 2 * t}, v{d + 2}, v{d + 3}")
    def put(i):
        scale(i)
        o = 1280 * i if i < 2 else 0
        a(f"  ds_write2_b64 v14, v[{PK + 4 * i}:{PK + 4 * i + 1}], v[{PK + 4 * i + 2}:{PK + 4 * i + 3}] offset0:{o // 8} offset1:{o // 8 + 4}")
        return o
    a("  s_cmp_eq_u32 s62, 19")
    a("  s_cbranch_scc1 K1_V")
    for i in range(3):
        a(f"  ds_read_b128 v[{TR + 4 * i}:{TR + 4 * i + 3}], v15 offset:{put(i)}")
    a("  s_mov_b64 exec, s[32:33]")
    for i in range(3):
        a(f"  s_waitcnt lgkmcnt({4 - 2 * i})")
        a(f"  buffer_store_dwordx4 v[{TR + 4 * i}:{TR + 4 * i + 3}], v16, s[12:15], s{23 + i} offen sc1")
    a("  s_cmp_lg_u32 s5, 9")
    a("  s_cbranch_scc1 K2_A")
    a("  s_lshl_b32 s14, s35, 2")
    a(f"  s_add_u32 s14, s14, {WS_KL}")
    a("  s_mov_b32 exec_lo, 0x44444444")
    a("  s_mov_b32 exec_hi, 0x44444444")
    for i in range(3):
        a(f"  buffer_store_dword v{TR + 4 * i + 3}, v17, s[12:15], s20 offen offset:{64 * i} sc1")
    a("  s_mov_b64 exec, -1")
    a("  s_branch K2_A")
    a("K1_V:")
    for i in range(3):
        o = put(i)
        a(f"  ds_read_b64_tr_b16 v[{TR + 4 * i}:{TR + 4 * i + 1}], v15 offset:{o}")
        a(f"  ds_read_b64_tr_b16 v[{TR + 4 * i + 2}:{TR + 4 * i + 3}], v15 offset:{o + 320}")
    a("  s_mov_b32 exec_hi, 0x00c000c0")
    for i in range(3):
        a(f"  s_waitcnt lgkmcnt({6 - 3 * i})")
        a(f"  buffer_store_dwordx4 v[{TR + 4 * i}:{TR + 4 * i + 3}], v16, s[12:15], s{23 + i} offen sc1")
    a("  s_mov_b64 exec, -1")
    a("  s_branch K2_A")

    a("K1_SP0:")
    a("  s_cmp_ge_u32 s2, 256")
    a("  s_cbranch_scc1 K2_EXIT")
    stamp_init(a)
    kernargs()
    if "nocp" not in OPT:
        a("  s_getpc_b64 s[68:69]")
        a("K1_PC1:")
        a(f"  s_sub_u32 s68, s68, K1_PC1-{KNAME}")
        a("  s_subb_u32 s69, s69, 0")
        a("  s_lshl_b32 s20, s3, 13")
        a("  v_lshl_add_u32 v125, v0, 7, s20")
        a(f"  v_min_u32 v125, K2_LAST-{KNAME}-4, v125")
        a("  global_load_dword v125, v125, s[68:69]")
    a("  s_sub_u32 s4, s2, 240                   ; sigma 0..15")
    a("  s_lshl_b32 s60, s4, 7")
    a(f"  s_add_u32 s60, s60, {WS_FLAG + 24 * 128}")
    a("  v_lshrrev_b32 v1, 4, v0")
    a("  s_cmp_lg_u32 s3, 7")
    a("  s_cbranch_scc1 K1_TASK")
    a("  s_waitcnt lgkmcnt(0)")
    srd(a, 8, 46, 47, WS_SIZE)
    a("  v_lshlrev_b32 v120, 4, v0")
    for i in range(4): a(f"  v_mov_b32 v{116 + i}, 0")
    a("  v_lshlrev_b32 v121, 7, v0")
    a("  s_lshl_b32 s20, s4, 14")
    a(f"  s_add_u32 s20, s20, {WS_FLAG}")
    a("  s_add_u32 s21, s20, 8192")
    for i in range(2): a(f"  buffer_store_dword v116, v121, s[8:11], s{20 + i} offen sc1")
    a("  s_lshl_b32 s20, s4, 12")
    a(f"  s_add_u32 s20, s20, {WS_KEYS}")
    for i in range(4):
        a(f"  buffer_store_dwordx4 v[116:119], v120, s[8:11], s20 offen offset:{1024 * i} sc1")
    a("  s_barrier")
    a("  s_lshl_b32 s20, s4, 2")
    a("  v_mov_b32 v120, s20")
    a("  v_mov_b32 v121, 1")
    a("  s_mov_b64 exec, 1")
    a("  s_waitcnt vmcnt(0)")
    a("  global_store_dword v120, v121, s[66:67] sc1")
    a("  s_mov_b64 exec, -1")
    zero_counter(a)
    a("  v_and_b32 v2, 15, v0")
    a("  v_cmp_gt_u32 vcc, 8, v2")
    a("  v_mov_b32 v3, 0x3f803f80")
    a("  v_mul_u32_u24 v4, 640, v1")
    a("  v_lshl_add_u32 v4, v2, 2, v4")
    a("  v_cndmask_b32 v3, 0, v3, vcc")
    a("  s_mul_i32 s20, s4, 5120")
    a(f"  s_add_u32 s20, s20, {WS_VT + 576}")
    a(f"  buffer_store_dword v3, v4, s[8:11], s20 offen sc1")
    a(f"  buffer_store_dword v3, v4, s[8:11], s20 offen offset:2560 sc1")
    a("  s_branch K1_SPD")
    a("K1_TASK:")
    a("  v_bfe_u32 v13, v0, 3, 1                 ; b")
    a("  v_bfe_u32 v14, v0, 5, 1                 ; e/4")
    a("  v_lshl_add_u32 v13, v14, 1, v13         ; ea%4")
    a("  v_bfe_u32 v15, v0, 4, 1                 ; p")
    a("  v_mul_u32_u24 v15, 18, v15")
    a("  v_add_u32 v16, v15, v13")
    a("  v_mul_u32_u24 v13, 72, v13")
    a("  v_add_u32 v17, v15, v13")
    a("  v_and_b32 v14, 7, v0")
    a("  v_lshlrev_b32 v14, 4, v14")
    a("  v_bfe_u32 v2, v0, 2, 2")
    a("  v_and_b32 v3, 3, v0")
    a("  v_lshl_add_u32 v24, v1, 3, v2")
    a("  v_lshlrev_b32 v24, 7, v24")
    a("  v_lshl_add_u32 v24, v3, 3, v24")
    a("  s_lshl_b32 s22, s3, 13")
    a("  v_add_u32 v24, s22, v24")
    a("  v_lshlrev_b32 v25, 4, v0")
    a("  s_movk_i32 s23, 1152")
    a("  s_lshl_b32 s34, s3, 4")
    a("  s_add_u32 s34, s34, s4")
    a("  s_waitcnt lgkmcnt(0)")
    srd(a, 28, 44, 45, 663552)
    a("  s_movk_i32 s45, 0xff")
    srd(a, 8, 46, 47, WS_SIZE)
    a("  s_barrier")
    for n in range(2):
        if n: a("  s_add_u32 s34, s34, 112")
        a("  s_mul_i32 s5, s34, 3641")
        a("  s_lshr_b32 s5, s5, 16                   ; step")
        a("  s_mul_i32 s6, s5, 18")
        a("  s_sub_u32 s6, s34, s6")
        a("  s_and_b32 s7, s6, 1                     ; hB")
        a("  s_lshr_b32 s6, s6, 1")
        a("  s_mul_i32 s21, s5, 72")
        a(f"  s_lshl_b32 s{24 + n}, s6, 3")
        a(f"  s_add_u32 s{24 + n}, s{24 + n}, s21")
        a(f"  s_add_u32 s{24 + n}, s{24 + n}, s7")
        a(f"  s_lshl_b32 s{24 + n}, s{24 + n}, 10")
        a(f"  s_add_u32 s{24 + n}, s{24 + n}, {WS_WOL}")
        a("  s_lshl_b32 s26, s7, 2")
        a("  s_add_u32 s21, s21, s26")
        a("  s_add_u32 s26, s7, 16")
        a("  s_cmp_eq_u32 s5, 8")
        a("  s_cselect_b32 s21, s26, s21")
        a("  s_cselect_b64 vcc, -1, 0")
        a("  s_cselect_b32 s26, 0x120, 8             ; row step of gb%2")
        a("  s_mul_i32 s21, s21, 1152")
        a("  s_mul_i32 s26, s26, 1152")
        a("  s_lshl_b32 s6, s6, 7")
        a("  s_add_u32 s21, s21, s6")
        a("  s_cmp_ge_u32 s34, 162")
        a(f"  s_cselect_b32 s{24 + n}, 0x10000000, s{24 + n}")
        a("  s_cselect_b32 s21, 0x10000000, s21")
        a("  s_add_u32 s26, s26, s21")
        a(f"  v_cndmask_b32 v{18 + n}, v16, v17, vcc")
        a(f"  v_mad_u32_u24 v{18 + n}, v{18 + n}, s23, v14")
        for gb in range(4):
            a(f"  s_add_u32 m0, s22, {4096 * n + 1024 * gb}")
            a(f"  s_add_u32 s27, s{(21, 26)[gb % 2]}, {36 * 1152 * (gb // 2)}")
            a(f"  buffer_load_dwordx4 v{18 + n}, s[28:31], s27 offen{NT} lds")
    for n in range(2):
        a(f"  s_waitcnt vmcnt(4)")
        for t in range(4):
            a(f"  ds_read_b64_tr_b16 v[{32 + 16 * n + 4 * t}:{33 + 16 * n + 4 * t}], v24 offset:{4096 * n + 32 * t}")
            a(f"  ds_read_b64_tr_b16 v[{34 + 16 * n + 4 * t}:{35 + 16 * n + 4 * t}], v24 offset:{4096 * n + 32 * t + 512}")
        for t in range(4):
            a(f"  s_waitcnt lgkmcnt({6 - 2 * t})")
            a(f"  buffer_store_dwordx4 v[{32 + 16 * n + 4 * t}:{35 + 16 * n + 4 * t}], v25, s[8:11], s{24 + n} offen sc1")
            if t < 3: a(f"  s_add_u32 s{24 + n}, s{24 + n}, 2048")
    a("  s_cmp_ge_u32 s3, 4")
    a("  s_cbranch_scc1 K1_SPD")
    a("  s_barrier                               ; S")
    a("  s_branch K2_A")
    a("K1_SPD:")
    gu_setup(a)
    a("  s_waitcnt vmcnt(0)")
    a("  s_branch K2_B")
```

```python
from asmlib import *
from layout import *

NA, NB = 3, 5
L_PA = 0
L_PB = 20480
L_H = 0
HI = 1184
HS = 4 * HI
L_ST = 18944
L_MR = L_ST + 512
L_X = 20480
L_XS = L_X + 9216
L_TOK = L_XS + 256
L_TOP = L_TOK + 256
L_ACT = L_TOP + 256
L_RED = L_ACT + 512
L_XI = L_D
def q_off(t): return 1280 * t
SAFE = 0 if 'forcesafe' in OPT else 0x53800000

class Wave:
    def __init__(self, a, KM, V, KL, idx):
        self.a, self.KM, self.V, self.KL, self.idx = a, KM, V, KL, idx
    def pv(self, O, buf, u, k):
        v = self.V + 16 * u + 4 * k
        self.a(f"  v_smfmac_f32_32x32x32_bf16 v[{O}:{O + 15}], v[{v}:{v + 3}], v[{buf + 8 * k}:{buf + 8 * k + 7}], v{self.idx} abid:1")
    def qk2(self, buf, u, QL):
        k = self.KL + 2 * u
        self.a(f"  v_mfma_f32_32x32x4_2b_bf16 v[{buf}:{buf + 31}], v[{k}:{k + 1}], v[{QL}:{QL + 1}], 0")
    def qkm(self, buf, u, h, QM):
        k = self.KM + 8 * u + 4 * h
        b = buf + 16 * h
        self.a(f"  v_mfma_f32_32x32x16_bf16 v[{b}:{b + 15}], v[{k}:{k + 3}], v[{QM}:{QM + 3}], v[{b}:{b + 15}]")
    def unit(self, X, Y, O, u, prev=None, nxt=None, hook=None):
        a = self.a
        hook = hook or (lambda p: None)
        E = lambda i0, i1: [a(f"  v_exp_f32 v{X + i}, v{X + i}") for i in range(i0, i1)]
        E(0, 2)
        if callable(prev): prev()
        elif prev: self.pv(prev[0], Y, prev[1], 3)
        E(2, 5)
        hook("pre2b")
        if nxt: self.qk2(Y, nxt[0], nxt[2])
        E(5, 9)
        hook("early")
        E(9, 13)
        hook("prepv0")
        self.pv(O, X, u, 0)
        E(13, 16)
        hook("mid")
        E(16, 18)
        self.pv(O, X, u, 1)
        E(18, 21)
        hook("preqk")
        if nxt: self.qkm(Y, nxt[0], 0, nxt[1])
        E(21, 24)
        if nxt: self.qkm(Y, nxt[0], 1, nxt[1])
        E(24, 27)
        hook("prepv2")
        self.pv(O, X, u, 2)
        E(27, 30)
        hook("late")
        E(30, 32)

def pa_slot(q):
    return L_PB + 10240 if q == 0 else L_PA + (q % 2) * 10240
def kv_setup(a, skey):
    a(f"  s_lshl_b32 s20, {skey}, 10")
    a(f"  s_add_u32 s20, s20, {WS_KM}")
    a(f"  s_mul_i32 s21, {skey}, 1280")
    a(f"  s_add_u32 s21, s21, {WS_VT}")
    a(f"  s_lshl_b32 s22, {skey}, 7")
    a(f"  s_add_u32 s22, s22, {WS_KL}")
def kv_list(a, w, u, vK, vV, vKL):
    l = [(("k", u), None, f"  buffer_load_dword v{w.KL + 2 * u}, {vKL}, s[8:11], s22 offen offset:{256 * u} sc1")]
    for h in range(2):
        r = w.KM + 8 * u + 4 * h
        l.append((("k", u), "  s_add_u32 s20, s20, 2048" if h == 0 and u else None,
                  f"  buffer_load_dwordx4 v[{r}:{r + 3}], {vK}, s[8:11], s20 offen offset:{1024 * h} sc1"))
    for k in range(4):
        r = w.V + 16 * u + 4 * k
        l.append((("v", u, k), "  s_add_u32 s21, s21, 2560" if k == 0 and u else None,
                  f"  buffer_load_dwordx4 v[{r}:{r + 3}], {vV}, s[8:11], s21 offen offset:{640 * k} sc1"))
    return l

BEFORE = [True]
def cleanup(a, regs, K):
    for st, m in enumerate(("row_half_mirror", "quad_perm:[2,3,0,1]", "quad_perm:[1,0,3,2]")):
        for x, t in regs:
            a(f"  v_mov_b32_dpp v{t}, v{x} {m} row_mask:0xf bank_mask:0xf bound_ctrl:1")
        for (x, t), k in zip(regs, K):
            a(f"  v_med3_u32 v{x}, v{x}, v{t}, v{k + st}")

GU, DN, DD = 88, 160, 200
C_DN, C_GU = 240, 241
def tail_scalars(f, isB):
    f("  s_lshl_b32 s68, s3, 10")
    f("  s_and_b32 s69, s2, 7")
    f("  s_lshl_b32 s69, s69, 2")
    f("  s_add_u32 s69, s69, s3")
    f("  s_lshl_b32 s69, s69, 11")
    f(f"  s_add_u32 s69, s69, {WS_KEYS}")
    f("  s_lshl_b32 s71, s3, 7")
    f(f"  s_mul_i32 s46, s3, {8 * PSTR}")
    f("  s_lshl_b32 s47, s56, 7")
    f("  s_add_u32 s46, s46, s47")
    f(f"  s_add_u32 s46, s46, {WS_PART}")
    f(f"  s_add_u32 s47, s46, {64 * PSTR}")
    f(f"  s_add_u32 s48, s46, {128 * PSTR}")
    f.lines.append("  s_cmp_ge_u32 s3, 2\n  s_cselect_b32 s48, 0x10000000, s48")
    f("  s_lshl_b32 s49, s3, 5")
    f(f"  s_add_u32 s49, s49, {L_TOP}")
    f("  s_bfe_i32 s50, s3, 0x10000")
    f("  s_lshl_b32 s54, s3, 2")
    f("  s_mul_i32 s72, s6, 9216")
    f("  s_mul_i32 s73, s56, 36864")
    f("  s_add_u32 s73, s73, s72")
    if isB:
        f("  s_mul_i32 s53, s6, 2304")
        f("  s_add_u32 s53, s53, s5")
        f(f"  s_mul_i32 s52, s6, {HS}")
        f("  s_lshl_b32 s51, s6, 4")
        f(f"  s_add_u32 s51, s51, {L_MR}")
        f(f"  s_mul_i32 s36, s56, {PSTR}")
        f(f"  s_add_u32 s36, s36, {WS_PART}")
        f("  s_lshl_b32 s37, s6, 10")
        f("  s_add_u32 s37, s37, s36")
        f("  s_add_u32 s37, s37, 16384")
        f("  s_lshl_b32 s38, s6, 12")
        f("  s_add_u32 s36, s36, s38")
        f("  s_lshl_b32 s38, s4, 3")
        f("  s_sub_u32 s38, 2047, s38")
        f("  s_lshl_b32 s39, s4, 5")
        f(f"  s_add_u32 s39, s39, {WS_KEYS}")
        f("  s_lshl_b32 s55, s4, 7")
        f(f"  s_add_u32 s55, s55, {WS_STAT}")
    else:
        f("  s_bfe_u32 s36, s56, 0x20001")
        f("  s_lshl_b32 s36, s36, 2")
        f("  s_lshr_b32 s37, s56, 3")
        f("  s_lshl_b32 s37, s37, 1")
        f("  s_and_b32 s38, s56, 1")
        f("  s_add_u32 s37, s37, s38")
        f("  s_lshl_b32 s38, s37, 8")
        f("  s_lshl_b32 s37, s37, 5")
        f("  s_lshl_b32 s39, s6, 7")
        f(f"  s_add_u32 s39, s39, {L_ST}")

def ffn_consts_b(a):
    a("  v_lshrrev_b32 v1, 4, v0                 ; gb")
    a("  v_and_b32 v2, 15, v0")
    a("  v_bfe_u32 v3, v0, 1, 1                  ; p")
    a("  v_and_b32 v7, 7, v0")
    a("  v_lshrrev_b32 v5, 1, v1")
    a("  v_mul_u32_u24 v5, 9216, v5")
    a("  v_and_b32 v6, 1, v1")
    a("  v_mul_u32_u24 v6, 576, v6")
    a("  v_add_u32 v5, v5, v6")
    a("  v_lshl_add_u32 v5, v2, 2, v5")
    a(f"  v_add_u32 v{C_DN}, {L_D}, v5")
    a("  v_lshrrev_b32 v5, 1, v1")
    a("  v_lshlrev_b32 v5, 4, v5")
    a("  v_and_b32 v6, 1, v1")
    a("  v_bfe_u32 v8, v0, 3, 1")
    a("  v_lshl_add_u32 v6, v8, 1, v6            ; (k>>2)&3")
    a("  v_lshl_add_u32 v5, v6, 2, v5")
    a("  v_bfe_u32 v8, v0, 2, 1")
    a("  v_add_u32 v5, v5, v8")
    a("  v_lshlrev_b32 v5, 6, v5")
    a("  v_xor_b32 v6, s6, v6")
    a("  v_lshl_add_u32 v5, v6, 4, v5")
    a(f"  v_mul_u32_u24 v6, {L_U - L_G}, v3")
    a("  v_add_u32 v5, v5, v6")
    a("  v_and_b32 v6, 1, v0")
    a("  v_lshl_add_u32 v5, v6, 3, v5")
    a(f"  v_add_u32 v{C_GU}, {L_G}, v5")

def ffn_prep(a, isB):
    a("  v_lshrrev_b32 v1, 4, v0                 ; gb")
    a("  v_bfe_u32 v3, v0, 1, 1                  ; p")
    a("  v_and_b32 v7, 7, v0")
    a("  v_lshrrev_b32 v2, 3, v0")
    if isB:
        a("  v_mul_u32_u24 v4, 1152, v2")
        a("  v_and_b32 v5, 4, v2")
        a("  v_xor_b32 v5, v5, v7")
        a("  v_lshl_add_u32 v4, v5, 4, v4")
        for cb in range(sum(DNA), 9 if "nodn" not in OPT else 0):
            a(f"  s_add_u32 m0, s72, {L_D + 896 * cb}")
            a(f"  buffer_load_dwordx4 v4, s[28:31], s73 offen offset:{128 * cb}{NT} lds")
        a("  v_mul_u32_u24 v5, 0xaaaa, v3")
        a("  v_mul_u32_u24 v6, 0x5555, v3")
        a("  v_lshl_or_b32 v5, v6, 16, v5")
        a("  v_add_u32 v73, 0x88884444, v5")
        a("  v_and_b32 v6, 1, v2")
        a("  v_lshl_add_u32 v5, v1, 2, v6")
        a("  v_lshlrev_b32 v82, 4, v5")
        a("  v_lshlrev_b32 v5, 6, v2")
        a("  v_lshl_add_u32 v5, v7, 1, v5")
        a("  v_lshl_add_u32 v83, s6, 4, v5")
        a("  v_bfe_u32 v5, v0, 2, 2")
        a("  v_and_b32 v6, 1, v0")
        a("  v_lshl_add_u32 v5, v5, 1, v6")
        a("  v_lshlrev_b32 v5, 6, v5")
        a("  v_lshl_add_u32 v84, v1, 4, v5")
    a("  v_bfe_i32 v51, v0, 2, 1")
    a("  v_bfe_i32 v52, v0, 1, 1")
    a("  v_bfe_i32 v53, v0, 0, 1")
    a("  v_xor_b32 v52, v52, v51")
    a("  v_xor_b32 v53, v53, v51")
    for i in range(3): a(f"  v_not_b32 v{48 + i}, v{51 + i}")
    for n, bit in enumerate((3, 4, 5)):
        if isB and bit != 4: continue
        a(f"  v_bfe_i32 v5, v0, {bit}, 1")
        for i in range(3): a(f"  v_xor_b32 v{54 + 3 * n + i}, v5, v{48 + i}")
    a("  v_lshlrev_b32 v69, 2, v0")
    a("  v_and_b32 v87, 0x7c, v69")
    if not isB:
        for i in range(3): a(f"  v_xor_b32 v{63 + i}, s50, v{48 + i}")
        a("  v_and_b32 v5, 12, v51")
        a("  v_xor_b32 v66, v5, v69")
        a("  v_xor_b32 v67, 28, v66                  ; reversed")
        a("  v_lshlrev_b32 v78, 2, v7")
        a("  v_add_u32 v68, s49, v78")
    a("  v_lshlrev_b32 v70, 4, v0")
    a("  v_lshlrev_b32 v71, 5, v1")
    a("  v_lshl_add_u32 v71, v3, 4, v71          ; 32*ga + 16*p")
    a("  v_add_u32 v72, s68, v70")
    a(f"  v_mul_u32_u24 v5, {PSTR}, v2")
    a("  v_lshl_add_u32 v74, v7, 4, v5")
    a("  v_and_b32 v6, 0x200, v70")
    a("  v_lshl_add_u32 v6, v7, 6, v6")
    a("  v_and_b32 v5, 32, v71")
    a("  v_add3_u32 v75, v5, v6, s54")
    if not isB:
        a("  v_and_or_b32 v5, v2, 1, s36")
        a("  v_lshlrev_b32 v76, 2, v5")
        a("  v_and_b32 v6, 2, v51")
        a("  v_add_lshl_u32 v5, v5, v6, 4")
        a("  v_and_b32 v6, 12, v69")
        a("  v_add3_u32 v77, v5, v6, s38")
        a("  v_lshlrev_b32 v79, 6, v0")

def gather_keys(a):
    a("  s_mov_b32 s70, 0")
    stamp(a, 14)
    def loads(b):
        for m in range(8):
            a(f"  buffer_load_dword v{b + m}, v{66 + m % 2}, s[8:11], s69 offen offset:{256 * m} sc1")
    def check(b):
        a(f"  v_min3_u32 v24, v{b}, v{b + 1}, v{b + 2}")
        a(f"  v_min3_u32 v25, v{b + 3}, v{b + 4}, v{b + 5}")
        a(f"  v_min3_u32 v24, v24, v{b + 6}, v{b + 7}")
        for m in range(4): a(f"  v_max_u32 v{16 + 2 * m}, v{b + 2 * m}, v{b + 2 * m + 1}")
        a("  v_min_u32 v24, v24, v25")
        a("  v_cmp_eq_u32 vcc, 0, v24")
    if "pipe" in OPT:
        loads(96)
        a("K2_POLL:")
        loads(104)
        a("  s_waitcnt vmcnt(8)")
        check(96)
        a("  s_cbranch_vccz K2_GOT")
        loads(96)
        a("  s_add_u32 s70, s70, 1")
        a("  s_waitcnt vmcnt(8)")
        check(104)
    else:
        a("K2_POLL:")
        loads(96)
        a("  s_add_u32 s70, s70, 1")
        a("  s_waitcnt vmcnt(0)")
        check(96)
    a(f"  s_cmp_lt_u32 s70, {SPIN}")
    a("  s_cselect_b64 vcc, vcc, 0")
    a("  s_cbranch_vccnz K2_POLL")
    a("K2_GOT:")
    stamp(a, 16)
    cleanup(a, [(16, 17), (18, 19), (20, 21), (22, 23)], [48, 51, 48, 51])
    a("  v_max_u32 v16, v16, v18")
    a("  v_max_u32 v18, v20, v22")
    cleanup(a, [(16, 17), (18, 19)], [48, 51])
    a("  v_max_u32 v16, v16, v18")
    cleanup(a, [(16, 17)], [54])
    a("  v_max_u32_dpp v16, v16, v16 row_ror:8 row_mask:0xf bank_mask:0xf bound_ctrl:1")
    cleanup(a, [(16, 17)], [57])
    a("  v_mov_b32 v17, v16")
    a("  v_permlane16_swap_b32 v16, v17")
    a("  v_max_u32 v16, v16, v17")
    cleanup(a, [(16, 17)], [60])
    a("  v_mov_b32 v17, v16")
    a("  v_permlane32_swap_b32 v16, v17")
    a("  v_max_u32 v16, v16, v17")
    cleanup(a, [(16, 17)], [63])
    a("  s_mov_b64 exec, 0xff")
    a("  ds_write_b32 v68, v16")
    a("  s_mov_b64 exec, -1")
    a("  s_branch K2_TOP")

def ffn_tail(a):
    a("  s_mov_b64 exec, -1")
    a(f"  s_cmp_ge_u32 s2, {NF}")
    a("  s_cbranch_scc1 K2_END")
    a("  s_setprio 0")
    z = [f"  v_mov_b32 v{228 + i}, 0x3f803f80" for i in range(4)] + [f"  v_mov_b32 v{DD + 27 - i}, 0" for i in range(28)]
    for st in range(9):
        for hB in range(2):
            for j in range(2):
                r = GU + 8 * st + 4 * hB + 2 * j
                a(f"  ds_read_b64_tr_b16 v[{r}:{r + 1}], v{C_GU} offset:{(64 * st + 32 * hB + 2 * j) * 64}")
                if z: a(z.pop(0))
        if st >= 2:
            a("  s_waitcnt lgkmcnt(8)")
            a(f"  v_smfmac_f32_16x16x64_bf16 v[224:227], v[228:231], v[{GU + 8 * (st - 2)}:{GU + 8 * (st - 2) + 7}], v73")
    for st in (7, 8):
        a(f"  s_waitcnt lgkmcnt({4 * (8 - st)})")
        a(f"  v_smfmac_f32_16x16x64_bf16 v[224:227], v[228:231], v[{GU + 8 * st}:{GU + 8 * st + 7}], v73")
    a(f"  v_lshl_add_u32 v85, s6, 11, v{C_DN}")
    a("  s_lshl_b32 s24, s6, 6")
    a("  s_and_b32 s24, s24, 64")
    a(f"  v_add_u32 v86, 8192, v{C_DN}")
    a("  v_xor_b32 v86, s24, v86")
    a("  v_add_f32 v80, v224, v226")
    a("  v_mov_b32 v81, v80")
    a("  v_mov_b32_dpp v81, v80 row_ror:8 row_mask:0xf bank_mask:0x3")
    a("  v_mov_b32_dpp v80, v80 row_ror:8 row_mask:0xf bank_mask:0xc")
    a("  s_waitcnt vmcnt(4)")
    stamp(a, 14)
    a("K2_TOP:")
    a("  s_movk_i32 s24, 1152")
    a("  s_waitcnt lgkmcnt(0)")
    a("  s_barrier")
    a(f"  ds_read_b32 v16, v87 offset:{L_TOP}")
    a("  s_mov_b32 s70, 0")
    a("  s_waitcnt lgkmcnt(0)")
    a("  v_max_u32_dpp v16, v16, v16 row_ror:8 row_mask:0xf bank_mask:0xf bound_ctrl:1")
    cleanup(a, [(16, 17)], [57])
    a("  v_mov_b32 v17, v16")
    a("  v_permlane16_swap_b32 v16, v17")
    a("  v_max_u32 v16, v16, v17")
    a("  v_not_b32_dpp v17, v16 quad_perm:[0,1,0,1] row_mask:0xf bank_mask:0x3")
    a("  v_not_b32_dpp v17, v16 quad_perm:[2,3,2,3] row_mask:0xf bank_mask:0xc")
    a("  v_and_b32 v17, 0x7ff, v17")
    stamp(a, 17)
    a("  v_mad_u32_u24 v18, v17, s24, v71")
    a("  s_cmp_ge_u32 s3, 2")
    a("  s_cbranch_scc1 K2_ROW1")
    a("  s_cmp_eq_u32 s3, 1")
    a("  s_cbranch_scc1 K2_ROWS")
    def retry(label, regs):
        a("  s_add_u32 s70, s70, 1")
        a("  s_waitcnt vmcnt(0)")
        a(f"  v_max3_u32 v28, v{regs[0]}, v{regs[1]}, v{regs[2]}")
        for i in range(3, len(regs) - 1, 2): a(f"  v_max3_u32 v28, v28, v{regs[i]}, v{regs[i + 1]}")
        if len(regs) % 2 == 0: a(f"  v_max_u32 v28, v28, v{regs[-1]}")
        a("  v_cmp_eq_u32 vcc, -1, v28")
        a(f"  s_cmp_lt_u32 s70, {SPIN}")
        a("  s_cselect_b64 vcc, vcc, 0")
        a(f"  s_cbranch_vccnz {label}")
    a("K2_ROW2:")
    a("  buffer_load_dwordx4 v[20:23], v18, s[16:19], 0 offen sc1")
    a("  buffer_load_dwordx4 v[24:27], v18, s[16:19], 0 offen offset:1024 sc1")
    retry("K2_ROW2", [20, 23, 24, 27])
    a(f"  ds_write_b128 v70, v[24:27] offset:{L_X + 8192}")
    a("  s_branch K2_ROWD")
    a("K2_ROWS:")
    a("  v_lshlrev_b32 v19, 4, v17")
    a(f"  s_mov_b32 s26, {WS_STAT}")
    a("K2_ROWS1:")
    a("  buffer_load_dwordx4 v[20:23], v18, s[16:19], s71 offen sc1")
    a("  buffer_load_dwordx4 v[24:27], v19, s[8:11], s26 offen sc1")
    a(f"  ds_write_b32 v69, v17 offset:{L_TOK}")
    retry("K2_ROWS1", [20, 23, 24, 27])
    a("  s_mov_b64 exec, 0xffff")
    a(f"  ds_write_b128 v70, v[24:27] offset:{L_XS}")
    a("  s_mov_b64 exec, -1")
    a("  s_branch K2_ROWD")
    a("K2_ROW1:")
    a("  buffer_load_dwordx4 v[20:23], v18, s[16:19], s71 offen sc1")
    a("  s_cmp_lt_u32 s3, 4")
    a("  s_cbranch_scc1 K2_ROW1W")
    for m in range(5):
        if m < 4:
            a(f"  v_xor_b32 v1, {64 * (m % 2)}, v85")
            if m >= 2: a("  v_add_u32 v1, 1024, v1")
        else: a("  v_mov_b32 v1, v86")
        a("  v_add_u32 v2, 18432, v1")
        for h in range(4):
            r = DN + 8 * m + 2 * h
            a(f"  ds_read2_b32 v[{r}:{r + 1}], v{1 + h // 2} offset0:{64 * (h % 2)} offset1:{64 * (h % 2) + 32}")
        if m >= 2: a(f"  s_waitcnt lgkmcnt({8 if m < 4 else 0})")
    a("K2_ROW1W:")
    retry("K2_ROW1", [20, 21, 23])
    a("K2_ROWD:")
    stamp(a, 18)
    a(f"  ds_write_b128 v72, v[20:23] offset:{L_X}")
    a("  s_mov_b32 s70, 0")
    a("  s_cmp_ge_u32 s3, 4")
    a("  s_waitcnt lgkmcnt(0)")
    a("  s_barrier")
    a("  s_cbranch_scc1 K2_GU")
    a(f"  ds_read_b32 v14, v76 offset:{L_TOK}")
    a(f"  ds_read_b32 v15, v77 offset:{L_X}")
    a("  s_waitcnt lgkmcnt(0)")
    a("  v_mad_u32_u24 v14, v14, s24, v78")
    a("  v_lshlrev_b32 v30, 16, v15")
    a("  v_and_b32 v31, 0xffff0000, v15")
    a("  s_barrier")
    a("  s_branch K2_D3")
    a("K2_GU:")
    for st in range(9):
        a(f"  ds_read_b128 v[{8 + 4 * st}:{11 + 4 * st}], v70 offset:{L_X + 1024 * st}")
    a(f"  ds_read_b128 v[4:7], v82 offset:{L_XS}")
    for st in range(9):
        a(f"  s_waitcnt lgkmcnt({9 - st})")
        a(f"  v_smfmac_f32_16x16x64_bf16 v[220:223], v[{8 + 4 * st}:{11 + 4 * st}], v[{GU + 8 * st}:{GU + 8 * st + 7}], v73")
    a("  s_waitcnt lgkmcnt(0)")
    a("  v_mul_f32 v7, v7, v5                    ; c * sigmoid(r)")
    a("  v_mul_f32 v80, v80, v4")
    a("  v_mul_f32 v81, v81, v4")
    a(f"  v_mul_f32 v6, {f32(-math.log2(math.e))}, v5")
    a("  v_pk_add_f32 v[220:221], v[220:221], v[222:223]")
    a("  v_sub_f32 v2, v220, v80")
    a("  v_sub_f32 v3, v221, v81")
    a("  v_sub_f32_dpp v2, v221, v80 row_ror:8 row_mask:0xf bank_mask:0xc")
    a("  v_sub_f32_dpp v3, v220, v81 row_ror:8 row_mask:0xf bank_mask:0x3")
    a("  v_mul_f32 v1, v2, v6")
    a("  v_exp_f32 v1, v1")
    a("  v_mul_f32 v2, v2, v5                    ; g")
    a("  v_add_f32 v1, 1.0, v1")
    a("  v_rcp_f32 v1, v1")
    a("  v_mul_f32 v3, v3, v7                    ; u * sigmoid(r)")
    a("  v_mul_f32 v2, v2, v1                    ; silu(g)")
    a("  v_mul_f32 v2, v2, v3")
    a("  v_cvt_pk_bf16_f32 v2, v2, v2")
    a(f"  ds_write_b16 v83, v2 offset:{L_ACT}")
    stamp(a, 19)
    a("  s_cmp_ge_u32 s6, 2")
    a("  s_waitcnt lgkmcnt(0)")
    a("  s_barrier")
    a(f"  ds_read_b128 v[8:11], v84 offset:{L_ACT}")
    a("  s_waitcnt lgkmcnt(0)")
    for m in range(4):
        a(f"  v_smfmac_f32_16x16x64_bf16 v[{DD + 4 * m}:{DD + 4 * m + 3}], v[8:11], v[{DN + 8 * m}:{DN + 8 * m + 7}], v73 abid:1")
    a("  s_cbranch_scc1 K2_D2")
    a(f"  v_smfmac_f32_16x16x64_bf16 v[{DD + 16}:{DD + 19}], v[8:11], v[{DN + 32}:{DN + 39}], v73 abid:1")
    a("K2_D2:")
    a("  s_nop 3")
    for m in range(4):
        a(f"  buffer_store_dwordx4 v[{DD + 4 * m}:{DD + 4 * m + 3}], v70, s[8:11], s36 offen offset:{1024 * m} sc1")
    a("  s_cbranch_scc1 K2_D3")
    a(f"  buffer_store_dwordx4 v[{DD + 16}:{DD + 19}], v70, s[8:11], s37 offen sc1")
    a("K2_D3:")
    stamp(a, 20)
    a("  s_waitcnt vmcnt(0)")
    a("  s_barrier")
    stamp(a, 21)
    a("K2_RED:")
    a("  buffer_load_dwordx4 v[16:19], v74, s[8:11], s46 offen sc1")
    a("  buffer_load_dwordx4 v[20:23], v74, s[8:11], s47 offen sc1")
    a("  buffer_load_dwordx4 v[24:27], v74, s[8:11], s48 offen sc1")
    retry("K2_RED", [16, 19, 20, 23, 24, 27])
    stamp(a, 22)
    a("  v_pk_add_f32 v[16:17], v[16:17], v[20:21]")
    a("  v_pk_add_f32 v[18:19], v[18:19], v[22:23]")
    a("  v_pk_add_f32 v[16:17], v[16:17], v[24:25]")
    a("  v_pk_add_f32 v[18:19], v[18:19], v[26:27]")
    a("  v_permlane32_swap_b32 v16, v17")
    a("  v_permlane32_swap_b32 v18, v19")
    a("  v_add_f32 v16, v16, v17")
    a("  v_add_f32 v18, v18, v19")
    a("  v_permlane16_swap_b32 v16, v18")
    a("  v_add_f32 v16, v16, v18")
    a("  v_add_f32_dpp v16, v16, v16 row_ror:8 row_mask:0xf bank_mask:0xf bound_ctrl:1")
    a("  s_mov_b32 exec_lo, 0x00ff00ff")
    a("  s_mov_b32 exec_hi, 0x00ff00ff")
    a(f"  ds_write_b32 v75, v16 offset:{L_RED}")
    a("  s_cmp_lg_u32 s3, 0")
    a("  s_waitcnt lgkmcnt(0)")
    a("  s_barrier")
    a("  s_cbranch_scc1 K2_END")
    a("  s_mov_b64 exec, 0xffff")
    for i in range(4):
        a(f"  ds_read_b128 v[{32 + 4 * i}:{35 + 4 * i}], v79 offset:{L_RED + 16 * i}")
    a("  s_waitcnt lgkmcnt(2)")
    a("  v_pk_add_f32 v[32:33], v[32:33], v[34:35]")
    a("  v_pk_add_f32 v[36:37], v[36:37], v[38:39]")
    a("  v_pk_add_f32 v[32:33], v[32:33], v[36:37]")
    a("  s_waitcnt lgkmcnt(0)")
    a("  v_pk_add_f32 v[40:41], v[40:41], v[42:43]")
    a("  v_pk_add_f32 v[44:45], v[44:45], v[46:47]")
    a("  v_add_f32 v32, v32, v33")
    a("  v_pk_add_f32 v[40:41], v[40:41], v[44:45]")
    a("  v_add_f32 v30, v30, v32")
    a("  v_add_f32 v40, v40, v41")
    a("  v_add_f32 v31, v31, v40")
    a("  v_cvt_pk_bf16_f32 v30, v30, v31")
    a("  buffer_store_dword v30, v14, s[16:19], s37 offen" + ("" if "plfin" in OPT else " sc1"))

def lane_kv(a, vK, vV, vKL):
    a("  v_lshrrev_b32 v1, 5, v0                 ; hi")
    a("  v_and_b32 v2, 31, v0                    ; row")
    a("  v_lshlrev_b32 v3, 5, v2")
    a(f"  v_lshl_add_u32 v{vK}, v1, 4, v3")
    a("  v_lshlrev_b32 v4, 1, v2")
    a("  s_mov_b32 s24, 0xfffff9f8")
    a("  v_bfe_u32 v4, s24, v4, 2")
    a("  v_cmp_gt_u32 vcc, 16, v2")
    a("  v_add_u32 v4, 16, v4")
    a(f"  v_lshlrev_b32 v{vKL}, 2, v0")
    a("  v_cndmask_b32 v4, v4, v2, vcc")
    a("  v_lshlrev_b32 v4, 5, v4")
    a(f"  v_lshl_add_u32 v{vV}, v1, 4, v4")
def lane_q(a, vQ, vQL):
    a("  v_bfe_u32 v6, v0, 2, 2")
    a("  v_and_b32 v7, 1, v0")
    a("  v_lshl_add_u32 v6, v6, 1, v7            ; t")
    a("  v_mul_u32_u24 v6, 1152, v6")
    a("  v_bfe_u32 v7, v0, 4, 1")
    a("  v_bfe_u32 v8, v0, 1, 1")
    a("  v_lshl_add_u32 v7, v7, 1, v8")
    a(f"  v_mad_u32_u24 v{vQL}, v7, 36, v6")
    a("  v_lshrrev_b32 v7, 5, v0")
    a(f"  v_lshl_add_u32 v{vQ}, v7, 4, v{vQL}")
def gen_k2(a):
    vm = []
    def vload(tag, text):
        a(text); vm.append(tag)
    def vwait(tag):
        last = max((i for i, t in enumerate(vm) if t == tag), default=None)
        if last is None: return
        n = len(vm) - 1 - last
        a(f"  s_waitcnt vmcnt({n})")
        del vm[:last + 1]
    def issue(l, n=99):
        for i in range(min(n, len(l))):
            tag, pre, text = l.pop(0)
            if pre: a(pre)
            vload(tag, text)
    nb = [3]
    def bar():
        a("  s_waitcnt lgkmcnt(0)")
        if BEFORE[0]: stamp(a, nb[0])
        a("  s_barrier")
        if not BEFORE[0]: stamp(a, nb[0])
        nb[0] += 1
    def qread(p):
        a(f"  ds_read_b32 v{QL[p % 2]}, v{Q4} offset:{q_off(p) + 1024}")
        a(f"  ds_read_b128 v[{QM[p % 2]}:{QM[p % 2] + 3}], v{Q16} offset:{q_off(p)}")

    KM, V, KL = 112, 136, 184
    IDX, L16, L8, Z = 185, 187, 189, 196
    W16, W8, Q16, Q4 = 197, 244, 245, 246
    QM, QL = (190, 248), (194, 252)
    ACC, AF, LF, PEND, CHK = 198, 234, 238, 242, 243
    O, RING = 64, 80
    VN2, VDMA = 247, 255
    w = Wave(a, KM, V, KL, IDX)
    a("K2_A:")
    a("  s_barrier")
    stamp(a, 15, alt="alt2")
    common_scalars(a)
    lane_kv(a, 96, 97, 98)
    a("  s_lshl_b32 s23, s6, 4")
    kv_setup(a, "s23")
    kv = [kv_list(a, w, u, "v96", "v97", "v98") for u in range(NA)]
    a("  v_bfe_u32 v8, v0, 1, 1")
    a("  v_mul_u32_u24 v8, 0xaaaa, v8")
    a(f"  v_add_u32 v{IDX}, 0xdddd4444, v8")
    a(f"  v_lshlrev_b32 v{L16}, 4, v0")
    a(f"  v_lshlrev_b32 v{L8}, 3, v0")
    a(f"  v_add_u32 v{W16}, s7, v{L16}")
    a(f"  v_add_u32 v{W8}, s7, v{L8}")
    a(f"  v_add_u32 v{Q16}, {L_QB}, v{L16}")
    a(f"  v_add_u32 v{Q4}, {L_QB}, v98")
    a(f"  v_mov_b32 v{Z}, 0")
    a(f"  v_mov_b32 v{QL[0] + 1}, 0")
    a(f"  v_mov_b32 v{QL[1] + 1}, 0")
    a(f"  v_mov_b32 v{CHK}, 0")
    for i in range(36):
        a(f"  v_mov_b32 v{ACC + i}, 0")
    a(f"  v_mov_b32 v1, {L_CNT}")
    a("  v_mov_b32 v2, 1")
    a("  v_lshlrev_b32 v3, 15, v0")
    a("  s_mov_b64 exec, 1")
    a("  s_waitcnt vmcnt(0)")
    stamp(a, 16, alt="alt2")
    a("  ds_add_rtn_u32 v1, v1, v2")
    a("  s_waitcnt lgkmcnt(0)")
    a("  v_cmp_eq_u32 vcc, 4, v1")
    a("  s_cbranch_vccz K2_NOFLAG")
    a("  s_mov_b32 exec_lo, s45")
    a("  buffer_store_dword v2, v3, s[8:11], s60 offen sc1")
    a("K2_NOFLAG:")
    a("  s_mov_b64 exec, -1")
    a("  s_mul_i32 s25, s6, 288")
    a("  v_lshrrev_b32 v11, 4, v0")
    a("  v_mul_u32_u24 v13, 2304, v11")
    a("  v_and_b32 v12, 15, v0")
    a(f"  v_lshl_add_u32 v{VN2}, v12, 1, s25")
    a(f"  v_add_u32 v254, v{VN2}, v13")
    a(f"  v_add_u32 v254, {L_XI}, v254")
    gu_setup(a, VDMA)
    srd(a, 28, 54, 55, "s34")
    a("  s_mul_i32 s59, s6, 2304")
    a("  s_add_u32 s59, s59, s5")
    a("  s_lshl_b32 s61, s4, 2")
    a("  s_add_u32 s61, s61, s6")
    a("  s_lshl_b32 s61, s61, 5")
    a(f"  s_add_u32 s61, s61, {WS_STAT}")
    a("  s_lshl_b32 s63, s2, 2")
    a("  s_add_u32 s63, s63, s6")
    a("  s_lshl_b32 s63, s63, 10")
    a(f"  s_add_u32 s63, s63, {WS_PART - 4096 * NF}")
    a("  s_mul_i32 s27, s6, 18432")
    a(f"  s_add_u32 s27, s27, {WS_WOL}")
    f = Asm(); tail_scalars(f, False)
    for l in f.lines: a(l)
    stamp_start(a)
    a("  s_setprio 2")
    a("  s_waitcnt vmcnt(0)")
    a("  s_barrier")
    stamp(a, 17, alt="alt2"); stamp(a, 23, alt=True)
    PRE = int(os.environ.get("PRE", "11"))
    issue(kv[0], 3)
    for j in range(9):
        a(f"  ds_read_u16_d16_hi v{ACC + 4 * j}, v254 offset:{32 * j}")
        a(f"  ds_read_u16_d16_hi v{ACC + 4 * j + 1}, v254 offset:{32 * j + 1152}")
        if j >= 4: a("  s_waitcnt lgkmcnt(8)")
        if j < PRE: issue(kv[0] or kv[1], 1)
    issue(kv[1], PRE - 9)
    a("  v_lshrrev_b32 v11, 3, v0")
    a("  v_mul_u32_u24 v13, 1152, v11")
    a("  v_and_b32 v11, 4, v11")
    a("  v_and_b32 v12, 7, v0")
    a("  v_xor_b32 v12, v12, v11")
    a("  v_lshl_add_u32 v254, v12, 4, v13")
    stamp(a, 2)

    def stage(p, T=None):
        clr = 0 <= p <= 3 and "noclr" not in OPT
        if clr:
            d = f"v[{T}:{T + 3}]"
            for i in range(4): a(f"  v_mov_b32 v{T + i}, -1")
            if p == 2: a("  s_mov_b64 exec, 0xffff")
            if p == 3: a("  s_mov_b64 exec, 3")
            if p < 3: vload("dma", f"  buffer_store_dwordx4 {d}, v{L16}, s[16:19], s59 offen offset:{1024 * p} sc1")
            else: vload("dma", f"  buffer_store_dwordx4 {d}, v{L16}, s[8:11], s61 offen sc1")
            if p >= 2: a("  s_mov_b64 exec, -1")
        n = GUA[p + 1]
        if clr and n:
            a(f"  s_cmp_lt_u32 s2, {NF}")
            a(f"  s_cbranch_scc1 K2_CH{p}")
            for j in range(n):
                a(f"  buffer_store_dwordx4 {d}, v{L16}, s[8:11], s63 offen sc1")
                a(f"  s_add_u32 s63, s63, {448 * 1024}")
            a(f"  s_branch K2_CD{p}")
            a(f"K2_CH{p}:")
        for i in range(sum(GUA[:p + 1]), sum(GUA[:p + 2])):
            gu(a, sum(GUB) + sum(GUQ) + i, VDMA); vm.append("dma")
        if clr and n: a(f"K2_CD{p}:")
        for cb in range(sum(DNA[:p + 1]), sum(DNA[:p + 2])):
            a(f"  s_add_u32 m0, s72, {L_D + 896 * cb}")
            vload("dma", f"  buffer_load_dwordx4 v254, s[28:31], s73 offen offset:{128 * cb}{NT} lds")
    assert "noclr" in OPT or (sum(GUA[1:5]) >= 6 and sum(GUB) + sum(GUQ) + sum(GUA) == 18)

    where = {}
    def wo_load(step, j, r):
        if "nowo" in OPT or ("halfwo" in OPT and j % 2): where[step, j] = r; return
        where[step, j] = r
        a(f"  s_add_u32 s24, s27, {step * 73728 + j * 2048}")
        vload(("wo", step, j), f"  buffer_load_dwordx4 v[{r}:{r + 3}], v{L16}, s[8:11], s24 offen sc1")
        vload(("wo", step, j), f"  buffer_load_dwordx4 v[{r + 4}:{r + 7}], v{L16}, s[8:11], s24 offen offset:1024 sc1")
    def op(step, j):
        f = AF if step < 8 else LF
        vwait(("wo", step, j))
        r = where[step, j]
        if "noOP" not in OPT:
            a(f"  v_smfmac_f32_16x16x64_bf16 v[{ACC + 4 * j}:{ACC + 4 * j + 3}], v[{f}:{f + 3}], v[{r}:{r + 7}], v{IDX}")
        return r
    def zero(o, ql):
        a(f"  v_mfma_f32_32x32x8_bf16 v[{o}:{o + 15}], v[{ql}:{ql + 1}], v[{Z}:{Z + 1}], 0   ; accumulator = 0")
    def flushA(q, o):
        b = pa_slot(q)
        a(f"  ds_write_b128 v{W16}, v[{o}:{o + 3}] offset:{b}")
        a(f"  ds_write_b128 v{W16}, v[{o + 4}:{o + 7}] offset:{b + 1024}")
        a(f"  ds_write_b64 v{W8}, v[{o + 8}:{o + 9}] offset:{b + 2048}")
    def R(p, TP, TA, TB, shadow=None):
        if "noR" in OPT: return
        b = L_PB + (p % 2) * 10240
        for s in range(4):
            a(f"  ds_read_b64 v[{TP + 2 * s}:{TP + 2 * s + 1}], v{L8} offset:{b + 2560 * s + 2048}")
        for s in range(4):
            a(f"  ds_read_b128 v[{TA + 4 * s}:{TA + 4 * s + 3}], v{L16} offset:{b + 2560 * s}")
        for s in range(4):
            a(f"  ds_read_b128 v[{TB + 4 * s}:{TB + 4 * s + 3}], v{L16} offset:{b + 2560 * s + 1024}")
        def add3(t, st):
            a(f"  v_pk_add_f32 v[{t}:{t + 1}], v[{t}:{t + 1}], v[{t + st}:{t + st + 1}]")
            a(f"  v_pk_add_f32 v[{t + 2 * st}:{t + 2 * st + 1}], v[{t + 2 * st}:{t + 2 * st + 1}], v[{t + 3 * st}:{t + 3 * st + 1}]")
            a(f"  v_pk_add_f32 v[{t}:{t + 1}], v[{t}:{t + 1}], v[{t + 2 * st}:{t + 2 * st + 1}]")
        rc = TP + 2
        if shadow: shadow()
        a("  s_waitcnt lgkmcnt(8)")
        add3(TP, 2)
        a(f"  v_rcp_f32 v{rc}, v{TP + 1}")
        for h, T in enumerate((TA, TB)):
            a(f"  s_waitcnt lgkmcnt({4 - 4 * h})")
            add3(T, 4); add3(T + 2, 4)
            a(f"  v_pk_mul_f32 v[{T}:{T + 1}], v[{T}:{T + 1}], v[{rc}:{rc + 1}] op_sel_hi:[1,0]")
            a(f"  v_pk_mul_f32 v[{T + 2}:{T + 3}], v[{T + 2}:{T + 3}], v[{rc}:{rc + 1}] op_sel_hi:[1,0]")
            a(f"  v_cvt_pk_bf16_f32 v{AF + 2 * h}, v{T}, v{T + 1}")
            a(f"  v_cvt_pk_bf16_f32 v{AF + 2 * h + 1}, v{T + 2}, v{T + 3}")
        a(f"  v_max3_u32 v{CHK}, v{CHK}, v{TP + 1}, v{rc}")
        if p % 2 == 0:
            a(f"  v_mul_f32 v{PEND}, v{TP}, v{rc}")
        else:
            a(f"  v_mul_f32 v{TP}, v{TP}, v{rc}")
            a(f"  v_cvt_pk_bf16_f32 v{LF + p // 2}, v{PEND}, v{TP}")

    seq = [(0, 0), (1, 0), (0, 1), (1, 1), (0, 2), (1, 2)] + [(q, u) for q in range(2, 8) for u in range(3)]
    Oof = lambda q: RING if q == 1 else O
    a("  s_barrier")
    qread(0); qread(1)
    kv[2] = kv[1] + kv[2]
    issue(kv[2], 3)
    vwait(("k", 0))
    a("  s_waitcnt lgkmcnt(0)")
    stamp(a, 12, alt=True)
    w.qk2(0, 0, QL[0])
    zero(O, QL[0])
    zero(RING, QL[0])
    issue(kv[2], 2)
    w.qkm(0, 0, 0, QM[0])
    w.qkm(0, 0, 1, QM[0])
    issue(kv[2], 2)
    if not kv[2]: a("  s_setprio 0")
    for n, (q, u) in enumerate(seq):
        X, Y = 32 * (n % 2), 32 * ((n + 1) % 2)
        nx = seq[n + 1] if n + 1 < len(seq) else None
        p = q - 3
        if n == 0: prev = None
        elif u == 0 and q >= 3: prev = lambda: zero(O, QL[q % 2])
        else: prev = (Oof(seq[n - 1][0]), seq[n - 1][1])
        def hook(pos):
            if pos == "pre2b" and nx:
                vwait(("k", nx[1]))
                if (nx[0] >= 4 or nx[0] == 2) and nx[1] == 0: a("  s_waitcnt lgkmcnt(0)")
            if pos == "prepv0": vwait(("v", u, 1))
            if pos == "prepv2": vwait(("v", u, 3))
            if n == 0 and pos in ("early", "mid", "preqk", "late") and kv[2]:
                issue(kv[2], 2 if pos != "late" else 9)
                if not kv[2]: a("  s_setprio 0")
            if n == 4 and pos == "late": qread(2); qread(3)
            if n == 5 and pos == "mid": flushA(0, O)
            if n == 5 and pos == "late":
                a("  s_waitcnt lgkmcnt(0)"); zero(O, QL[0])
            if n == 6 and pos == "mid": flushA(1, RING)
        w.unit(X, Y, Oof(q), u, prev=prev, nxt=(nx[1], QM[nx[0] % 2], QL[nx[0] % 2]) if nx else None, hook=hook)
        if n < 10: stamp(a, 13 + n, alt=True)
        if q >= 2 and u == 0:
            bar()
            a("  s_setprio 2")
        if 3 <= q < 7 and u == 1: qread(q + 1)
        if p >= 1 and u == 1:
            for j in range(4, 8): wo_load(p, j - 4, op(p - 1, j))
        if q >= 2 and u == 2:
            F = X
            w.pv(O, X, u, 3)
            if p == -1:
                for j in range(4): wo_load(0, j, RING + 8 * j)
                flushA(q, O)
                stage(p)
            else:
                wo_load(p, 8, F)
                if q == 7:
                    for j in range(3): wo_load(5, j, 112 + 8 * j)
                flushA(q, O)
                R(p, F + 8, F + 16, O)
                for j in range(4): wo_load(p, j + 4, op(p, j))
                op(p, 8)
                if p < 4: stage(p, F + 8)
            if q < 7:
                a("  s_waitcnt lgkmcnt(0)")
                a("  s_setprio 0")
    SY = lambda j: RING + 8 * j if j < 4 else 8 * (j - 4)
    WR = [184, 186, 188, 190, 191, 192, 193, 194, 195]
    for j in range(3, 6): wo_load(5, j, 112 + 8 * j)
    for j in range(4, 8): op(4, j)
    stage(4)
    bar()
    E7 = int(os.environ.get("E7", "3"))
    for j in range(6, 9): wo_load(5, j, 112 + 8 * j)
    R(5, 40, 48, O)
    for j in range(9):
        wo_load(6, j, SY(j)); op(5, j)
    for j in range(E7): wo_load(7, j, 112 + 8 * j)
    stage(5)
    bar()
    for j in range(E7, E7 + 3): wo_load(7, j, 112 + 8 * j)
    R(6, 40, 48, O)
    for j in range(E7 + 3, 9): wo_load(7, j, 112 + 8 * j)
    for j in range(9): wo_load(8, j, op(6, j))
    vwait("dma")
    a(f"  v_add_u32 v254, {L_WR}, v{VN2}")
    for j in range(9):
        a(f"  ds_read_u16 v{WR[j]}, v254 offset:{32 * j}")
    a(f"  v_lshrrev_b32 v252, 7, v{L16}")
    a("  v_lshl_add_u32 v252, v252, 4, s39")
    a(f"  v_lshrrev_b32 v253, 8, v{L16}")
    a(f"  v_bfe_u32 v251, v{L16}, 5, 2")
    a("  v_lshl_add_u32 v253, v253, 2, v251")
    a(f"  v_mul_u32_u24 v253, {HI}, v253")
    a("  v_and_or_b32 v253, v252, 16, v253")
    a(f"  v_and_b32 v251, 8, v{L8}")
    a("  v_add3_u32 v253, v253, v251, s25")
    bar()
    R(7, 40, 48, O, lambda: [a(f"  v_lshlrev_b32 v{r}, 16, v{r}") for r in WR])
    a(f"  v_cmp_lt_u32 vcc, {hex(SAFE)}, v{CHK}")
    a("K2_OP7:")
    def stats(j):
        r = ACC + 4 * j
        a(f"  v_pk_add_f32 v[{r}:{r + 1}], v[{r}:{r + 1}], v[{r + 2}:{r + 3}]")
        wr = WR[j]
        sel = f"op_sel:[0,{wr % 2},0] op_sel_hi:[1,{wr % 2},1]"
        wp = f"v[{wr - wr % 2}:{wr - wr % 2 + 1}]"
        if j == 0:
            a(f"  v_pk_mul_f32 v[42:43], v[{r}:{r + 1}], v[{r}:{r + 1}]")
            a(f"  v_pk_mul_f32 v[44:45], v[{r}:{r + 1}], {wp} op_sel_hi:[1,0]")
        else:
            if j == 1: a(f"  v_pk_add_f32 v[40:41], v[{ACC}:{ACC + 1}], v[{r}:{r + 1}]")
            else: a(f"  v_pk_add_f32 v[40:41], v[40:41], v[{r}:{r + 1}]")
            a(f"  v_pk_fma_f32 v[42:43], v[{r}:{r + 1}], v[{r}:{r + 1}], v[42:43]")
            a(f"  v_pk_fma_f32 v[44:45], v[{r}:{r + 1}], {wp}, v[44:45] {sel}")
    for j in range(4): op(7, j)
    a("  s_cbranch_vccnz K2_SAFE")
    for j in range(9):
        op(8, j)
        if j + 4 < 9: op(7, j + 4)
        if j >= 4: stats(j - 4)
    for j in range(5, 9): stats(j)
    for i in range(3):
        a(f"  v_add_f32_dpp v{248 + i}, v{40 + 2 * i}, v{40 + 2 * i} row_ror:8 row_mask:0xf bank_mask:0x3")
    for i in range(3):
        a(f"  v_add_f32_dpp v{248 + i}, v{41 + 2 * i}, v{41 + 2 * i} row_ror:8 row_mask:0xf bank_mask:0xc")
    for m in ("row_half_mirror", "quad_perm:[2,3,0,1]", "quad_perm:[1,0,3,2]"):
        for i in range(3):
            a(f"  v_add_f32_dpp v{248 + i}, v{248 + i}, v{248 + i} {m} row_mask:0xf bank_mask:0xf")
    a("  s_mov_b32 exec_lo, 0x01010101")
    a("  s_mov_b32 exec_hi, 0x01010101")
    a("  ds_write_b128 v252, v[248:251]")
    a("  s_mov_b64 exec, -1")
    bar()
    a("  s_setprio 0")
    for j in range(9):
        a(f"  ds_write_b64 v253, v[{ACC + 4 * j}:{ACC + 4 * j + 1}] offset:{L_H + 32 * j}")
    a(f"  v_lshrrev_b32 v0, 4, v{L16}")
    if "earlyp" in OPT: ffn_prep(a, False)
    a(f"  s_cmp_ge_u32 s2, {NF}")
    a("  s_waitcnt lgkmcnt(0)")
    stamp(a, 13)
    a("  s_barrier                               ; T2")
    a("  s_cbranch_scc1 K2_END")
    a("  s_setprio 2")
    if "earlyp" not in OPT: ffn_prep(a, False)
    for o in OPT:
        if o.startswith("slp"): a(f"  s_sleep {o[3:]}")
    gather_keys(a)

    a("K2_SAFE:")
    S, KMs, Vs, KLs, QMs, QLs, M, LV = 0, 32, 40, 56, 58, 62, 80, 84
    a("  s_waitcnt vmcnt(0)")
    a("  s_nop 7")
    a(f"  v_lshrrev_b32 v0, 4, v{L16}")
    lane_kv(a, 96, 97, 98)
    lane_q(a, 99, 100)
    a("  v_lshrrev_b32 v1, 4, v0")
    a("  v_mul_u32_u24 v1, 2304, v1")
    a(f"  v_add_u32 v1, v1, v{VN2}")
    for i in range(36): a(f"  v_mov_b32 v{ACC + i}, 0")
    for j in range(9):
        a(f"  buffer_load_short_d16_hi v{ACC + 4 * j}, v1, s[12:15], s5 offen offset:{32 * j}")
        a(f"  buffer_load_short_d16_hi v{ACC + 4 * j + 1}, v1, s[12:15], s5 offen offset:{32 * j + 1152}")
    a(f"  v_mov_b32 v{KLs + 1}, 0")
    a(f"  v_mov_b32 v{QLs + 1}, 0")
    ws_ = Wave(a, KMs, Vs, KLs, IDX)
    def scores(withv):
        a(f"  buffer_load_dword v{KLs}, v98, s[8:11], s22 offen sc1")
        for h in range(2):
            a(f"  buffer_load_dwordx4 v[{KMs + 4 * h}:{KMs + 4 * h + 3}], v96, s[8:11], s20 offen offset:{1024 * h} sc1")
        if withv:
            for k in range(4):
                a(f"  buffer_load_dwordx4 v[{Vs + 4 * k}:{Vs + 4 * k + 3}], v97, s[8:11], s21 offen offset:{640 * k} sc1")
        a("  s_add_u32 s20, s20, 2048")
        a("  s_add_u32 s21, s21, 2560")
        a("  s_add_u32 s22, s22, 256")
        a("  s_waitcnt vmcnt(0)")
        ws_.qk2(S, 0, QLs); ws_.qkm(S, 0, 0, QMs); ws_.qkm(S, 0, 1, QMs)
    def rewind():
        a(f"  s_mov_b32 s20, {WS_KM}")
        a(f"  s_mov_b32 s21, {WS_VT}")
        a(f"  s_mov_b32 s22, {WS_KL}")
    a("  s_mov_b32 s23, s5")
    a("  s_mov_b32 s26, s27")
    a("  s_mov_b32 s44, 0")
    a("K2_SG:")
    a(f"  buffer_load_dword v{QLs}, v100, s[8:11], s23 offen offset:32 sc1")
    a(f"  buffer_load_dwordx4 v[{QMs}:{QMs + 3}], v99, s[8:11], s23 offen sc1")
    a(f"  v_mov_b32 v{M}, 0xff800000")
    rewind()
    a("K2_S1:")
    scores(False)
    for i in range(0, 32, 2):
        a(f"  v_max3_f32 v{M}, v{M}, v{S + i}, v{S + i + 1}")
    a(f"  s_cmp_lt_u32 s22, {WS_KL + 8192}")
    a("  s_cbranch_scc1 K2_S1")
    a(f"  v_mov_b32 v{M + 1}, v{M}")
    a(f"  v_permlane32_swap_b32 v{M}, v{M + 1}")
    a(f"  v_max_f32 v{M}, v{M}, v{M + 1}")
    for i in range(16): a(f"  v_mov_b32 v{O + i}, 0")
    rewind()
    a("K2_S2:")
    scores(True)
    for i in range(32): a(f"  v_sub_f32 v{S + i}, v{S + i}, v{M}")
    for i in range(32): a(f"  v_exp_f32 v{S + i}, v{S + i}")
    for k in range(4): ws_.pv(O, S, 0, k)
    a(f"  s_cmp_lt_u32 s22, {WS_KL + 8192}")
    a("  s_cbranch_scc1 K2_S2")
    for j in range(9):
        a(f"  buffer_load_dwordx4 v[{112 + 8 * j}:{115 + 8 * j}], v{L16}, s[8:11], s26 offen sc1")
        a(f"  buffer_load_dwordx4 v[{116 + 8 * j}:{119 + 8 * j}], v{L16}, s[8:11], s26 offen offset:1024 sc1")
        a(f"  s_add_u32 s26, s26, {2048 if j < 8 else 73728 - 8 * 2048}")
    a(f"  v_rcp_f32 v{M}, v{O + 9}")
    for i in range(7): a(f"  v_mov_b32 v{LV + i}, v{LV + i + 1}")
    for i in range(8): a(f"  v_mul_f32 v{O + i}, v{O + i}, v{M}")
    a(f"  v_mul_f32 v{LV + 7}, v{O + 8}, v{M}")
    for i in range(4): a(f"  v_cvt_pk_bf16_f32 v{AF + i}, v{O + 2 * i}, v{O + 2 * i + 1}")
    a("  s_add_u32 s23, s23, 144")
    a("  s_add_u32 s44, s44, 1")
    a("  s_cmp_eq_u32 s44, 8")
    a("  s_waitcnt vmcnt(0)")
    a("  s_cbranch_scc1 K2_SD")
    for j in range(9):
        a(f"  v_smfmac_f32_16x16x64_bf16 v[{ACC + 4 * j}:{ACC + 4 * j + 3}], v[{AF}:{AF + 3}], v[{112 + 8 * j}:{119 + 8 * j}], v{IDX}")
    a("  s_branch K2_SG")
    a("K2_SD:")
    for i in range(4): a(f"  v_cvt_pk_bf16_f32 v{LF + i}, v{LV + 2 * i}, v{LV + 2 * i + 1}")
    for j in range(9):
        r = where[8, j]
        assert where[7, j] == 112 + 8 * j
        a(f"  buffer_load_dwordx4 v[{r}:{r + 3}], v{L16}, s[8:11], s26 offen sc1")
        a(f"  buffer_load_dwordx4 v[{r + 4}:{r + 7}], v{L16}, s[8:11], s26 offen offset:1024 sc1")
        a("  s_add_u32 s26, s26, 2048")
    a("  s_mov_b64 vcc, 0")
    a("  s_waitcnt vmcnt(0)")
    a("  s_branch K2_OP7")

    a("K2_B:")
    KM, V, KL = 96, 136, 216
    IDX, W16, W8, VK, VV = 217, 219, 221, 223, 225
    QM, QL = (226, 230), (234, 236)
    L16, VKL, VQ, VQL, Q16, Q4 = 239, 242, 244, 245, 254, 255
    OB = (64, 80)
    w = Wave(a, KM, V, KL, IDX)
    vm.clear()
    BEFORE[0] = False; nb[0] = 3
    a("  s_barrier                               ; S")
    a("  s_setprio 0")
    b_scalars(a)
    a("  s_mul_i32 s25, s6, 2304")
    a("  s_mov_b32 s70, 0")
    a(f"  v_mov_b32 v25, {L_CNT}")
    a("  v_mov_b32 v26, 1")
    a("  v_lshlrev_b32 v27, 15, v0")
    a("  v_bfe_u32 v22, v239, 2, 6")
    a("  s_barrier                               ; E")
    a("  s_cmp_lg_u32 s3, 4")
    a("  s_cbranch_scc1 K2_NOCHK")
    a("  global_load_dword v23, v22, s[66:67] sc1")
    a("K2_NOCHK:")
    a(f"  s_add_u32 m0, s25, {L_XI}")
    a("  s_add_u32 s24, s25, s5")
    a(f"  buffer_load_dwordx4 v{L16}, s[12:15], s24 offen lds")
    a(f"  buffer_load_dwordx4 v{L16}, s[12:15], s24 offen offset:1024 lds")
    a("  s_mov_b64 exec, 0xffff")
    a(f"  buffer_load_dwordx4 v{L16}, s[12:15], s24 offen offset:2048 lds")
    a("  s_mov_b64 exec, -1")
    for i in range(sum(GUB[:4]), sum(GUB)): gu(a, i)
    a("  s_cmp_lg_u32 s3, 4")
    a("  s_cbranch_scc1 K2_NOFL")
    a(f"  s_waitcnt vmcnt({3 + GUB[4]})")
    a("K2_WC:")
    a("  v_cmp_eq_u32 vcc, 0, v23")
    a("  s_add_u32 s70, s70, 1")
    a(f"  s_cmp_lt_u32 s70, {SPIN}")
    a("  s_cselect_b64 vcc, vcc, 0")
    a("  s_cbranch_vccz K2_WD")
    a("  global_load_dword v23, v22, s[66:67] sc1")
    a("  s_waitcnt vmcnt(0)")
    a("  s_branch K2_WC")
    a("K2_WD:")
    stamp(a, 18, alt="alt2")
    a("  s_mov_b64 exec, 1")
    a("  ds_add_rtn_u32 v24, v25, v26")
    a("  s_waitcnt lgkmcnt(0)")
    a("  v_cmp_eq_u32 vcc, 4, v24")
    a("  s_cbranch_vccz K2_NOFL")
    a("  s_mov_b32 exec_lo, s45")
    a("  buffer_store_dword v26, v27, s[8:11], s60 offen sc1")
    a("K2_NOFL:")
    a("  s_mov_b64 exec, -1")
    lane_q(a, VQ, VQL)
    lane_kv(a, VK, VV, VKL)
    a(f"  v_mov_b32 v{IDX}, 0xdddddddd")
    a(f"  v_add_u32 v{W16}, s7, v{L16}")
    a(f"  v_lshl_add_u32 v{W8}, v0, 3, s7")
    a(f"  v_add_u32 v{Q16}, {L_QB}, v{L16}")
    a(f"  v_add_u32 v{Q4}, {L_QB}, v{VKL}")
    a(f"  v_mov_b32 v{QL[0] + 1}, 0")
    a(f"  v_mov_b32 v{QL[1] + 1}, 0")
    for i in range(16): a(f"  v_mov_b32 v{OB[0] + i}, 0")
    for i in range(10, 16): a(f"  v_mov_b32 v{OB[1] + i}, 0")
    ffn_consts_b(a)
    a("  v_mul_u32_u24 v243, 84, v0")
    a("  s_lshl_b32 s23, s6, 4")
    a(f"  s_add_u32 s23, s23, {2 * NA}")
    kv_setup(a, "s23")
    a("  s_mul_i32 s64, s6, 144")
    a("  s_add_u32 s64, s64, s5")
    a("  s_mul_i32 s59, s6, 1280")
    a(f"  s_add_u32 s59, s59, {L_QB}")
    a("  s_lshr_b32 s61, s2, 3")
    a("  s_lshl_b32 s61, s61, 2")
    a("  s_add_u32 s61, s61, s6")
    a("  s_mul_i32 s61, s61, 5184")
    a(f"  s_add_u32 s61, s61, {WS_WOL}")
    srd(a, 28, 54, 55, 5308416)
    f = Asm(); tail_scalars(f, True)
    for l in f.lines: a(l)
    a("  s_lshr_b32 s63, s2, 3")
    a("  s_and_b32 s26, s2, 7")
    a("  s_mul_i32 s26, s26, 3")
    a("  s_cmp_ge_u32 s63, 12")
    a("  s_addc_u32 s26, s26, 0")
    a("  s_cmp_ge_u32 s63, 22")
    a("  s_addc_u32 s26, s26, 0")
    a("  s_mul_i32 s26, s26, 9")
    a("  v_min_u32 v1, 48, v0")
    a("  v_add_u32 v2, s26, v1")
    a("  v_cmp_gt_u32 vcc, 40, v0")
    a("  s_and_b32 s63, s2, 7")
    a("  s_lshl_b32 s63, s63, 15")
    a(f"  s_add_u32 s63, s63, {WS_FLAG}")
    a("  v_cndmask_b32 v1, v2, v1, vcc")
    a("  v_lshlrev_b32 v1, 7, v1")
    a("  s_mov_b32 m0, s59")
    a("  s_setprio 1" if "qlast" in OPT else "  s_setprio 3")
    a("  s_cmp_lg_u32 s3, 4")
    a("  s_cbranch_scc1 K2_R0")
    a("K2_W0:                                    ; no point in looking before this workgroup's own stores are through")
    a("  ds_read_b32 v2, v25")
    a("  s_waitcnt lgkmcnt(0)")
    a("  v_cmp_gt_u32 vcc, 5, v2")
    a("  s_cbranch_vccnz K2_W0")
    stamp(a, 19, alt="alt2")
    if "pipe0" in OPT:
        a("  buffer_load_dword v6, v1, s[8:11], s63 offen sc1")
        a("  s_nop 15")
        a("K2_W1:")
        a("  buffer_load_dword v2, v1, s[8:11], s63 offen sc1")
        a("  s_waitcnt vmcnt(1)")
        a("  v_cmp_eq_u32 vcc, 0, v6")
        a("  s_cbranch_vccz K2_R1")
        a("  buffer_load_dword v6, v1, s[8:11], s63 offen sc1")
        a("  s_add_u32 s70, s70, 1")
        a("  s_waitcnt vmcnt(1)")
    else:
        a("K2_W1:")
        a("  buffer_load_dword v2, v1, s[8:11], s63 offen sc1")
        a("  s_add_u32 s70, s70, 1")
        a("  s_waitcnt vmcnt(0)")
    a("  v_cmp_eq_u32 vcc, 0, v2")
    a(f"  s_cmp_lt_u32 s70, {SPIN}")
    a("  s_cselect_b64 vcc, vcc, 0")
    a("  s_cbranch_vccnz K2_W1")
    if "pipe0" in OPT: a("  s_branch K2_R1")
    a("K2_R0:")
    a("  s_waitcnt vmcnt(0)")
    a("K2_R1:")
    a("  s_barrier                               ; R0")
    stamp(a, 17, alt="alt2"); stamp(a, 23, alt=True)
    vload("st", f"  buffer_load_dwordx4 v{VQ}, s[8:11], s64 offen sc1 lds")
    a(f"  s_add_u32 m0, s59, {1024 - 32}")
    vload("st", f"  buffer_load_dword v{VQL}, s[8:11], s64 offen offset:32 sc1 lds")
    a("  s_setprio 1")
    vwait("st")
    a("  s_barrier")
    stamp(a, 2)
    qread(0); qread(1)
    a("  s_waitcnt lgkmcnt(0)")
    kv = [kv_list(a, w, u, f"v{VK}", f"v{VV}", f"v{VKL}") for u in range(NB)]
    issue(kv[0]); issue(kv[1]); issue(kv[2])
    later = kv[3] + kv[4] + [("st", None, "  buffer_load_dword v243, v243, s[8:11], s61 offen sc1"),
             ("st", f"  s_add_u32 m0, s59, {5120 - 576}", f"  buffer_load_dwordx4 v{VQ}, s[8:11], s64 offen offset:576 sc1 lds"),
             ("st", f"  s_add_u32 m0, s59, {5120 + 1024 - 608}", f"  buffer_load_dword v{VQL}, s[8:11], s64 offen offset:608 sc1 lds")]
    def gul(i):
        t = Asm(); gu(t, sum(GUB) + i)
        return ("gu", "\n".join(t.lines[:-1]), t.lines[-1])
    later += [gul(i) for i in range(GUQ[0])]
    stamp(a, 12, alt=True)
    def init(p, o=None):
        b = pa_slot(p); o = o or OB[p % 2]
        a(f"  ds_read_b128 v[{o}:{o + 3}], v{W16} offset:{b}")
        a(f"  ds_read_b128 v[{o + 4}:{o + 7}], v{W16} offset:{b + 1024}")
        a(f"  ds_read_b64 v[{o + 8}:{o + 9}], v{W8} offset:{b + 2048}")
    def flushB(p):
        b = L_PB + (p % 2) * 10240; o = OB[p % 2]
        a(f"  ds_write_b128 v{W16}, v[{o}:{o + 3}] offset:{b}")
        a(f"  ds_write_b128 v{W16}, v[{o + 4}:{o + 7}] offset:{b + 1024}")
        a(f"  ds_write_b64 v{W8}, v[{o + 8}:{o + 9}] offset:{b + 2048}")
    vwait(("k", 0))
    a("  s_waitcnt lgkmcnt(0)")
    w.qk2(0, 0, QL[0])
    w.qkm(0, 0, 0, QM[0])
    w.qkm(0, 0, 1, QM[0])
    for p in range(8):
        for u in range(NB):
            n = NB * p + u
            last = (p == 7 and u == NB - 1)
            def hook(pos, p=p, u=u):
                if pos == "pre2b" and u + 1 < NB: vwait(("k", u + 1))
                if pos == "prepv0": vwait(("v", u, 1))
                if pos == "prepv2": vwait(("v", u, 3))
                if p == 0:
                    if pos in ("early", "mid", "preqk", "late"): issue(later, 2)
                    if u == 3 and pos == "late":
                        bar()
                        init(1); init(0, 244)
                        issue([gul(i) for i in range(GUQ[0], sum(GUQ))])
                    if u == 4 and pos == "late": a("  s_waitcnt lgkmcnt(0)")
                    return
                if pos == "mid" and u == 0:
                    if p == 1:
                        for i in range(0, 10, 2):
                            a(f"  v_pk_add_f32 v[{OB[0] + i}:{OB[0] + i + 1}], v[{OB[0] + i}:{OB[0] + i + 1}], v[{244 + i}:{245 + i}]")
                    flushB(p - 1)
                if pos == "late" and u == 0:
                    vwait("st")
                    if p == 4: vwait("gu")
                    bar()
                if pos == "late" and u == (0 if p < 6 else 1) and p < 7:
                    init(p + 1); qread(p + 1)
                if pos == "late" and u == 3 and p < 7: a("  s_waitcnt lgkmcnt(0)")
            prev = None if n == 0 else ((OB[p % 2], u - 1) if u else (OB[(p - 1) % 2], NB - 1))
            nxt = None if last else ((u + 1, QM[p % 2], QL[p % 2]) if u + 1 < NB else (0, QM[(p + 1) % 2], QL[(p + 1) % 2]))
            w.unit(32 * (n % 2), 32 * ((n + 1) % 2), OB[p % 2], u, prev=prev, nxt=nxt, hook=hook)
            if n < 5: stamp(a, 14 + n, alt=True)
    w.pv(OB[1], 32 * ((8 * NB - 1) % 2), NB - 1, 3)
    flushB(7)
    bar()
    a(f"  v_lshrrev_b32 v0, 4, v{L16}")
    a(f"  s_cmp_ge_u32 s2, {NF}")
    a("  s_cbranch_scc1 K2_NOPREP")
    ffn_prep(a, True)
    a("K2_NOPREP:")
    a("  s_cmp_lg_u32 s3, 4")
    a("  s_cbranch_scc1 K2_T1B")
    a(f"  v_add_u32 v1, {L_WR}, v{L16}")
    for i in range(4): a(f"  v_mov_b32 v{20 + i}, 0")
    a("  ds_read_b128 v[16:19], v1")
    a("  s_mov_b64 exec, 0xff")
    a("  ds_read_b128 v[20:23], v1 offset:1024")
    a("  s_mov_b64 exec, -1")
    for i in range(4): a(f"  v_mov_b32 v{24 + i}, 0x3f803f80")
    a("  v_lshrrev_b32 v1, 3, v0                 ; t")
    a("  v_and_b32 v2, 7, v0                     ; j")
    a("  s_waitcnt lgkmcnt(0)")
    a("  v_mfma_f32_16x16x32_bf16 v[12:15], v[24:27], v[16:19], 0")
    a("  v_mfma_f32_16x16x32_bf16 v[12:15], v[24:27], v[20:23], v[12:15]")
    a("  v_lshlrev_b32 v3, 4, v1")
    a("  v_lshlrev_b32 v4, 4, v2")
    a("  v_sub_u32 v5, s38, v1                   ; 2047 - token t")
    a("  v_sub_u32 v6, s38, v2                   ; 2047 - token j")
    a("  v_and_b32 v10, 0x30, v0")
    a("  v_and_b32 v11, 1, v1")
    a("  v_lshl_add_u32 v10, v11, 2, v10")
    a(f"  v_add_u32 v10, {L_MR}, v10")
    a("  v_lshlrev_b32 v11, 11, v1")
    for m in ("row_ror:8", "row_ror:4", "row_ror:2", "row_ror:1"):
        a(f"  v_add_f32_dpp v12, v12, v12 {m} row_mask:0xf bank_mask:0xf")
    a(f"  v_mov_b32 v14, {f32(1.0 / 576)}")
    a("  s_movk_i32 s25, 0x7ff")
    a("  s_brev_b32 s26, 1")
    a("  s_setprio 3")
    a("  s_barrier                               ; T1")
    stamp(a, 12)
    for s in range(4):
        a(f"  ds_read_b128 v[{16 + 4 * s}:{19 + 4 * s}], v3 offset:{L_ST + 128 * s}")
        a(f"  ds_read_b128 v[{32 + 4 * s}:{35 + 4 * s}], v4 offset:{L_ST + 128 * s}")
    def both(f):
        f(16); f(32)
    a("  s_waitcnt lgkmcnt(4)")
    both(lambda b: (a(f"  v_pk_add_f32 v[{b}:{b + 1}], v[{b}:{b + 1}], v[{b + 4}:{b + 5}]"),
                    a(f"  v_add_f32 v{b + 2}, v{b + 2}, v{b + 6}")))
    a("  s_waitcnt lgkmcnt(0)")
    both(lambda b: a(f"  v_pk_add_f32 v[{b + 8}:{b + 9}], v[{b + 8}:{b + 9}], v[{b + 12}:{b + 13}]"))
    both(lambda b: a(f"  v_pk_add_f32 v[{b}:{b + 1}], v[{b}:{b + 1}], v[{b + 8}:{b + 9}]"))
    both(lambda b: a(f"  v_pk_mul_f32 v[{b}:{b + 1}], v[{b}:{b + 1}], v[14:15] op_sel_hi:[1,0]"))
    both(lambda b: a(f"  v_fma_f32 v{b + 1}, -v{b}, v{b}, v{b + 1}          ; var"))
    both(lambda b: a(f"  v_max_f32 v{b + 1}, 0, v{b + 1}"))
    both(lambda b: a(f"  v_add_f32 v{b + 1}, {f32(1e-5)}, v{b + 1}"))
    both(lambda b: a(f"  v_rsq_f32 v{b + 1}, v{b + 1}                 ; rstd"))
    both(lambda b: a(f"  v_add_f32 v{b + 10}, v{b + 10}, v{b + 14}"))
    both(lambda b: a(f"  v_add_f32 v{b + 2}, v{b + 2}, v{b + 10}"))
    both(lambda b: a(f"  v_fma_f32 v{b + 2}, -v{b}, v12, v{b + 2}"))
    both(lambda b: a(f"  v_mul_f32 v{b + 2}, v{b + 2}, v{b + 1}"))
    both(lambda b: a(f"  v_ashrrev_i32 v{b + 4}, 31, v{b + 2}"))
    both(lambda b: a(f"  v_bitop3_b32 v{b + 4}, v{b + 4}, s26, v{b + 2} bitop3:0x56"))
    a("  v_bfi_b32 v20, s25, v5, v20")
    a("  v_bfi_b32 v36, s25, v6, v36")
    a("  v_cmp_gt_u32 vcc, v20, v36")
    a("  v_max_u32 v36, 1, v36")
    a("  v_add_f32 v21, 1.0, v17")
    a("  v_lshrrev_b64 v[8:9], v2, vcc")
    a("  v_and_b32 v8, 0x01010101, v8")
    a("  v_and_b32 v9, 0x01010101, v9")
    a("  v_bcnt_u32_b32 v8, v8, v11")
    a("  v_bcnt_u32_b32 v8, v9, v8")
    a("  v_lshlrev_b32 v8, 2, v8")
    a("  buffer_store_dword v36, v8, s[8:11], s39 offen sc1")
    a("  s_mov_b32 exec_lo, 0x01010101")
    a("  s_mov_b32 exec_hi, 0x01010101")
    a("  v_mul_f32 v22, -v16, v17")
    a("  ds_write2_b32 v10, v21, v22 offset0:0 offset1:2")
    a("  v_rcp_f32 v21, v21")
    a(f"  v_mul_f32 v19, {f32(-math.log2(math.e))}, v18")
    a("  v_exp_f32 v19, v19")
    a("  v_mul_f32 v17, v17, v21")
    a("  v_add_f32 v19, 1.0, v19")
    a("  v_rcp_f32 v19, v19")
    a("  buffer_store_dwordx4 v[16:19], v3, s[8:11], s55 offen sc1")
    a("  s_mov_b64 exec, -1")
    a("  s_branch K2_T2")
    a("K2_T1B:")
    a("  s_barrier                               ; T1")

    a("K2_T2:")
    a(f"  v_add_u32 v1, s52, v{L16}")
    a("  v_mov_b32 v2, s51")
    a("  s_waitcnt lgkmcnt(0)")
    stamp(a, 13)
    a("  s_barrier                               ; T2")
    a("  s_mov_b32 exec_hi, 0xf")
    a("  ds_read_b128 v[4:7], v2")
    for h in range(2):
        for i in range(4):
            a(f"  ds_read_b128 v[{8 + 16 * h + 4 * i}:{11 + 16 * h + 4 * i}], v1 offset:{L_H + HI * i + 576 * h}")
    for h in range(2):
        for i in range(4):
            a(f"  s_waitcnt lgkmcnt({7 - 4 * h - i})")
            r = 8 + 16 * h + 4 * i
            d = (40, 8)[h]
            a(f"  v_pk_fma_f32 v[{r}:{r + 1}], v[{r}:{r + 1}], v[4:5], v[6:7]")
            a(f"  v_pk_fma_f32 v[{r + 2}:{r + 3}], v[{r + 2}:{r + 3}], v[4:5], v[6:7]")
            a(f"  v_cvt_pk_bf16_f32 v{d + i}, v{r}, v{r + 2}")
            a(f"  v_cvt_pk_bf16_f32 v{d + 4 + i}, v{r + 1}, v{r + 3}")
        a(f"  buffer_store_dwordx4 v[{d}:{d + 3}], v{L16}, s[16:19], s53 offen offset:{576 * h} sc1")
        a(f"  buffer_store_dwordx4 v[{d + 4}:{d + 7}], v{L16}, s[16:19], s53 offen offset:{1152 + 576 * h} sc1")
    ffn_tail(a)
    a("K2_END:")
    stamp_dump(a, 1, "s3")
    a("K2_EXIT:")
    a("  s_endpgm")
    a("K2_LAST:")
```

```python
import struct, math
WS_Q = 0
WS_KM = 0x240000
WS_KL = 0x250000
WS_VT = 0x252000
WS_STAT = 0x268000
WS_WOL = 0x270000
WS_FLAG = 0x312000
WS_KEYS = 0x352000
WS_PART = 0x362000
PSTR = 18432 + 128
WS_END = WS_PART + 144 * PSTR
QSCALE = 18 ** -0.5 * math.log2(math.e)
def f32(x):
    return "0x%08x" % struct.unpack("<I", struct.pack("<f", x))[0]

import os
DIAG = int(os.environ.get("DIAG", "0"))
WS_DBG = WS_END + 0x20000
WS_SIZE = WS_DBG + 2 * 256 * 8 * 128 if DIAG else WS_END
ST0 = 74
STAMPS = [int(x) for x in os.environ.get("STAMPS", "").split(",") if x]
if STAMPS: STAMPS += [0, 1, 24, 25]
OPT = set(os.environ.get("OPT", "").split(","))
def stamp(a, i, real=False, alt=False):
    if ("alt" in OPT or "alt2" in OPT or "alt3" in OPT) and 12 <= i <= 23 and not alt: return
    if alt and ("alt" if alt is True else alt) not in OPT: return
    if not DIAG or (STAMPS and i not in STAMPS) or (DIAG == 3 and i): return
    a(f"  {'s_memrealtime' if (real or DIAG == 2) else 's_memtime'} s[100:101]")
    a("  s_waitcnt lgkmcnt(0)")
    a(f"  s_mov_b32 s{ST0 + i}, s100")
def stamp_init(a):
    if not DIAG: return
    for i in range(26 if DIAG < 3 else 0): a(f"  s_mov_b32 s{ST0 + i}, 0")
    stamp(a, 0, True); stamp(a, 1)
def stamp_start(a):
    if DIAG != 3: return
    a("  s_lshl_b32 s100, s2, 3")
    a("  s_add_u32 s100, s100, s3")
    a("  s_lshl_b32 s100, s100, 7")
    a(f"  s_add_u32 s100, s100, {WS_DBG + 256 * 8 * 128}")
    a(f"  v_mov_b32 v1, s{ST0}")
    a("  v_mov_b32 v2, 0")
    a("  buffer_store_dword v1, v2, s[8:11], s100 offen")
    a("  buffer_store_dword v1, v2, s[8:11], s100 offen offset:512")
def stamp_dump(a, kern, swave):
    if not DIAG or DIAG == 3: return
    stamp(a, 24); stamp(a, 25, True)
    if kern == 0 and DIAG == 1: a("  s_sleep 20")
    a("  s_mov_b64 exec, 1")
    a(f"  s_lshl_b32 s100, s2, 3")
    a(f"  s_add_u32 s100, s100, {swave}")
    a(f"  s_lshl_b32 s100, s100, 7")
    a(f"  s_add_u32 s100, s100, {WS_DBG + kern * 256 * 8 * 128}")
    a("  s_nop 4")
    a("  v_mov_b32 v0, 0")
    for i in range(26):
        a(f"  v_mov_b32 v1, s{ST0 + i}")
        a(f"  buffer_store_dword v1, v0, s[8:11], s100 offen offset:{4 * i}")

KNAME = "sequential_preLN__grouped_kv_mqa__moe_arch_mod__prompt_kernel"
NF = 144
SPIN = 0x40000
L_G = 40960
L_U = L_G + 36864 + 128
L_D = L_U + 36864
L_QB = L_D + 36864
L_WR = L_QB + 10240
L_CNT = L_WR + 1152
LDS_SIZE = L_CNT + 64 + 256
def lane_gu(a, v):
    a("  v_lshrrev_b32 v14, 4, v0")
    a("  v_lshrrev_b32 v16, 2, v0")
    a("  v_mul_u32_u24 v16, 9216, v16")
    a("  v_and_b32 v15, 3, v0")
    a("  v_xor_b32 v15, v15, v14")
    a(f"  v_lshl_add_u32 v{v}, v15, 4, v16")
def expert_index(f):
    f("  s_and_b32 s56, s2, 7")
    f("  s_mul_i32 s56, s56, 18")
    f("  s_lshr_b32 s57, s2, 3")
    f("  s_add_u32 s56, s56, s57")
VGU = 238
NT = ' nt' if 'nt' in OPT else ''
def gu_setup(f, v=VGU):
    lane_gu(f, v)
    expert_index(f)
    f("  s_mov_b32 s32, s50")
    f("  s_and_b32 s33, s51, 0xffff")
    f("  s_mov_b32 s35, 0x20000")
    f("  s_mov_b32 s40, s52")
    f("  s_and_b32 s41, s53, 0xffff")
    f("  s_mov_b32 s43, 0x20000")
    f(f"  s_cmp_lt_u32 s2, {NF}")
    f("  s_cselect_b32 s34, 5308416, 0")
    f("  s_mov_b32 s42, s34")
    f("  s_and_b32 s57, s3, 3")
    f("  s_lshl_b32 s58, s57, 10")
    f("  s_mul_i32 s62, s57, 147456")
    f("  s_lshl_b32 s57, s56, 6")
    f("  s_add_u32 s62, s62, s57")
def gu(a, i, v=VGU):
    m, k = i // 9, i % 9
    a(f"  s_add_u32 m0, s58, {(L_G, L_U)[m] + 4096 * k}")
    a(f"  s_add_u32 s57, s62, {589824 * k}")
    a(f"  buffer_load_dwordx4 v{v}, s[{(32, 40)[m]}:{(35, 43)[m]}], s57 offen{NT} lds")
GUB = [int(x) for x in os.environ.get("GUB", "3,0,0,0,0").split(",")]
GUQ = [int(x) for x in os.environ.get("GUQ", "3,0").split(",")]
DNA = [int(x) for x in os.environ.get("DNA", "0,1,1,1,1,0,0").split(",")]
GUA = [int(x) for x in os.environ.get("GUA", "3,3,2,2,2,0,0").split(",")]
def srd(a, s, lo, hi, size):
    a(f"  s_mov_b32 s{s}, s{lo}")
    a(f"  s_and_b32 s{s+1}, s{hi}, 0xffff")
    a(f"  s_mov_b32 s{s+2}, {size}")
    a(f"  s_mov_b32 s{s+3}, 0x20000")
def common_scalars(a):
    a("  s_and_b32 s4, s2, 7")
    a("  s_lshl_b32 s4, s4, 5")
    a("  s_lshr_b32 s5, s2, 3")
    a("  s_add_u32 s4, s4, s5                    ; W: tokens 8W..8W+7")
    a("  s_mul_i32 s5, s4, 9216")
    a("  s_and_b32 s6, s3, 3")
    a("  s_mul_i32 s7, s6, 2560")
    srd(a, 12, 36, 37, 2359296)
    srd(a, 16, 64, 65, 2359296)
def b_scalars(a):
    srd(a, 8, 46, 47, WS_SIZE)
    common_scalars(a)
    a("  v_lshlrev_b32 v239, 4, v0")
```

```python
import os, sys
os.environ.setdefault("DIAG", "2")
import gen
from layout import *
base = gen.build(False)
def probe(kern, idx, mode, mul, wave=None):
    op = "v_max_u32" if mode == "max" else "v_min_u32"
    body = f'''.globl p_kernel
.p2align 8
.type p_kernel,@function
p_kernel:
  s_memrealtime s[20:21]
  s_cmp_ge_u32 s2, 1
  s_cbranch_scc1 P_END
  s_load_dwordx2 s[4:5], s[0:1], 96
  s_waitcnt lgkmcnt(0)
  s_mov_b32 s8, s4
  s_and_b32 s9, s5, 0xffff
  s_mov_b32 s10, {WS_SIZE}
  s_mov_b32 s11, 0x20000
  v_lshlrev_b32 v1, 7, v0
  v_mov_b32 v2, -1
  v_mov_b32 v3, {0 if mode == "max" else -1}
  s_mov_b32 s12, {WS_DBG + 256 * 8 * 128}
  s_mov_b32 s13, {WS_DBG + kern * 256 * 8 * 128}
  s_mov_b32 s14, 0
P_L:
  buffer_load_dword v4, v1, s[8:11], s12 offen
  buffer_load_dword v5, v1, s[8:11], s13 offen offset:{4 * idx}
  s_waitcnt vmcnt(0)
  v_min_u32 v2, v2, v4
  {op} v3, v3, v5
  s_add_u32 s12, s12, 8192
  s_add_u32 s13, s13, 8192
  s_add_u32 s14, s14, 1
  s_cmp_lt_u32 s14, 32
  s_cbranch_scc1 P_L
  s_mov_b32 s15, -1
  s_mov_b32 s16, {0 if mode == "max" else -1}
'''
    for l in range(64):
        body += f"  v_readlane_b32 s17, v2, {l}\n  s_min_u32 s15, s15, s17\n"
        if wave is None or l % 8 == wave:
            body += f"  v_readlane_b32 s17, v3, {l}\n  s_{mode}_u32 s16, s16, s17\n"
    if DIAG == 3: body += "  s_mov_b32 s16, s20\n"
    body += f'''  s_sub_u32 s16, s16, s15
  s_min_u32 s16, s16, 20000
  s_mul_i32 s16, s16, {mul}
  s_add_u32 s16, s16, 10000
  s_mov_b32 s14, 0
P_S:
  s_memrealtime s[18:19]
  s_waitcnt lgkmcnt(0)
  s_sub_u32 s18, s18, s15
  s_add_u32 s14, s14, 1
  s_cmp_ge_u32 s14, 0x100000
  s_cbranch_scc1 P_END
  s_cmp_lt_u32 s18, s16
  s_cbranch_scc1 P_S
P_END:
  s_endpgm
.section .rodata,"a"
.p2align 6
''' + gen.kd("p_kernel", 16, 32)
    t = base.replace("; @launch grid", f"; @launch kernel={KNAME} grid").replace('.amdgcn_target', "; @launch kernel=p_kernel grid=(1,1,1) block=(64,1,1) lds=0\n.amdgcn_target", 1)
    return t.replace('.section .rodata,"a"\n', body, 1)
specs = sys.argv[1:]
for i, sp in enumerate(specs):
    f = sp.split(",")
    open(f"p{os.environ.get('PFX', '')}{i}.s", "w").write(probe(int(f[0]), int(f[1]), f[2], int(f[3]), int(f[4]) if len(f) > 4 else None))
```

```python
from common import *
ITERS = 4
def kernel(name, body, vgpr=256):
    loads = "\n".join(f"  s_mov_b32 s24, {i*8192}\n  buffer_load_dwordx4 v[{96+4*i}:{99+4*i}], v255, s[20:23], s24 offen" for i in range(27)) + "\n  s_waitcnt vmcnt(0)\n  v_mov_b32 v201, 0"
    init = "\n".join(f"  v_mov_b32 v{i}, 0" for i in range(1, 256))
    return f'''.globl {name}
.p2align 8
.type {name},@function
{name}:
  s_load_dwordx4 s[4:7], s[0:1], 0
  v_lshrrev_b32 v1, 6, v0
  v_lshlrev_b32 v250, 4, v0
  s_nop 1
  v_readfirstlane_b32 s12, v1
  v_mov_b32 v255, v250
{init.replace("  v_mov_b32 v255, 0", "")}
  v_mov_b32 v254, 0xdddddddd
  v_lshrrev_b32 v253, 2, v255
  s_waitcnt lgkmcnt(0)
  s_mov_b32 s20, s6
  s_and_b32 s21, s7, 0xffff
  s_mov_b32 s22, 0x100000
  s_mov_b32 s23, 0x20000
  s_mov_b32 s24, 0
  s_lshl_b32 s25, s12, 12
  s_mov_b32 m0, s25
{loads}
  s_waitcnt vmcnt(0)
  s_barrier
  s_mov_b32 s10, {ITERS}
  s_memrealtime s[16:17]
  s_memtime s[14:15]
  s_waitcnt lgkmcnt(0)
.p2align 6
L_{name}:
{body}
  s_sub_u32 s10, s10, 1
  s_cmp_lg_u32 s10, 0
  s_cbranch_scc1 L_{name}
  s_nop 15
  s_nop 15
  s_waitcnt vmcnt(0) lgkmcnt(0)
  s_memtime s[8:9]
  s_memrealtime s[18:19]
  s_waitcnt lgkmcnt(0)
  s_sub_u32 s8, s8, s14
  s_sub_u32 s18, s18, s16
  s_lshl_b32 s11, s2, 4
  s_add_u32 s11, s11, s12
  s_lshl_b32 s11, s11, 3
  v_mov_b32 v1, s11
  v_mov_b32 v2, s8
  v_mov_b32 v3, s18
  global_store_dwordx2 v1, v[2:3], s[4:5]
  s_waitcnt vmcnt(0)
  s_endpgm
''' + kd(name, vgpr)

def unit(u, extra):
    X = 16 + 32 * (u % 2); Y = 16 + 32 * ((u + 1) % 2)
    kt = (2 * (u + 1)) % 8
    vt = (2 * u) % 8
    vp = (2 * (u - 1)) % 8
    E = lambda i: f"  v_exp_f32 v{X+i}, v{X+i}"
    PV = lambda buf, k, t: f"  v_smfmac_f32_32x32x32_bf16 v[80:95], v[{128+8*t+4*k}:{131+8*t+4*k}], v[{buf+8*k}:{buf+8*k+7}], v254"
    o = []
    o += [E(0), E(1), PV(Y, 3, vp)]
    o += [E(2), E(3), E(4)]
    o += [f"  v_mfma_f32_32x32x4_2b_bf16 v[{Y}:{Y+31}], v[192:193], v[200:201], 0"]
    o += [E(i) for i in range(5, 9)]
    o += extra(u, 0)
    o += [E(i) for i in range(9, 13)]
    o += [PV(X, 0, vt)]
    o += [E(i) for i in range(13, 16)]
    o += extra(u, 1)
    o += [E(i) for i in range(16, 18)]
    o += [PV(X, 1, vt)]
    o += [E(18), E(19), E(20)]
    o += [f"  v_mfma_f32_32x32x16_bf16 v[{Y}:{Y+15}], v[{96+4*kt}:{99+4*kt}], v[196:199], v[{Y}:{Y+15}]"]
    o += [E(21), E(22), E(23)]
    o += [f"  v_mfma_f32_32x32x16_bf16 v[{Y+16}:{Y+31}], v[{100+4*kt}:{103+4*kt}], v[196:199], v[{Y+16}:{Y+31}]"]
    o += [E(24), E(25), E(26)]
    o += [PV(X, 2, vt)]
    o += [E(i) for i in range(27, 30)]
    o += extra(u, 2)
    o += [E(i) for i in range(30, 32)]
    return "\n".join(o)
NU = 8
def body(extra, filt=lambda l: True):
    return "\n".join(l for u in range(NU) for l in unit(u, extra).split("\n") if filt(l))
def unit2(u, mode):
    X = 16 + 32 * (u % 2); Y = 16 + 32 * ((u + 1) % 2)
    kt = (2 * (u + 1)) % 8
    vp = (2 * (u - 1)) % 8
    E = lambda i: f"  v_exp_f32 v{X+i}, v{X+i}"
    PV = lambda k: f"  v_smfmac_f32_32x32x32_bf16 v[80:95], v[{128+8*vp+4*k}:{131+8*vp+4*k}], v[{Y+8*k}:{Y+8*k+7}], v254"
    M8 = lambda h, c: f"  v_mfma_f32_32x32x8_bf16 v[{Y+16*h}:{Y+16*h+15}], v[{192+2*h}:{193+2*h}], v[200:201], {c}"
    MM = lambda h, c: f"  v_mfma_f32_32x32x16_bf16 v[{Y+16*h}:{Y+16*h+15}], v[{96+4*kt+4*h}:{99+4*kt+4*h}], v[196:199], {c}"
    D = lambda h: f"v[{Y+16*h}:{Y+16*h+15}]"
    B2 = f"  v_mfma_f32_32x32x4_2b_bf16 v[{Y}:{Y+31}], v[192:193], v[200:201], 0"
    if mode == "s2": ms = [(0, PV(0)), (3, PV(1)), (6, PV(2)), (9, PV(3)), (12, M8(0, 0)), (16, MM(0, D(0))), (19, M8(1, 0)), (23, MM(1, D(1)))]
    if mode == "s2t": ms = [(0, PV(0)), (2, PV(1)), (5, PV(2)), (7, PV(3)), (10, M8(0, 0)), (13, MM(0, D(0))), (16, M8(1, 0)), (20, MM(1, D(1)))]
    if mode == "s3": ms = [(0, PV(0)), (3, PV(1)), (6, PV(2)), (9, PV(3)), (12, MM(0, 0)), (15, M8(0, D(0))), (19, MM(1, 0)), (22, M8(1, D(1)))]
    if mode == "s4": ms = [(0, PV(0)), (3, PV(1)), (6, PV(2)), (9, PV(3)), (12, B2), (21, MM(0, D(0))), (24, MM(1, D(1)))]
    o = []
    for i in range(32):
        o += [t for p, t in ms if p == i]
        o.append(E(i))
    return "\n".join(o)
B = {}
full = body(lambda u, p: [])
B["full"] = full
zl = "  v_mov_b32 v193, 0\n  v_mov_b32 v195, 0\n  s_mov_b32 exec_lo, 0\n  v_mov_b32 v192, 0\n  v_mov_b32 v194, 0\n  v_mov_b32 v200, 0\n  s_mov_b64 exec, -1\n  s_nop 1\n"
for m in ("s2", "s2t", "s3"): B[m] = zl + "\n".join(unit2(u, m) for u in range(NU))
B["s4"] = "\n".join(unit2(u, "s4") for u in range(NU))
src = HDR + "".join(kernel(n, b) for n, b in B.items()) + meta([(n, 256) for n in B], 16)
co = build(src, "mb24")
if not os.path.exists('/dev/kfd'):
    print("built"); raise SystemExit
out = cl.DeviceBuffer(256 * 16 * 8)
rng = np.random.default_rng(0)
def bf(x): return (np.asarray(x, np.float32).view(np.uint32) >> 16).astype(np.uint16)
def data(kind):
    d = rng.standard_normal((27, 512, 8)).astype(np.float32) * 0.7
    if kind == "zero": d[:] = 0
    lane = np.arange(512) % 32
    if kind in ("vzero", "vpos", "small", "vshort"): d[8:24, lane >= 20] = 0; d[8:24, (lane == 18) | (lane == 19)] = 1
    if kind == "vpos": d[8:24] = np.abs(d[8:24])
    if kind == "small": d[25:27] *= 0.1
    if kind == "vshort": d[8:24] = (d[8:24].view(np.uint32) & 0xfff00000).view(np.float32)
    if kind == "vones": d[8:24, lane >= 18] = 1
    w = np.zeros(1 << 19, np.uint16); w[:27 * 4096] = bf(d).ravel()
    return cl.DeviceBuffer.from_numpy(w)
k = cl.AsmKernel(co, "full")
for rnd in range(2):
 for n, kinds in [(n, ("vzero",)) for n in B]:
  f = k.function(n)
  for kind in kinds:
    ws = data(kind)
    res = []
    for rep in range(6):
        time.sleep(0.01)
        cl._launch_function(f, (256, 1, 1), (512, 1, 1), struct.pack("<2Q", out.ptr, ws.ptr), 65536)
        sync()
        a = out.to_numpy(np.uint32, (256, 16, 2))[:, 4:8].astype(np.float64)
        res.append((np.median(a[:,:,0]), np.mean(a[:,:,1])/100))
    print(f"{n:9s} {kind:6s} cyc {res[-1][0]:.0f} us", " ".join(f"{r[1]:.2f}" for r in res[1:]))
```
